```python
import torch

def _softmax(x, axis=-1):
    return torch.softmax(x, dim=axis)
def _gelu(x):
    return torch.nn.functional.gelu(x, approximate="tanh")
def _silu(x):
    return torch.nn.functional.silu(x)
def _sigmoid(x):
    return torch.sigmoid(x)
def _layernorm(x, axis=-1, eps=1e-5):
    m = x.mean(dim=axis, keepdim=True)
    v = x.var(dim=axis, keepdim=True, unbiased=False)
    return (x - m) / torch.sqrt(v + eps)
def _scatter_add(tgt, idx, src, axis=0):
    return tgt.clone().index_add_(axis, idx, src)
def _segment_sum(src, seg, n):
    out = torch.zeros((n,) + src.shape[1:], dtype=src.dtype)
    return out.index_add_(0, seg, src)
def _pad(x, pw):
    flat = tuple(v for pair in reversed(pw) for v in pair)
    return torch.nn.functional.pad(x, flat)

kernel_name = 'standalone__deep_cross_wide_deep__recsys'

def setup_inputs():

    _w = (lambda a: (lambda t: t.to(torch.bfloat16) if t.is_floating_point() else t)(torch.as_tensor(a)))
    B, F, D = 1024, 100, 128
    V, Nd = min(1000, 100000), 13
    Din = F * D
    H = 4 * D
    return {
        "idx": _w((lambda lo, hi, *s: torch.randint(lo, hi, s))(0, V, B, F).to(torch.int64)),
        "table": _w((lambda *s: torch.randn(*s, dtype=torch.bfloat16) * 1.6)(V, D) * 0.05),
        "x_wide": _w((lambda *s: torch.randn(*s, dtype=torch.bfloat16) * 1.6)(B, Nd)),
        "w_wide": _w((lambda *s: torch.randn(*s, dtype=torch.bfloat16) * 1.6)(Nd) * 0.05),
        "b_wide": _w((lambda *s: torch.randn(*s, dtype=torch.bfloat16) * 1.6)(1) * 0.01),
        "W1": _w((lambda *s: torch.randn(*s, dtype=torch.bfloat16) * 1.6)(Din, H) * (2.0 / Din) ** 0.5),
        "b1": _w((lambda *s: torch.randn(*s, dtype=torch.bfloat16) * 1.6)(H) * 0.01),
        "W2": _w((lambda *s: torch.randn(*s, dtype=torch.bfloat16) * 1.6)(H) * (1.0 / H) ** 0.5),
        "b2": _w((lambda *s: torch.randn(*s, dtype=torch.bfloat16) * 1.6)(1) * 0.01),
    }

def reference(idx, table, x_wide, w_wide, b_wide, W1, b1, W2, b2):
    emb = table[idx]
    deep_in = emb.reshape(emb.shape[0], -1)
    h = deep_in @ W1 + b1
    h = h * (lambda x, dt: x.to(dt))(h > 0, h.dtype)
    deep_logit = h @ W2 + b2
    wide_logit = x_wide @ w_wide + b_wide
    return _sigmoid(wide_logit + deep_logit)
```

```python
import sys, argparse

NAME = "standalone__deep_cross_wide_deep__recsys_kernel"

HDR = """; Kernarg layout for this problem (96 bytes, ptrs only, base s[0:1]):
"""

class Em:
    def __init__(self):
        self.L = []
        self.vmq = []
        self.lgq = []
    def e(self, s):
        self.L.append("    " + s)
    def lab(self, s):
        self.L.append(s + ":")
    def c(self, s):
        self.L.append("    ; " + s)
    def vm(self, s, tag):
        self.e(s); self.vmq.append(tag)
    def lg(self, s, tag):
        self.e(s); self.lgq.append(tag)
    def wait_vm(self, tag):
        if tag not in self.vmq:
            return
        idx = len(self.vmq) - 1 - self.vmq[::-1].index(tag)
        n = len(self.vmq) - 1 - idx
        self.vmq = self.vmq[idx + 1:]
        self.e(f"s_waitcnt vmcnt({min(n, 63)})")
    def wait_lg(self, tag):
        if tag not in self.lgq:
            return
        idx = len(self.lgq) - 1 - self.lgq[::-1].index(tag)
        n = len(self.lgq) - 1 - idx
        assert n <= 15, n
        self.lgq = self.lgq[idx + 1:]
        self.e(f"s_waitcnt lgkmcnt({n})")
    def wait_all(self, vm=True, lg=True):
        parts = []
        if vm:
            parts.append("vmcnt(0)"); self.vmq = []
        if lg:
            parts.append("lgkmcnt(0)"); self.lgq = []
        self.e("s_waitcnt " + " ".join(parts))

def vr(base, n=1):
    return f"v{base}" if n == 1 else f"v[{base}:{base+n-1}]"
def ar(base, n=1):
    return f"a{base}" if n == 1 else f"a[{base}:{base+n-1}]"

def gen(R=6, TS=False, NSTEP=25):
    E = Em()
    e = E.e
    TBL = 0
    IDXB = 81920
    LDS_TOTAL = IDXB + 53248
    FIN = 98304
    sW1, sTB, sIX, sWS, sMI = 4, 8, 12, 16, 20
    sK = 24
    P_IDX, P_TBL, P_XW, P_WW, P_BW, P_W1, P_B1, P_W2, P_B2, P_OUT, P_DBG, P_WS = [24 + 2 * i for i in range(12)]
    sW = 3
    sNI, sS, sMIi, sP = 48, 49, 50, 51
    sT0, sT1, sT2, sT3 = 52, 53, 54, 55
    sBbase, sB24, sBoff = 56, 57, 58
    s80, sSelLo, sSelHi = 59, 60, 61
    sInbox = 62
    sDBG = 64
    sOUT = 68
    sSt = 72
    sCnt = 76
    sTS = 80
    vLane, vC, vB4, vB5, vR32 = 1, 2, 3, 4, 5
    vB0, vB1, vQ = 6, 7, 8
    vL16 = 9
    vTmp = 10
    vIA = 16
    vIA2 = 20
    vGA = 24
    vB1a, vB1b, vW2a, vW2b = 28, 29, 30, 31
    vBF = 32
    vI = 48
    vACC0 = 64
    vXW, vWW, vBW, vB2 = 96, 97, 98, 99
    vFL = 100
    vTD = 101
    vST = 106
    vW = 107
    vRD = 110
    vRAW = 112
    assert vRAW + 16 * R <= 256
    vT1 = 112
    aACC = 0
    aAF = 96

    def acc(tp, n):
        if tp == 0:
            return vr(vACC0 + n * 16, 16)
        return ar(aACC + ((tp - 1) * 2 + n) * 16, 16)
    def afrag(tp, ks):
        return ar(aAF + (tp * 2 + ks) * 4, 4)
    def bfrag(ks, n):
        return vr(vBF + (ks * 2 + n) * 4, 4)
    def raw(i, j, h=None):
        b = vRAW + 16 * (i % R) + 2 * j
        if h is None:
            return vr(b, 2)
        return vr(b + h)

    tsn = [0]
    def stamp():
        if not TS:
            return
        k = tsn[0]; tsn[0] += 1
        e(f"s_memtime s[{sTS+2*k}:{sTS+2*k+1}]")
        E.wait_all(vm=False, lg=True)

    E.lab(NAME)
    e("s_cmp_ge_u32 s2, 256")
    e("s_cbranch_scc1 L_END")
    e(f"s_load_dwordx16 s[24:39], s[0:1], 0")
    e(f"s_load_dwordx8 s[40:47], s[0:1], 64")
    if TS:
        e(f"s_memtime s[{sTS}:{sTS+1}]"); tsn[0] = 1
    e(f"v_and_b32 v{vLane}, 63, v0")
    e(f"v_lshrrev_b32 v{vTmp}, 6, v0")
    e(f"v_and_b32 v{vC}, 15, v0")
    e(f"v_readfirstlane_b32 s{sW}, v{vTmp}")
    e(f"v_bfe_u32 v{vB4}, v0, 4, 1")
    e(f"v_bfe_u32 v{vB5}, v0, 5, 1")
    e(f"v_and_b32 v{vR32}, 31, v0")
    e(f"s_and_b32 s{sNI}, s2, 7")
    e(f"s_lshr_b32 s{sT0}, s2, 3")
    e(f"s_and_b32 s{sS}, s{sT0}, 3")
    e(f"s_lshr_b32 s{sMIi}, s{sT0}, 2")
    e(f"s_lshl_b32 s{sP}, s{sNI}, 2")
    e(f"s_add_u32 s{sP}, s{sP}, s{sS}")
    e(f"s_movk_i32 s{s80}, 80")
    e(f"s_mov_b32 s{sSelLo}, 0x05040100")
    e(f"s_mov_b32 s{sSelHi}, 0x07060302")
    e(f"v_lshlrev_b32 v{vB0}, 14, v{vB4}")
    e(f"v_lshl_add_u32 v{vB0}, v{vB5}, 13, v{vB0}")
    e(f"v_lshl_add_u32 v{vB0}, v{vC}, 3, v{vB0}")
    e(f"v_add_u32 v{vB1}, 0x1000, v{vB0}")
    e(f"v_lshlrev_b32 v{vQ}, 4, v{vB5}")
    e(f"v_lshlrev_b32 v{vL16}, 4, v{vLane}")
    e(f"s_mov_b32 s{sT0}, 52429")
    for b in range(5):
        e(f"v_add_u32 v{vTmp}, {64*b}, v{vLane}")
        e(f"v_mul_u32_u24 v{vTmp+1}, s{sT0}, v{vTmp}")
        e(f"v_lshrrev_b32 v{vTmp+1}, 18, v{vTmp+1}")
        e(f"v_mul_u32_u24 v{vTmp+2}, 5, v{vTmp+1}")
        e(f"v_sub_u32 v{vTmp+2}, v{vTmp}, v{vTmp+2}")
        e(f"v_min_u32 v{vTmp+2}, 3, v{vTmp+2}")
        e(f"v_lshlrev_b32 v{vTmp+2}, 4, v{vTmp+2}")
        e(f"v_lshl_add_u32 v{vTD+b}, v{vTmp+1}, 8, v{vTmp+2}")
    e(f"s_movk_i32 s{sT1}, 400")
    e(f"v_mul_u32_u24 v{vTmp}, s{sT1}, v{vR32}")
    for tp in range(4):
        e(f"s_add_u32 s{sT2}, s{sW}, {tp}")
        e(f"s_and_b32 s{sT2}, s{sT2}, 3")
        e(f"s_mul_i32 s{sT2}, s{sT2}, 12800")
        e(f"s_lshl_b32 s{sT3}, s{sW}, 4")
        e(f"s_add_u32 s{sT2}, s{sT2}, s{sT3}")
        e(f"s_add_u32 s{sT2}, s{sT2}, {IDXB}")
        e(f"v_add_u32 v{vIA+tp}, s{sT2}, v{vTmp}")
        e(f"s_mul_i32 s{sT3}, s{sW}, 12")
        e(f"s_sub_u32 s{sT2}, s{sT2}, s{sT3}")
        e(f"s_add_u32 s{sT2}, s{sT2}, 384")
        e(f"v_add_u32 v{vIA2+tp}, s{sT2}, v{vTmp}")
    e(f"s_lshl_b32 s{sT0}, s{sS}, 15")
    e(f"s_lshl_b32 s{sT1}, s{sNI}, 7")
    e(f"s_add_u32 s{sT0}, s{sT0}, s{sT1}")
    e(f"s_lshl_b32 s{sT1}, s{sW}, 19")
    e(f"s_add_u32 s{sBbase}, s{sT0}, s{sT1}")
    e(f"s_add_u32 s{sT1}, s{sW}, 96")
    e(f"s_lshl_b32 s{sT1}, s{sT1}, 17")
    e(f"s_add_u32 s{sB24}, s{sT0}, s{sT1}")
    e(f"s_lshl_b32 s{sT0}, s{sMIi}, 5")
    e(f"s_add_u32 s{sT0}, s{sT0}, s{sP}")
    e(f"s_lshl_b32 s{sInbox}, s{sT0}, 15")
    for k in range(4):
        e(f"v_mov_b32 v{vACC0+k}, -1")
    e("s_waitcnt lgkmcnt(0)")
    stamp()
    def srd(d, p, nbytes, addoff=None):
        if addoff is None:
            e(f"s_mov_b32 s{d}, s{p}")
            e(f"s_and_b32 s{d+1}, s{p+1}, 0xffff")
        else:
            e(f"s_add_u32 s{d}, s{p}, s{addoff}")
            e(f"s_addc_u32 s{d+1}, s{p+1}, 0")
            e(f"s_and_b32 s{d+1}, s{d+1}, 0xffff")
        e(f"s_mov_b32 s{d+2}, {nbytes}")
        e(f"s_mov_b32 s{d+3}, 0x00020000")
    srd(sWS, P_WS, 8 << 20 if not TS else 32 << 20)
    srd(sTB, P_TBL, 256000)
    e(f"s_mul_i32 s{sT0}, s{sMIi}, 51200")
    srd(sIX, P_IDX, 51200, addoff=sT0)
    srd(sW1, P_W1, 13107200)
    srd(sDBG, P_DBG, 256)
    srd(sOUT, P_OUT, 2048)
    e(f"s_lshl_b32 s{sT0}, s{sW}, 13")
    e(f"s_add_u32 s{sT0}, s{sT0}, s{sInbox}")
    e(f"s_add_u32 s{sT1}, s{sT0}, 4096")
    for k in range(8):
        so = sT0 if k < 4 else sT1
        E.vm(f"buffer_store_dwordx4 {vr(vACC0,4)}, v{vL16}, s[{sWS}:{sWS+3}], s{so} offen offset:{(k%4)*1024} sc1", "clear")
    e(f"s_mul_i32 s{sT0}, s{sW}, 20480")
    e(f"s_lshl_b32 s{sT1}, s{sW}, 16")
    e(f"s_lshl_b32 s{sT2}, s{sS}, 6")
    e(f"s_add_u32 s{sT1}, s{sT1}, s{sT2}")
    for aa in range(4):
        for b in range(5):
            e(f"s_add_u32 m0, s{sT0}, {(aa*5+b)*1024}")
            if b == 0 and aa > 0:
                e(f"s_add_u32 s{sT1}, s{sT1}, 16384")
            else:
                e("s_nop 0")
            E.vm(f"buffer_load_dwordx4 v{vTD+b}, s[{sTB}:{sTB+3}], s{sT1} offen lds", "tbl")
    e(f"s_mul_i32 s{sT1}, s{sW}, 13312")
    e(f"s_add_u32 s{sT0}, s{sT1}, {IDXB}")
    for k in range(13):
        if k % 4 == 0:
            e(f"s_add_u32 m0, s{sT0}, {k*1024}")
            e(f"s_add_u32 s{sT2}, s{sT1}, {k*1024}")
        E.vm(f"buffer_load_dwordx4 v{vL16}, s[{sIX}:{sIX+3}], s{sT2} offen offset:{(k%4)*1024} lds", "idx")
    def bload(i):
        out = []
        if i < 24:
            cst = (16 * (i // 4) + i % 4) * 131072
            out.append(("s", f"s_add_u32 s{sBoff}, s{sBbase}, {cst}"))
        else:
            out.append(("s", f"s_mov_b32 s{sBoff}, s{sB24}"))
        for j in range(8):
            vo = vB0 if j < 4 else vB1
            out.append(("vm", f"buffer_load_dwordx2 {raw(i,j)}, v{vo}, s[{sW1}:{sW1+3}], s{sBoff} offen offset:{(j%4)*1024}", f"raw{i}"))
        return out
    def emit_item(it):
        if it[0] == "s" or it[0] == "v":
            e(it[1])
        elif it[0] == "vm":
            E.vm(it[1], it[2])
        elif it[0] == "lg":
            E.lg(it[1], it[2])
        elif it[0] == "wvm":
            E.wait_vm(it[1])
        elif it[0] == "wlg":
            E.wait_lg(it[1])
        else:
            raise ValueError(it)
    for i in range(min(R, NSTEP)):
        for it in bload(i):
            emit_item(it)
    e(f"v_lshlrev_b32 v{vTmp}, 2, v{vC}")
    e(f"v_lshl_add_u32 v{vTmp}, v{vB4}, 1, v{vTmp}")
    e(f"v_add_u32 v{vTmp}, v{vTmp}, v{vB5}")
    e(f"s_lshl_b32 s{sT0}, s{sW}, 7")
    e(f"v_add_u32 v{vTmp}, s{sT0}, v{vTmp}")
    e(f"v_lshlrev_b32 v{vTmp}, 1, v{vTmp}")
    def srd_mi(p, nbytes):
        srd(sMI, p, nbytes)
    srd_mi(P_B1, 1024)
    E.vm(f"buffer_load_ushort v{vB1a}, v{vTmp}, s[{sMI}:{sMI+3}], 0 offen", "small")
    E.vm(f"buffer_load_ushort v{vB1b}, v{vTmp}, s[{sMI}:{sMI+3}], 0 offen offset:128", "small")
    srd(sTS + 16 if False else 76, P_W2, 1024)
    E.vm(f"buffer_load_ushort v{vW2a}, v{vTmp}, s[76:79], 0 offen", "small")
    E.vm(f"buffer_load_ushort v{vW2b}, v{vTmp}, s[76:79], 0 offen offset:128", "small")
    e(f"s_lshl_b32 s{sT0}, s{sMIi}, 7")
    e(f"s_lshl_b32 s{sT1}, s{sP}, 2")
    e(f"s_add_u32 s{sT0}, s{sT0}, s{sT1}")
    e(f"v_lshrrev_b32 v{vTmp+1}, 4, v{vLane}")
    e(f"v_add_u32 v{vTmp+1}, s{sT0}, v{vTmp+1}")
    e(f"v_lshlrev_b32 v{vRD}, 1, v{vTmp+1}")
    e(f"v_mov_b32 v{vRD+1}, v{vRD}")
    e(f"v_mul_u32_u24 v{vTmp+1}, 13, v{vTmp+1}")
    e(f"v_add_u32 v{vTmp+1}, v{vTmp+1}, v{vC}")
    e(f"v_lshlrev_b32 v{vTmp+1}, 1, v{vTmp+1}")
    e(f"v_mov_b32 v{vTmp+2}, 0x7fffff00")
    e(f"v_cmp_gt_u32 vcc, 13, v{vC}")
    e("s_nop 1")
    e(f"v_cndmask_b32 v{vTmp+1}, v{vTmp+2}, v{vTmp+1}, vcc")
    e(f"v_lshlrev_b32 v{vTmp+2}, 1, v{vC}")
    srd(sMI, P_XW, 26624)
    E.vm(f"buffer_load_ushort v{vXW}, v{vTmp+1}, s[{sMI}:{sMI+3}], 0 offen", "small")
    srd(sMI, P_WW, 26)
    E.vm(f"buffer_load_ushort v{vWW}, v{vTmp+2}, s[{sMI}:{sMI+3}], 0 offen", "small")
    e(f"v_mov_b32 v{vTmp+3}, 0")
    srd(sMI, P_BW, 2)
    E.vm(f"buffer_load_ushort v{vBW}, v{vTmp+3}, s[{sMI}:{sMI+3}], 0 offen", "small")
    srd(sMI, P_B2, 2)
    E.vm(f"buffer_load_ushort v{vB2}, v{vTmp+3}, s[{sMI}:{sMI+3}], 0 offen", "small")
    E.wait_vm("idx")
    e("s_barrier")
    stamp()
    e(f"s_cmp_lg_u32 s{sW}, 0")
    e("s_cbranch_scc1 L_NOFLAG")
    e(f"s_lshl_b32 s{sT0}, s{sMIi}, 5")
    e(f"s_add_u32 s{sT0}, s{sT0}, s{sP}")
    e(f"v_mov_b32 v{vTmp}, s{sT0}")
    e(f"v_mov_b32 v{vTmp+1}, 1")
    e("s_mov_b64 s[76:77], exec")
    e("s_mov_b64 exec, 1")
    e(f"buffer_store_byte v{vTmp+1}, v{vTmp}, s[{sDBG}:{sDBG+3}], 0 offen sc1")
    e("s_mov_b64 exec, s[76:77]")
    E.lab("L_NOFLAG")

    def idx_read_items(group):
        out = []
        if group < 6:
            for tp in range(4):
                out.append(("lg", f"ds_read_b128 {vr(vI+4*tp,4)}, v{vIA+tp} offset:{group*64}", f"idx{group}"))
        else:
            for tp in range(4):
                out.append(("lg", f"ds_read_b32 v{vI+4*tp}, v{vIA2+tp}", f"idx{group}"))
        return out
    def addr_item(i, tp):
        comp = i % 4 if i < 24 else 0
        return ("v", f"v_mad_u32_u24 v{vGA+tp}, v{vI+4*tp+comp}, s{s80}, v{vQ}")
    def gather_item(i, tp, ks):
        return ("lg", f"ds_read_b128 {afrag(tp,ks)}, v{vGA+tp} offset:{TBL + 32*ks}", f"g{i}_{tp}_{ks}")
    def swap_item(i, j):
        return ("v", f"v_permlane16_swap_b32 {raw(i,j,0)}, {raw(i,j,1)}")
    def perm_item(i, ks, n, p):
        sel = sSelLo if n == 0 else sSelHi
        return ("v", f"v_perm_b32 v{vBF+(ks*2+n)*4+p}, {raw(i,2*p+1,ks)}, {raw(i,2*p,ks)}, s{sel}")

    for it in idx_read_items(0):
        emit_item(it)
    E.wait_lg("idx0")
    for tp in range(4):
        emit_item(addr_item(0, tp))
    for ks in range(2):
        for tp in range(4):
            emit_item(gather_item(0, tp, ks))
    E.wait_vm("raw0")
    for j in range(8):
        emit_item(swap_item(0, j))
    for p in range(4):
        for n in range(2):
            emit_item(perm_item(0, 0, n, p))

    for i in range(NSTEP):
        nxt = i + 1 < NSTEP
        E.c(f"---- step {i}")
        fill = [[] for _ in range(16)]
        for p in range(4):
            for n in range(2):
                fill[p].append(perm_item(i, 1, n, p))
        if nxt:
            grp = (i + 1) // 4 if i + 1 < 24 else 6
            for tp in range(4):
                lst = fill[2 * tp]
                if tp == 0 and ((i + 1) % 4 == 0):
                    lst.append(("wlg", f"idx{grp}"))
                lst.append(addr_item(i + 1, tp))
                fill[2 * tp + 1].append(gather_item(i + 1, tp, 0))
        if i + R < NSTEP:
            ld = bload(i + R)
            fill[4].append(ld[0])
            for j in range(8):
                fill[4 + j // 2].append(ld[1 + j])
        if nxt:
            fill[8].append(("wvm", f"raw{i+1}"))
            for p in range(4):
                fill[8 + 2 * p].append(swap_item(i + 1, 2 * p))
                fill[8 + 2 * p].append(swap_item(i + 1, 2 * p + 1))
                fill[9 + 2 * p].append(perm_item(i + 1, 0, 0, p))
                fill[9 + 2 * p].append(perm_item(i + 1, 0, 1, p))
            for tp in range(4):
                fill[9 + 2 * tp].append(gather_item(i + 1, tp, 1))
            if (i + 1) % 4 == 3:
                grp = (i + 2) // 4 if i + 2 < 24 else 6
                if i + 2 < NSTEP:
                    its = idx_read_items(grp)
                    for k, it in enumerate(its):
                        fill[8 + 2 * k].append(it)
        for m in range(16):
            ks, tp, n = m // 8, (m % 8) // 2, m % 2
            if n == 0:
                E.wait_lg(f"g{i}_{tp}_{ks}")
            cin = "0" if (i == 0 and ks == 0) else acc(tp, n)
            e(f"v_mfma_f32_32x32x16_bf16 {acc(tp,n)}, {afrag(tp,ks)}, {bfrag(ks,n)}, {cin}")
            for it in fill[m]:
                emit_item(it)
    E.c("---- T1: intra-CU reduce")
    e(f"v_and_b32 v{vTmp}, 7, v{vLane}")
    e(f"v_lshlrev_b32 v{vTmp}, 2, v{vTmp}")
    e(f"s_lshl_b32 s{sT0}, s{sMIi}, 5")
    e(f"v_add_u32 v{vTmp+5}, s{sT0}, v{vTmp}")
    E.vm(f"buffer_load_dword v{vFL}, v{vTmp+5}, s[{sDBG}:{sDBG+3}], 0 offen sc1", "flag")
    for tp in range(1, 4):
        e(f"s_add_u32 s{sT0}, s{sW}, {tp}")
        e(f"s_and_b32 s{sT0}, s{sT0}, 3")
        e(f"s_mul_i32 s{sT0}, s{sT0}, 24576")
        e(f"s_add_u32 s{sT0}, s{sT0}, {(tp-1)*8192}")
        e(f"v_add_u32 v{vW+tp-1}, s{sT0}, v{vL16}")
    e(f"s_mul_i32 s{sT0}, s{sW}, 24576")
    e(f"v_add_u32 v{vRD}, s{sT0}, v{vL16}")
    E.wait_all(vm=False, lg=True)
    stamp()
    e("s_barrier")
    e("s_nop 7")
    for tp in range(1, 4):
        for n in range(2):
            for g in range(4):
                a = aACC + ((tp - 1) * 2 + n) * 16 + 4 * g
                E.lg(f"ds_write_b128 v{vW+tp-1}, {ar(a,4)} offset:{(n*4+g)*1024}", "t1w")
    E.wait_all(vm=False, lg=True)
    e("s_barrier")
    for k in range(3):
        for q in range(8):
            E.lg(f"ds_read_b128 {vr(vT1+32*k+4*q,4)}, v{vRD} offset:{k*8192+q*1024}", f"t1r{k}_{q}")
            if len(E.lgq) >= 12:
                pass
    for k in range(3):
        for q in range(8):
            E.wait_lg(f"t1r{k}_{q}") if False else None
    E.wait_all(vm=False, lg=True)
    for k in range(3):
        for q in range(16):
            e(f"v_pk_add_f32 {vr(vACC0+2*q,2)}, {vr(vACC0+2*q,2)}, {vr(vT1+32*k+2*q,2)}")
    stamp()
    E.c("---- T2: publish")
    e(f"s_mov_b32 s{sT3}, 0x01010101")
    e(f"s_mov_b32 s{sCnt}, 0")
    E.wait_vm("flag")
    E.lab("L_FLAGCHK")
    e(f"v_cmp_ne_u32 vcc, s{sT3}, v{vFL}")
    e("s_cbranch_vccz L_FLAGOK")
    e(f"s_add_u32 s{sCnt}, s{sCnt}, 1")
    e(f"s_cmp_gt_u32 s{sCnt}, 200000")
    e("s_cbranch_scc1 L_FLAGOK")
    e("s_sleep 2")
    e(f"buffer_load_dword v{vFL}, v{vTmp+5}, s[{sDBG}:{sDBG+3}], 0 offen sc1")
    e("s_waitcnt vmcnt(0)")
    e("s_branch L_FLAGCHK")
    E.lab("L_FLAGOK")
    e(f"v_lshlrev_b32 v{vST}, 15, v{vB5}")
    e(f"v_lshl_add_u32 v{vST}, v{vR32}, 4, v{vST}")
    e(f"s_lshl_b32 s{sT0}, s{sMIi}, 5")
    e(f"s_lshl_b32 s{sT1}, s{sW}, 3")
    e(f"s_add_u32 s{sT0}, s{sT0}, s{sT1}")
    e(f"s_lshl_b32 s{sT0}, s{sT0}, 15")
    e(f"s_lshl_b32 s{sT1}, s{sP}, 10")
    e(f"s_add_u32 s{sT0}, s{sT0}, s{sT1}")
    for g in range(4):
        e(f"s_add_u32 s{sSt+g}, s{sT0}, {g*65536}")
    for g in range(4):
        for n in range(2):
            E.vm(f"buffer_store_dwordx4 {vr(vACC0+n*16+4*g,4)}, v{vST}, s[{sWS}:{sWS+3}], s{sSt+g} offen offset:{n*512} sc1", "pub")
    E.c("---- T3: gather + finish")
    e(f"s_lshl_b32 s{sT0}, s{sW}, 13")
    e(f"s_add_u32 s{sT0}, s{sT0}, s{sInbox}")
    e(f"s_add_u32 s{sT1}, s{sT0}, 4096")
    e(f"s_mov_b32 s{sCnt}, 0")
    vIN = vT1
    E.lab("L_POLL")
    for k in range(8):
        so = sT0 if k < 4 else sT1
        e(f"buffer_load_dwordx4 {vr(vIN+4*k,4)}, v{vL16}, s[{sWS}:{sWS+3}], s{so} offen offset:{(k%4)*1024} sc1")
    e("s_waitcnt vmcnt(0)")
    E.vmq = []
    vM = vT1 + 32
    e(f"v_max3_u32 v{vM}, v{vIN}, v{vIN+1}, v{vIN+2}")
    for k in range(3, 31, 2):
        e(f"v_max3_u32 v{vM}, v{vM}, v{vIN+k}, v{vIN+k+1}")
    e(f"v_max_u32 v{vM}, v{vM}, v{vIN+31}")
    e(f"v_cmp_eq_u32 vcc, -1, v{vM}")
    e("s_cbranch_vccz L_POLLOK")
    e(f"s_add_u32 s{sCnt}, s{sCnt}, 1")
    e(f"s_cmp_gt_u32 s{sCnt}, 200000")
    e("s_cbranch_scc1 L_POLLOK")
    e("s_sleep 1")
    e("s_branch L_POLL")
    E.lab("L_POLLOK")
    stamp()
    vH = vT1 + 40
    for nl in range(2):
        b = vIN + 16 * nl
        for h in range(2):
            e(f"v_pk_add_f32 {vr(vH+4*nl+2*h,2)}, {vr(b+2*h,2)}, {vr(b+4+2*h,2)}")
        for h in range(2):
            e(f"v_pk_add_f32 {vr(vH+4*nl+2*h,2)}, {vr(vH+4*nl+2*h,2)}, {vr(b+8+2*h,2)}")
        for h in range(2):
            e(f"v_pk_add_f32 {vr(vH+4*nl+2*h,2)}, {vr(vH+4*nl+2*h,2)}, {vr(b+12+2*h,2)}")
    e(f"v_lshlrev_b32 v{vB1a}, 16, v{vB1a}")
    e(f"v_lshlrev_b32 v{vB1b}, 16, v{vB1b}")
    e(f"v_lshlrev_b32 v{vW2a}, 16, v{vW2a}")
    e(f"v_lshlrev_b32 v{vW2b}, 16, v{vW2b}")
    e(f"s_mov_b32 s{sT2}, 0xffff0000")
    vD = vT1 + 48
    vX = vT1 + 52
    for nl in range(2):
        b1r = vB1a if nl == 0 else vB1b
        w2r = vW2a if nl == 0 else vW2b
        for r in range(4):
            h = vH + 4 * nl + r
            e(f"v_cvt_pk_bf16_f32 v{h}, v{h}, v{h}")
            e(f"v_and_b32 v{h}, s{sT2}, v{h}")
            e(f"v_add_f32 v{h}, v{h}, v{b1r}")
            e(f"v_cvt_pk_bf16_f32 v{h}, v{h}, v{h}")
            e(f"v_and_b32 v{h}, s{sT2}, v{h}")
            e(f"v_cmp_lt_f32 vcc, 0, v{h}")
            e("s_nop 1")
            e(f"v_cndmask_b32 v{vX}, 0, 1.0, vcc")
            e(f"v_mul_f32 v{h}, v{h}, v{vX}")
            if nl == 0:
                e(f"v_mul_f32 v{vD+r}, v{h}, v{w2r}")
            else:
                e(f"v_fmac_f32 v{vD+r}, v{h}, v{w2r}")
    e(f"v_lshlrev_b32 v{vXW}, 16, v{vXW}")
    e(f"v_lshlrev_b32 v{vWW}, 16, v{vWW}")
    e(f"v_mul_f32 v{vXW}, v{vXW}, v{vWW}")
    e("s_nop 1")
    regs = [vD, vD + 1, vD + 2, vD + 3, vXW]
    for sh in (1, 2, 4, 8):
        for rg in regs:
            e(f"v_add_f32_dpp v{rg}, v{rg}, v{rg} row_shr:{sh} row_mask:0xf bank_mask:0xf")
    for rg in regs[:4]:
        e(f"v_add_f32_dpp v{rg}, v{rg}, v{rg} row_bcast:15 row_mask:0xa bank_mask:0xf")
    e("s_nop 0")
    for rg in regs[:4]:
        e(f"v_add_f32_dpp v{rg}, v{rg}, v{rg} row_bcast:31 row_mask:0xc bank_mask:0xf")
    e(f"s_lshl_b32 s{sT0}, s{sW}, 4")
    e(f"s_add_u32 s{sT0}, s{sT0}, {FIN}")
    e(f"v_mov_b32 v{vX}, s{sT0}")
    e("s_mov_b64 s[76:77], exec")
    e("s_mov_b32 exec_lo, 0")
    e("s_mov_b32 exec_hi, 0x80000000")
    e(f"ds_write_b128 v{vX}, {vr(vD,4)}")
    e("s_mov_b64 exec, s[76:77]")
    e("s_waitcnt lgkmcnt(0)")
    e("s_barrier")
    e(f"s_cmp_lg_u32 s{sW}, 0")
    e("s_cbranch_scc1 L_TS")
    e(f"v_lshrrev_b32 v{vX}, 4, v{vLane}")
    e(f"v_lshlrev_b32 v{vX}, 2, v{vX}")
    e(f"v_add_u32 v{vX}, {FIN}, v{vX}")
    for k in range(4):
        e(f"ds_read_b32 v{vD+k}, v{vX} offset:{16*k}")
    e(f"v_lshlrev_b32 v{vBW}, 16, v{vBW}")
    e(f"v_lshlrev_b32 v{vB2}, 16, v{vB2}")
    def rnd(r):
        e(f"v_cvt_pk_bf16_f32 v{r}, v{r}, v{r}")
        e(f"v_and_b32 v{r}, s{sT2}, v{r}")
    rnd(vXW)
    e(f"v_add_f32 v{vXW}, v{vXW}, v{vBW}")
    rnd(vXW)
    e("s_waitcnt lgkmcnt(0)")
    e(f"v_add_f32 v{vD}, v{vD}, v{vD+1}")
    e(f"v_add_f32 v{vD+2}, v{vD+2}, v{vD+3}")
    e(f"v_add_f32 v{vD}, v{vD}, v{vD+2}")
    rnd(vD)
    e(f"v_add_f32 v{vD}, v{vD}, v{vB2}")
    rnd(vD)
    e(f"v_add_f32 v{vD}, v{vD}, v{vXW}")
    rnd(vD)
    e(f"v_mul_f32 v{vD}, 0xbfb8aa3b, v{vD}")
    e(f"v_exp_f32 v{vD}, v{vD}")
    e("s_nop 0")
    e(f"v_add_f32 v{vD}, 1.0, v{vD}")
    e(f"v_rcp_f32 v{vD}, v{vD}")
    e("s_nop 0")
    e(f"v_cvt_pk_bf16_f32 v{vD}, v{vD}, v{vD}")
    e("s_mov_b32 exec_lo, 0x80008000")
    e("s_mov_b32 exec_hi, 0x80008000")
    e(f"buffer_store_short v{vD}, v{vRD+1}, s[{sOUT}:{sOUT+3}], 0 offen")
    e("s_mov_b64 exec, -1")
    E.lab("L_TS")
    if TS:
        stamp()
        n = tsn[0]
        e(f"s_lshl_b32 s{sT0}, s2, 2")
        e(f"s_add_u32 s{sT0}, s{sT0}, s{sW}")
        e(f"s_lshl_b32 s{sT0}, s{sT0}, 6")
        e(f"s_add_u32 s{sT0}, s{sT0}, {16<<20}")
        e(f"v_mov_b32 v{vTmp}, 0")
        e("s_mov_b64 exec, 1")
        for k in range(n):
            e(f"s_sub_u32 s{sT1}, s{sTS+2*k}, s{sTS}")
            e(f"v_mov_b32 v{vTmp+1}, s{sT1}")
            e(f"buffer_store_dword v{vTmp+1}, v{vTmp}, s[{sWS}:{sWS+3}], s{sT0} offen offset:{4*k}")
    E.lab("L_END")
    e("s_endpgm")

    out = [HDR + f"; @launch grid=(256,1,1) block=(256,1,1) lds={LDS_TOTAL}",
           '.amdgcn_target "amdgcn-amd-amdhsa--gfx950"', ".text", f".globl {NAME}", ".p2align 8",
           f".type {NAME},@function"]
    out += E.L
    out += ['.section .rodata,"a"', ".p2align 6", f".amdhsa_kernel {NAME}",
            "  .amdhsa_next_free_vgpr 384", "  .amdhsa_next_free_sgpr 102", "  .amdhsa_accum_offset 256",
            "  .amdhsa_group_segment_fixed_size 0", "  .amdhsa_kernarg_size 96", "  .amdhsa_user_sgpr_count 2",
            "  .amdhsa_user_sgpr_kernarg_segment_ptr 1", "  .amdhsa_system_sgpr_workgroup_id_x 1",
            ".end_amdhsa_kernel"]
    return "\n".join(out) + "\n"

if __name__ == "__main__":
    ap = argparse.ArgumentParser()
    ap.add_argument("-o", default="k.s")
    ap.add_argument("-R", type=int, default=6)
    ap.add_argument("--ts", action="store_true")
    a = ap.parse_args()
    open(a.o, "w").write(gen(R=a.R, TS=a.ts))
```

```python
import sys, argparse

NAME = "standalone__deep_cross_wide_deep__recsys_kernel"

HDR = """; Kernarg layout for this problem (96 bytes, ptrs only, base s[0:1]):
"""

class Em:
    def __init__(self):
        self.L = []
        self.vmq = []
        self.lgq = []
    def e(self, s):
        self.L.append("    " + s)
    def lab(self, s):
        self.L.append(s + ":")
    def c(self, s):
        self.L.append("    ; " + s)
    def vm(self, s, tag):
        self.e(s); self.vmq.append(tag)
    def lg(self, s, tag):
        self.e(s); self.lgq.append(tag)
    def wait_vm(self, tag):
        if tag not in self.vmq:
            return
        idx = len(self.vmq) - 1 - self.vmq[::-1].index(tag)
        n = len(self.vmq) - 1 - idx
        self.vmq = self.vmq[idx + 1:]
        self.e(f"s_waitcnt vmcnt({min(n, 63)})")
    def wait_lg(self, tag):
        if tag not in self.lgq:
            return
        idx = len(self.lgq) - 1 - self.lgq[::-1].index(tag)
        n = len(self.lgq) - 1 - idx
        assert n <= 15, n
        self.lgq = self.lgq[idx + 1:]
        self.e(f"s_waitcnt lgkmcnt({n})")
    def wait_all(self, vm=True, lg=True):
        parts = []
        if vm:
            parts.append("vmcnt(0)"); self.vmq = []
        if lg:
            parts.append("lgkmcnt(0)"); self.lgq = []
        self.e("s_waitcnt " + " ".join(parts))

def vr(base, n=1):
    return f"v{base}" if n == 1 else f"v[{base}:{base+n-1}]"
def ar(base, n=1):
    return f"a{base}" if n == 1 else f"a[{base}:{base+n-1}]"

def gen(R=6, TS=False, NSTEP=25, noclear=False, fine=False):
    E = Em()
    e = E.e
    TBL = 0
    IDXB = 81920
    LDS_TOTAL = IDXB + 53248
    FIN = 98304
    sW1, sTB, sIX, sWS, sMI = 4, 8, 12, 16, 20
    sK = 24
    P_IDX, P_TBL, P_XW, P_WW, P_BW, P_W1, P_B1, P_W2, P_B2, P_OUT, P_DBG, P_WS = [24 + 2 * i for i in range(12)]
    sW = 3
    sNI, sS, sMIi, sP = 48, 49, 50, 51
    sT0, sT1, sT2, sT3 = 52, 53, 54, 55
    sBbase, sB24, sBoff = 56, 57, 58
    s80, sSelLo, sSelHi = 59, 60, 61
    sInbox = 62
    sDBG = 64
    sOUT = 68
    sSt = 72
    sCnt = 76
    sTS = 80
    vLane, vC, vB4, vB5, vR32 = 1, 2, 3, 4, 5
    vB0, vB1, vQ = 6, 7, 8
    vL16 = 9
    vTmp = 10
    vIA = 16
    vIA2 = 20
    vGA = 24
    vB1a, vB1b, vW2a, vW2b = 28, 29, 30, 31
    vBF = 32
    vI = 48
    vACC0 = 64
    vXW, vWW, vBW, vB2 = 96, 97, 98, 99
    vFL = 100
    vTD = 101
    vST = 106
    vW = 107
    vRD = 110
    vRAW = 112
    assert vRAW + 16 * R <= 256
    vT1 = 112
    aACC = 0
    aAF = 96

    def acc(tp, n):
        if tp == 0:
            return vr(vACC0 + n * 16, 16)
        return ar(aACC + ((tp - 1) * 2 + n) * 16, 16)
    def afrag(tp, ks):
        return ar(aAF + (tp * 2 + ks) * 4, 4)
    def bfrag(ks, n):
        return vr(vBF + (ks * 2 + n) * 4, 4)
    def raw(i, j, h=None):
        b = vRAW + 16 * (i % R) + 2 * j
        if h is None:
            return vr(b, 2)
        return vr(b + h)

    tsn = [0]
    def stamp():
        if not TS:
            return
        k = tsn[0]; tsn[0] += 1
        e(f"s_memtime s[{sTS+2*k}:{sTS+2*k+1}]")
        E.wait_all(vm=False, lg=True)

    E.lab(NAME)
    e("s_cmp_ge_u32 s2, 256")
    e("s_cbranch_scc1 L_END")
    e(f"s_load_dwordx16 s[24:39], s[0:1], 0")
    e(f"s_load_dwordx8 s[40:47], s[0:1], 64")
    if TS:
        e(f"s_memtime s[{sTS}:{sTS+1}]"); tsn[0] = 1
    e(f"v_and_b32 v{vLane}, 63, v0")
    e(f"v_lshrrev_b32 v{vTmp}, 6, v0")
    e(f"v_and_b32 v{vC}, 15, v0")
    e(f"v_readfirstlane_b32 s{sW}, v{vTmp}")
    e(f"v_bfe_u32 v{vB4}, v0, 4, 1")
    e(f"v_bfe_u32 v{vB5}, v0, 5, 1")
    e(f"v_and_b32 v{vR32}, 31, v0")
    e(f"s_and_b32 s{sNI}, s2, 7")
    e(f"s_lshr_b32 s{sT0}, s2, 3")
    e(f"s_and_b32 s{sS}, s{sT0}, 3")
    e(f"s_lshr_b32 s{sMIi}, s{sT0}, 2")
    e(f"s_lshl_b32 s{sP}, s{sNI}, 2")
    e(f"s_add_u32 s{sP}, s{sP}, s{sS}")
    e(f"s_movk_i32 s{s80}, 80")
    e(f"s_mov_b32 s{sSelLo}, 0x05040100")
    e(f"s_mov_b32 s{sSelHi}, 0x07060302")
    e(f"v_lshlrev_b32 v{vB0}, 14, v{vB4}")
    e(f"v_lshl_add_u32 v{vB0}, v{vB5}, 13, v{vB0}")
    e(f"v_lshl_add_u32 v{vB0}, v{vC}, 3, v{vB0}")
    e(f"v_add_u32 v{vB1}, 0x1000, v{vB0}")
    e(f"v_lshlrev_b32 v{vQ}, 4, v{vB5}")
    e(f"v_lshlrev_b32 v{vL16}, 4, v{vLane}")
    e(f"s_mov_b32 s{sT0}, 52429")
    for b in range(5):
        e(f"v_add_u32 v{vTmp}, {64*b}, v{vLane}")
        e(f"v_mul_u32_u24 v{vTmp+1}, s{sT0}, v{vTmp}")
        e(f"v_lshrrev_b32 v{vTmp+1}, 18, v{vTmp+1}")
        e(f"v_mul_u32_u24 v{vTmp+2}, 5, v{vTmp+1}")
        e(f"v_sub_u32 v{vTmp+2}, v{vTmp}, v{vTmp+2}")
        e(f"v_min_u32 v{vTmp+2}, 3, v{vTmp+2}")
        e(f"v_lshlrev_b32 v{vTmp+2}, 4, v{vTmp+2}")
        e(f"v_lshl_add_u32 v{vTD+b}, v{vTmp+1}, 8, v{vTmp+2}")
    e(f"s_movk_i32 s{sT1}, 400")
    e(f"v_mul_u32_u24 v{vTmp}, s{sT1}, v{vR32}")
    for tp in range(4):
        e(f"s_add_u32 s{sT2}, s{sW}, {tp}")
        e(f"s_and_b32 s{sT2}, s{sT2}, 3")
        e(f"s_mul_i32 s{sT2}, s{sT2}, 12800")
        e(f"s_lshl_b32 s{sT3}, s{sW}, 4")
        e(f"s_add_u32 s{sT2}, s{sT2}, s{sT3}")
        e(f"s_add_u32 s{sT2}, s{sT2}, {IDXB}")
        e(f"v_add_u32 v{vIA+tp}, s{sT2}, v{vTmp}")
        e(f"s_mul_i32 s{sT3}, s{sW}, 12")
        e(f"s_sub_u32 s{sT2}, s{sT2}, s{sT3}")
        e(f"s_add_u32 s{sT2}, s{sT2}, 384")
        e(f"v_add_u32 v{vIA2+tp}, s{sT2}, v{vTmp}")
    e(f"s_lshl_b32 s{sT0}, s{sS}, 15")
    e(f"s_lshl_b32 s{sT1}, s{sNI}, 7")
    e(f"s_add_u32 s{sT0}, s{sT0}, s{sT1}")
    e(f"s_lshl_b32 s{sT1}, s{sW}, 19")
    e(f"s_add_u32 s{sBbase}, s{sT0}, s{sT1}")
    e(f"s_add_u32 s{sT1}, s{sW}, 96")
    e(f"s_lshl_b32 s{sT1}, s{sT1}, 17")
    e(f"s_add_u32 s{sB24}, s{sT0}, s{sT1}")
    e(f"s_lshl_b32 s{sT0}, s{sMIi}, 5")
    e(f"s_add_u32 s{sT0}, s{sT0}, s{sP}")
    e(f"s_lshl_b32 s{sInbox}, s{sT0}, 15")
    for k in range(4):
        e(f"v_mov_b32 v{vACC0+k}, -1")
    e("s_waitcnt lgkmcnt(0)")
    stamp()
    def srd(d, p, nbytes, addoff=None):
        if addoff is None:
            e(f"s_mov_b32 s{d}, s{p}")
            e(f"s_and_b32 s{d+1}, s{p+1}, 0xffff")
        else:
            e(f"s_add_u32 s{d}, s{p}, s{addoff}")
            e(f"s_addc_u32 s{d+1}, s{p+1}, 0")
            e(f"s_and_b32 s{d+1}, s{d+1}, 0xffff")
        e(f"s_mov_b32 s{d+2}, {nbytes}")
        e(f"s_mov_b32 s{d+3}, 0x00020000")
    srd(sWS, P_WS, 8 << 20 if not TS else 32 << 20)
    srd(sTB, P_TBL, 256000)
    e(f"s_mul_i32 s{sT0}, s{sMIi}, 51200")
    srd(sIX, P_IDX, 51200, addoff=sT0)
    srd(sW1, P_W1, 13107200)
    srd(sDBG, P_DBG, 256)
    srd(sOUT, P_OUT, 2048)
    e(f"s_lshl_b32 s{sT0}, s{sW}, 13")
    e(f"s_add_u32 s{sT0}, s{sT0}, s{sInbox}")
    e(f"s_add_u32 s{sT1}, s{sT0}, 4096")
    for k in range(8):
        so = sT0 if k < 4 else sT1
        if not noclear:
            E.vm(f"buffer_store_dwordx4 {vr(vACC0,4)}, v{vL16}, s[{sWS}:{sWS+3}], s{so} offen offset:{(k%4)*1024} sc1", "clear")
    e(f"s_mul_i32 s{sT0}, s{sW}, 20480")
    e(f"s_lshl_b32 s{sT1}, s{sW}, 16")
    e(f"s_lshl_b32 s{sT2}, s{sS}, 6")
    e(f"s_add_u32 s{sT1}, s{sT1}, s{sT2}")
    for aa in range(4):
        for b in range(5):
            e(f"s_add_u32 m0, s{sT0}, {(aa*5+b)*1024}")
            if b == 0 and aa > 0:
                e(f"s_add_u32 s{sT1}, s{sT1}, 16384")
            else:
                e("s_nop 0")
            E.vm(f"buffer_load_dwordx4 v{vTD+b}, s[{sTB}:{sTB+3}], s{sT1} offen lds", "tbl")
    e(f"s_mul_i32 s{sT1}, s{sW}, 13312")
    e(f"s_add_u32 s{sT0}, s{sT1}, {IDXB}")
    for k in range(13):
        if k % 4 == 0:
            e(f"s_add_u32 m0, s{sT0}, {k*1024}")
            e(f"s_add_u32 s{sT2}, s{sT1}, {k*1024}")
        E.vm(f"buffer_load_dwordx4 v{vL16}, s[{sIX}:{sIX+3}], s{sT2} offen offset:{(k%4)*1024} lds", "idx")
    def bload(i):
        out = []
        if i < 24:
            cst = (16 * (i // 4) + i % 4) * 131072
            out.append(("s", f"s_add_u32 s{sBoff}, s{sBbase}, {cst}"))
        else:
            out.append(("s", f"s_mov_b32 s{sBoff}, s{sB24}"))
        for j in range(8):
            vo = vB0 if j < 4 else vB1
            out.append(("vm", f"buffer_load_dwordx2 {raw(i,j)}, v{vo}, s[{sW1}:{sW1+3}], s{sBoff} offen offset:{(j%4)*1024}", f"raw{i}"))
        return out
    def emit_item(it):
        if it[0] == "s" or it[0] == "v":
            e(it[1])
        elif it[0] == "vm":
            E.vm(it[1], it[2])
        elif it[0] == "lg":
            E.lg(it[1], it[2])
        elif it[0] == "wvm":
            E.wait_vm(it[1])
        elif it[0] == "wlg":
            E.wait_lg(it[1])
        else:
            raise ValueError(it)
    for i in range(min(R, NSTEP)):
        for it in bload(i):
            emit_item(it)
    e(f"v_lshlrev_b32 v{vTmp}, 2, v{vC}")
    e(f"v_lshl_add_u32 v{vTmp}, v{vB4}, 1, v{vTmp}")
    e(f"v_add_u32 v{vTmp}, v{vTmp}, v{vB5}")
    e(f"s_lshl_b32 s{sT0}, s{sW}, 7")
    e(f"v_add_u32 v{vTmp}, s{sT0}, v{vTmp}")
    e(f"v_lshlrev_b32 v{vTmp}, 1, v{vTmp}")
    def srd_mi(p, nbytes):
        srd(sMI, p, nbytes)
    srd_mi(P_B1, 1024)
    E.vm(f"buffer_load_ushort v{vB1a}, v{vTmp}, s[{sMI}:{sMI+3}], 0 offen", "small")
    E.vm(f"buffer_load_ushort v{vB1b}, v{vTmp}, s[{sMI}:{sMI+3}], 0 offen offset:128", "small")
    srd(sTS + 16 if False else 76, P_W2, 1024)
    E.vm(f"buffer_load_ushort v{vW2a}, v{vTmp}, s[76:79], 0 offen", "small")
    E.vm(f"buffer_load_ushort v{vW2b}, v{vTmp}, s[76:79], 0 offen offset:128", "small")
    e(f"s_lshl_b32 s{sT0}, s{sMIi}, 7")
    e(f"s_lshl_b32 s{sT1}, s{sP}, 2")
    e(f"s_add_u32 s{sT0}, s{sT0}, s{sT1}")
    e(f"v_lshrrev_b32 v{vTmp+1}, 4, v{vLane}")
    e(f"v_add_u32 v{vTmp+1}, s{sT0}, v{vTmp+1}")
    e(f"v_lshlrev_b32 v{vRD}, 1, v{vTmp+1}")
    e(f"v_mov_b32 v{vRD+1}, v{vRD}")
    e(f"v_mul_u32_u24 v{vTmp+1}, 13, v{vTmp+1}")
    e(f"v_add_u32 v{vTmp+1}, v{vTmp+1}, v{vC}")
    e(f"v_lshlrev_b32 v{vTmp+1}, 1, v{vTmp+1}")
    e(f"v_mov_b32 v{vTmp+2}, 0x7fffff00")
    e(f"v_cmp_gt_u32 vcc, 13, v{vC}")
    e("s_nop 1")
    e(f"v_cndmask_b32 v{vTmp+1}, v{vTmp+2}, v{vTmp+1}, vcc")
    e(f"v_lshlrev_b32 v{vTmp+2}, 1, v{vC}")
    srd(sMI, P_XW, 26624)
    E.vm(f"buffer_load_ushort v{vXW}, v{vTmp+1}, s[{sMI}:{sMI+3}], 0 offen", "small")
    srd(sMI, P_WW, 26)
    E.vm(f"buffer_load_ushort v{vWW}, v{vTmp+2}, s[{sMI}:{sMI+3}], 0 offen", "small")
    e(f"v_mov_b32 v{vTmp+3}, 0")
    srd(sMI, P_BW, 2)
    E.vm(f"buffer_load_ushort v{vBW}, v{vTmp+3}, s[{sMI}:{sMI+3}], 0 offen", "small")
    srd(sMI, P_B2, 2)
    E.vm(f"buffer_load_ushort v{vB2}, v{vTmp+3}, s[{sMI}:{sMI+3}], 0 offen", "small")
    if fine:
        stamp()
        E.wait_vm("clear")
        stamp()
        E.wait_vm("tbl")
        stamp()
    E.wait_vm("idx")
    if fine:
        stamp()
    e("s_barrier")
    stamp()
    e(f"s_cmp_lg_u32 s{sW}, 0")
    e("s_cbranch_scc1 L_NOFLAG")
    e(f"s_lshl_b32 s{sT0}, s{sMIi}, 5")
    e(f"s_add_u32 s{sT0}, s{sT0}, s{sP}")
    e(f"v_mov_b32 v{vTmp}, s{sT0}")
    e(f"v_mov_b32 v{vTmp+1}, 1")
    e("s_mov_b64 s[76:77], exec")
    e("s_mov_b64 exec, 1")
    e(f"buffer_store_byte v{vTmp+1}, v{vTmp}, s[{sDBG}:{sDBG+3}], 0 offen sc1")
    e("s_mov_b64 exec, s[76:77]")
    E.lab("L_NOFLAG")

    def idx_read_items(group):
        out = []
        if group < 6:
            for tp in range(4):
                out.append(("lg", f"ds_read_b128 {vr(vI+4*tp,4)}, v{vIA+tp} offset:{group*64}", f"idx{group}"))
        else:
            for tp in range(4):
                out.append(("lg", f"ds_read_b32 v{vI+4*tp}, v{vIA2+tp}", f"idx{group}"))
        return out
    def addr_item(i, tp):
        comp = i % 4 if i < 24 else 0
        return ("v", f"v_mad_u32_u24 v{vGA+tp}, v{vI+4*tp+comp}, s{s80}, v{vQ}")
    def gather_item(i, tp, ks):
        return ("lg", f"ds_read_b128 {afrag(tp,ks)}, v{vGA+tp} offset:{TBL + 32*ks}", f"g{i}_{tp}_{ks}")
    def swap_item(i, j):
        return ("v", f"v_permlane16_swap_b32 {raw(i,j,0)}, {raw(i,j,1)}")
    def perm_item(i, ks, n, p):
        sel = sSelLo if n == 0 else sSelHi
        return ("v", f"v_perm_b32 v{vBF+(ks*2+n)*4+p}, {raw(i,2*p+1,ks)}, {raw(i,2*p,ks)}, s{sel}")

    for it in idx_read_items(0):
        emit_item(it)
    E.wait_lg("idx0")
    for tp in range(4):
        emit_item(addr_item(0, tp))
    for ks in range(2):
        for tp in range(4):
            emit_item(gather_item(0, tp, ks))
    E.wait_vm("raw0")
    for j in range(8):
        emit_item(swap_item(0, j))
    for p in range(4):
        for n in range(2):
            emit_item(perm_item(0, 0, n, p))

    for i in range(NSTEP):
        nxt = i + 1 < NSTEP
        E.c(f"---- step {i}")
        fill = [[] for _ in range(16)]
        for p in range(4):
            for n in range(2):
                fill[p].append(perm_item(i, 1, n, p))
        if nxt:
            grp = (i + 1) // 4 if i + 1 < 24 else 6
            for tp in range(4):
                lst = fill[2 * tp]
                if tp == 0 and ((i + 1) % 4 == 0):
                    lst.append(("wlg", f"idx{grp}"))
                lst.append(addr_item(i + 1, tp))
                fill[2 * tp + 1].append(gather_item(i + 1, tp, 0))
        if i + R < NSTEP:
            ld = bload(i + R)
            fill[4].append(ld[0])
            for j in range(8):
                fill[4 + j // 2].append(ld[1 + j])
        if nxt:
            fill[8].append(("wvm", f"raw{i+1}"))
            for p in range(4):
                fill[8 + 2 * p].append(swap_item(i + 1, 2 * p))
                fill[8 + 2 * p].append(swap_item(i + 1, 2 * p + 1))
                fill[9 + 2 * p].append(perm_item(i + 1, 0, 0, p))
                fill[9 + 2 * p].append(perm_item(i + 1, 0, 1, p))
            for tp in range(4):
                fill[9 + 2 * tp].append(gather_item(i + 1, tp, 1))
            if (i + 1) % 4 == 3:
                grp = (i + 2) // 4 if i + 2 < 24 else 6
                if i + 2 < NSTEP:
                    its = idx_read_items(grp)
                    for k, it in enumerate(its):
                        fill[8 + 2 * k].append(it)
        for m in range(16):
            ks, tp, n = m // 8, (m % 8) // 2, m % 2
            if n == 0:
                E.wait_lg(f"g{i}_{tp}_{ks}")
            cin = "0" if (i == 0 and ks == 0) else acc(tp, n)
            e(f"v_mfma_f32_32x32x16_bf16 {acc(tp,n)}, {afrag(tp,ks)}, {bfrag(ks,n)}, {cin}")
            for it in fill[m]:
                emit_item(it)
    E.c("---- T1: intra-CU reduce")
    e(f"v_and_b32 v{vTmp}, 7, v{vLane}")
    e(f"v_lshlrev_b32 v{vTmp}, 2, v{vTmp}")
    e(f"s_lshl_b32 s{sT0}, s{sMIi}, 5")
    e(f"v_add_u32 v{vTmp+5}, s{sT0}, v{vTmp}")
    E.vm(f"buffer_load_dword v{vFL}, v{vTmp+5}, s[{sDBG}:{sDBG+3}], 0 offen sc1", "flag")
    for tp in range(1, 4):
        e(f"s_add_u32 s{sT0}, s{sW}, {tp}")
        e(f"s_and_b32 s{sT0}, s{sT0}, 3")
        e(f"s_mul_i32 s{sT0}, s{sT0}, 24576")
        e(f"s_add_u32 s{sT0}, s{sT0}, {(tp-1)*8192}")
        e(f"v_add_u32 v{vW+tp-1}, s{sT0}, v{vL16}")
    e(f"s_mul_i32 s{sT0}, s{sW}, 24576")
    e(f"v_add_u32 v{vRD}, s{sT0}, v{vL16}")
    E.wait_all(vm=False, lg=True)
    stamp()
    e("s_barrier")
    e("s_nop 7")
    for tp in range(1, 4):
        for n in range(2):
            for g in range(4):
                a = aACC + ((tp - 1) * 2 + n) * 16 + 4 * g
                E.lg(f"ds_write_b128 v{vW+tp-1}, {ar(a,4)} offset:{(n*4+g)*1024}", "t1w")
    E.wait_all(vm=False, lg=True)
    e("s_barrier")
    for k in range(3):
        for q in range(8):
            E.lg(f"ds_read_b128 {vr(vT1+32*k+4*q,4)}, v{vRD} offset:{k*8192+q*1024}", f"t1r{k}_{q}")
            if len(E.lgq) >= 12:
                pass
    for k in range(3):
        for q in range(8):
            E.wait_lg(f"t1r{k}_{q}") if False else None
    E.wait_all(vm=False, lg=True)
    for k in range(3):
        for q in range(16):
            e(f"v_pk_add_f32 {vr(vACC0+2*q,2)}, {vr(vACC0+2*q,2)}, {vr(vT1+32*k+2*q,2)}")
    stamp()
    E.c("---- T2: publish")
    e(f"s_mov_b32 s{sT3}, 0x01010101")
    e(f"s_mov_b32 s{sCnt}, 0")
    E.wait_vm("flag")
    E.lab("L_FLAGCHK")
    e(f"v_cmp_ne_u32 vcc, s{sT3}, v{vFL}")
    e("s_cbranch_vccz L_FLAGOK")
    e(f"s_add_u32 s{sCnt}, s{sCnt}, 1")
    e(f"s_cmp_gt_u32 s{sCnt}, 200000")
    e("s_cbranch_scc1 L_FLAGOK")
    e("s_sleep 2")
    e(f"buffer_load_dword v{vFL}, v{vTmp+5}, s[{sDBG}:{sDBG+3}], 0 offen sc1")
    e("s_waitcnt vmcnt(0)")
    e("s_branch L_FLAGCHK")
    E.lab("L_FLAGOK")
    e(f"v_lshlrev_b32 v{vST}, 15, v{vB5}")
    e(f"v_lshl_add_u32 v{vST}, v{vR32}, 4, v{vST}")
    e(f"s_lshl_b32 s{sT0}, s{sMIi}, 5")
    e(f"s_lshl_b32 s{sT1}, s{sW}, 3")
    e(f"s_add_u32 s{sT0}, s{sT0}, s{sT1}")
    e(f"s_lshl_b32 s{sT0}, s{sT0}, 15")
    e(f"s_lshl_b32 s{sT1}, s{sP}, 10")
    e(f"s_add_u32 s{sT0}, s{sT0}, s{sT1}")
    for g in range(4):
        e(f"s_add_u32 s{sSt+g}, s{sT0}, {g*65536}")
    for g in range(4):
        for n in range(2):
            E.vm(f"buffer_store_dwordx4 {vr(vACC0+n*16+4*g,4)}, v{vST}, s[{sWS}:{sWS+3}], s{sSt+g} offen offset:{n*512} sc1", "pub")
    E.c("---- T3: gather + finish")
    e(f"s_lshl_b32 s{sT0}, s{sW}, 13")
    e(f"s_add_u32 s{sT0}, s{sT0}, s{sInbox}")
    e(f"s_add_u32 s{sT1}, s{sT0}, 4096")
    e(f"s_mov_b32 s{sCnt}, 0")
    vIN = vT1
    E.lab("L_POLL")
    for k in range(8):
        so = sT0 if k < 4 else sT1
        e(f"buffer_load_dwordx4 {vr(vIN+4*k,4)}, v{vL16}, s[{sWS}:{sWS+3}], s{so} offen offset:{(k%4)*1024} sc1")
    e("s_waitcnt vmcnt(0)")
    E.vmq = []
    vM = vT1 + 32
    e(f"v_max3_u32 v{vM}, v{vIN}, v{vIN+1}, v{vIN+2}")
    for k in range(3, 31, 2):
        e(f"v_max3_u32 v{vM}, v{vM}, v{vIN+k}, v{vIN+k+1}")
    e(f"v_max_u32 v{vM}, v{vM}, v{vIN+31}")
    e(f"v_cmp_eq_u32 vcc, -1, v{vM}")
    e("s_cbranch_vccz L_POLLOK")
    e(f"s_add_u32 s{sCnt}, s{sCnt}, 1")
    e(f"s_cmp_gt_u32 s{sCnt}, 200000")
    e("s_cbranch_scc1 L_POLLOK")
    e("s_sleep 1")
    e("s_branch L_POLL")
    E.lab("L_POLLOK")
    stamp()
    vH = vT1 + 40
    for nl in range(2):
        b = vIN + 16 * nl
        for h in range(2):
            e(f"v_pk_add_f32 {vr(vH+4*nl+2*h,2)}, {vr(b+2*h,2)}, {vr(b+4+2*h,2)}")
        for h in range(2):
            e(f"v_pk_add_f32 {vr(vH+4*nl+2*h,2)}, {vr(vH+4*nl+2*h,2)}, {vr(b+8+2*h,2)}")
        for h in range(2):
            e(f"v_pk_add_f32 {vr(vH+4*nl+2*h,2)}, {vr(vH+4*nl+2*h,2)}, {vr(b+12+2*h,2)}")
    e(f"v_lshlrev_b32 v{vB1a}, 16, v{vB1a}")
    e(f"v_lshlrev_b32 v{vB1b}, 16, v{vB1b}")
    e(f"v_lshlrev_b32 v{vW2a}, 16, v{vW2a}")
    e(f"v_lshlrev_b32 v{vW2b}, 16, v{vW2b}")
    e(f"s_mov_b32 s{sT2}, 0xffff0000")
    vD = vT1 + 48
    vX = vT1 + 52
    for nl in range(2):
        b1r = vB1a if nl == 0 else vB1b
        w2r = vW2a if nl == 0 else vW2b
        for r in range(4):
            h = vH + 4 * nl + r
            e(f"v_cvt_pk_bf16_f32 v{h}, v{h}, v{h}")
            e(f"v_and_b32 v{h}, s{sT2}, v{h}")
            e(f"v_add_f32 v{h}, v{h}, v{b1r}")
            e(f"v_cvt_pk_bf16_f32 v{h}, v{h}, v{h}")
            e(f"v_and_b32 v{h}, s{sT2}, v{h}")
            e(f"v_cmp_lt_f32 vcc, 0, v{h}")
            e("s_nop 1")
            e(f"v_cndmask_b32 v{vX}, 0, 1.0, vcc")
            e(f"v_mul_f32 v{h}, v{h}, v{vX}")
            if nl == 0:
                e(f"v_mul_f32 v{vD+r}, v{h}, v{w2r}")
            else:
                e(f"v_fmac_f32 v{vD+r}, v{h}, v{w2r}")
    e(f"v_lshlrev_b32 v{vXW}, 16, v{vXW}")
    e(f"v_lshlrev_b32 v{vWW}, 16, v{vWW}")
    e(f"v_mul_f32 v{vXW}, v{vXW}, v{vWW}")
    e("s_nop 1")
    regs = [vD, vD + 1, vD + 2, vD + 3, vXW]
    for sh in (1, 2, 4, 8):
        for rg in regs:
            e(f"v_add_f32_dpp v{rg}, v{rg}, v{rg} row_shr:{sh} row_mask:0xf bank_mask:0xf")
    for rg in regs[:4]:
        e(f"v_add_f32_dpp v{rg}, v{rg}, v{rg} row_bcast:15 row_mask:0xa bank_mask:0xf")
    e("s_nop 0")
    for rg in regs[:4]:
        e(f"v_add_f32_dpp v{rg}, v{rg}, v{rg} row_bcast:31 row_mask:0xc bank_mask:0xf")
    e(f"s_lshl_b32 s{sT0}, s{sW}, 4")
    e(f"s_add_u32 s{sT0}, s{sT0}, {FIN}")
    e(f"v_mov_b32 v{vX}, s{sT0}")
    e("s_mov_b64 s[76:77], exec")
    e("s_mov_b32 exec_lo, 0")
    e("s_mov_b32 exec_hi, 0x80000000")
    e(f"ds_write_b128 v{vX}, {vr(vD,4)}")
    e("s_mov_b64 exec, s[76:77]")
    e("s_waitcnt lgkmcnt(0)")
    e("s_barrier")
    e(f"s_cmp_lg_u32 s{sW}, 0")
    e("s_cbranch_scc1 L_TS")
    e(f"v_lshrrev_b32 v{vX}, 4, v{vLane}")
    e(f"v_lshlrev_b32 v{vX}, 2, v{vX}")
    e(f"v_add_u32 v{vX}, {FIN}, v{vX}")
    for k in range(4):
        e(f"ds_read_b32 v{vD+k}, v{vX} offset:{16*k}")
    e(f"v_lshlrev_b32 v{vBW}, 16, v{vBW}")
    e(f"v_lshlrev_b32 v{vB2}, 16, v{vB2}")
    def rnd(r):
        e(f"v_cvt_pk_bf16_f32 v{r}, v{r}, v{r}")
        e(f"v_and_b32 v{r}, s{sT2}, v{r}")
    rnd(vXW)
    e(f"v_add_f32 v{vXW}, v{vXW}, v{vBW}")
    rnd(vXW)
    e("s_waitcnt lgkmcnt(0)")
    e(f"v_add_f32 v{vD}, v{vD}, v{vD+1}")
    e(f"v_add_f32 v{vD+2}, v{vD+2}, v{vD+3}")
    e(f"v_add_f32 v{vD}, v{vD}, v{vD+2}")
    rnd(vD)
    e(f"v_add_f32 v{vD}, v{vD}, v{vB2}")
    rnd(vD)
    e(f"v_add_f32 v{vD}, v{vD}, v{vXW}")
    rnd(vD)
    e(f"v_mul_f32 v{vD}, 0xbfb8aa3b, v{vD}")
    e(f"v_exp_f32 v{vD}, v{vD}")
    e("s_nop 0")
    e(f"v_add_f32 v{vD}, 1.0, v{vD}")
    e(f"v_rcp_f32 v{vD}, v{vD}")
    e("s_nop 0")
    e(f"v_cvt_pk_bf16_f32 v{vD}, v{vD}, v{vD}")
    e("s_mov_b32 exec_lo, 0x80008000")
    e("s_mov_b32 exec_hi, 0x80008000")
    e(f"buffer_store_short v{vD}, v{vRD+1}, s[{sOUT}:{sOUT+3}], 0 offen")
    e("s_mov_b64 exec, -1")
    E.lab("L_TS")
    if TS:
        stamp()
        n = tsn[0]
        e(f"s_lshl_b32 s{sT0}, s2, 2")
        e(f"s_add_u32 s{sT0}, s{sT0}, s{sW}")
        e(f"s_lshl_b32 s{sT0}, s{sT0}, 6")
        e(f"s_add_u32 s{sT0}, s{sT0}, {16<<20}")
        e(f"v_mov_b32 v{vTmp}, 0")
        e("s_mov_b64 exec, 1")
        for k in range(n):
            e(f"s_sub_u32 s{sT1}, s{sTS+2*k}, s{sTS}")
            e(f"v_mov_b32 v{vTmp+1}, s{sT1}")
            e(f"buffer_store_dword v{vTmp+1}, v{vTmp}, s[{sWS}:{sWS+3}], s{sT0} offen offset:{4*k}")
    E.lab("L_END")
    e("s_endpgm")

    out = [HDR + f"; @launch grid=(256,1,1) block=(256,1,1) lds={LDS_TOTAL}",
           '.amdgcn_target "amdgcn-amd-amdhsa--gfx950"', ".text", f".globl {NAME}", ".p2align 8",
           f".type {NAME},@function"]
    out += E.L
    out += ['.section .rodata,"a"', ".p2align 6", f".amdhsa_kernel {NAME}",
            "  .amdhsa_next_free_vgpr 384", "  .amdhsa_next_free_sgpr 102", "  .amdhsa_accum_offset 256",
            "  .amdhsa_group_segment_fixed_size 0", "  .amdhsa_kernarg_size 96", "  .amdhsa_user_sgpr_count 2",
            "  .amdhsa_user_sgpr_kernarg_segment_ptr 1", "  .amdhsa_system_sgpr_workgroup_id_x 1",
            ".end_amdhsa_kernel"]
    return "\n".join(out) + "\n"

if __name__ == "__main__":
    ap = argparse.ArgumentParser()
    ap.add_argument("-o", default="k.s")
    ap.add_argument("-R", type=int, default=6)
    ap.add_argument("--ts", action="store_true")
    ap.add_argument("--noclear", action="store_true")
    ap.add_argument("--fine", action="store_true")
    a = ap.parse_args()
    open(a.o, "w").write(gen(R=a.R, TS=a.ts, noclear=a.noclear, fine=a.fine))
```

```python
import sys, argparse
from gen import Em, vr, ar, HDR, NAME

def gen(R=6, TS=False, NSTEP=25, touch=True, fine=False, npre=3, pro=False, early=False, sleep=4, loopstamp=False, tail=False):
    E = Em()
    e = E.e
    TBL = 0
    IDXB = 81920
    IDXL = IDXB + 6 * 8192
    LDS_TOTAL = IDXL + 2048
    FIN = 98304
    sW1, sTB, sIX, sWS, sMI = 4, 8, 12, 16, 20
    P_IDX, P_TBL, P_XW, P_WW, P_BW, P_W1, P_B1, P_W2, P_B2, P_OUT, P_DBG, P_WS = [24 + 2 * i for i in range(12)]
    sW = 3
    sNI, sS, sMIi, sP = 48, 49, 50, 51
    sT0, sT1, sT2, sT3 = 52, 53, 54, 55
    sBbase, sB24, sBoff = 56, 57, 58
    s80 = 59
    sX = 60
    sInbox = 62
    sDBG = 64
    sOUT = 68
    sSt = 72
    sCnt = 76
    sIXF = 76
    sTS = 80
    vLane, vC, vB4, vB5, vR32 = 1, 2, 3, 4, 5
    vB0, vB1, vQ = 6, 7, 8
    vL16 = 9
    vTmp = 10
    vIA = 16
    vIA2 = 20
    vGA = 24
    vB1a, vB1b, vW2a, vW2b = 28, 29, 30, 31
    vBF = 32
    vI = 48
    vACC0 = 64
    vXW, vWW, vBW, vB2 = 96, 97, 98, 99
    vFL = 100
    vDT = 101
    vSel = 105
    vST = 106
    vW = 107
    vRD = 110
    vOUTO = 111
    vTag = 246
    vRAW = 112
    assert vRAW + 16 * R <= 240
    vT1 = 112
    vTo, vIXl, vIXo, vTBo, vTBw = 241, 242, 243, 244, 245
    vTo16 = 240
    vTouch = 250
    aACC = 0
    aAF = 96
    aTB = 0

    def acc(tp, n):
        if tp == 0:
            return vr(vACC0 + n * 16, 16)
        return ar(aACC + ((tp - 1) * 2 + n) * 16, 16)
    def afrag(tp, ks):
        return ar(aAF + (tp * 2 + ks) * 4, 4)
    def bfrag(ks, n):
        return vr(vBF + (ks * 2 + n) * 4, 4)
    def raw(i, jj, cp=None):
        b = vRAW + 16 * (i % R) + 4 * jj
        if cp is None:
            return vr(b, 4)
        return vr(b + cp)

    tsn = [0]
    nostamp = [False]
    def stamp():
        if not TS or nostamp[0]:
            return
        k = tsn[0]; tsn[0] += 1
        e(f"s_memtime s[{sTS+2*k}:{sTS+2*k+1}]")
        E.wait_all(vm=False, lg=True)

    def emit_item(it):
        if it is None:
            return
        if it[0] == "s" or it[0] == "v":
            e(it[1])
        elif it[0] == "vm":
            E.vm(it[1], it[2])
        elif it[0] == "lg":
            E.lg(it[1], it[2])
        elif it[0] == "wvm":
            E.wait_vm(it[1])
        elif it[0] == "wlg":
            E.wait_lg(it[1])
        else:
            raise ValueError(it)

    def srd(d, p, nbytes, addoff=None):
        if addoff is None:
            e(f"s_mov_b32 s{d}, s{p}")
            e(f"s_and_b32 s{d+1}, s{p+1}, 0xffff")
        else:
            e(f"s_add_u32 s{d}, s{p}, s{addoff}")
            e(f"s_addc_u32 s{d+1}, s{p+1}, 0")
            e(f"s_and_b32 s{d+1}, s{d+1}, 0xffff")
        e(f"s_mov_b32 s{d+2}, {nbytes}")
        e(f"s_mov_b32 s{d+3}, 0x00020000")

    E.lab(NAME)
    e("s_cmp_ge_u32 s2, 256")
    e("s_cbranch_scc1 L_END")
    e(f"s_load_dwordx16 s[24:39], s[0:1], 0")
    e(f"s_load_dwordx8 s[40:47], s[0:1], 64")
    if TS:
        e(f"s_memtime s[{sTS}:{sTS+1}]"); tsn[0] = 1
    e(f"v_and_b32 v{vLane}, 63, v0")
    e(f"v_lshrrev_b32 v{vTmp}, 6, v0")
    e(f"v_and_b32 v{vC}, 15, v0")
    e(f"v_readfirstlane_b32 s{sW}, v{vTmp}")
    e(f"v_bfe_u32 v{vB4}, v0, 4, 1")
    e(f"v_bfe_u32 v{vB5}, v0, 5, 1")
    e(f"v_and_b32 v{vR32}, 31, v0")
    e(f"s_and_b32 s{sNI}, s2, 7")
    e(f"s_lshr_b32 s{sT0}, s2, 3")
    e(f"s_and_b32 s{sS}, s{sT0}, 3")
    e(f"s_lshr_b32 s{sMIi}, s{sT0}, 2")
    e(f"s_lshl_b32 s{sX}, s{sT0}, 2")
    e(f"s_add_u32 s{sX}, s{sX}, s{sW}")
    e(f"s_lshl_b32 s{sP}, s{sNI}, 2")
    e(f"s_add_u32 s{sP}, s{sP}, s{sS}")
    e(f"s_movk_i32 s{s80}, 80")
    e(f"s_lshl_b32 s{sT0}, s{sS}, 15")
    e(f"s_lshl_b32 s{sT1}, s{sNI}, 7")
    e(f"s_add_u32 s{sT0}, s{sT0}, s{sT1}")
    e(f"s_lshl_b32 s{sT1}, s{sW}, 19")
    e(f"s_add_u32 s{sBbase}, s{sT0}, s{sT1}")
    e(f"s_add_u32 s{sT1}, s{sW}, 96")
    e(f"s_lshl_b32 s{sT1}, s{sT1}, 17")
    e(f"s_add_u32 s{sB24}, s{sT0}, s{sT1}")
    e(f"v_mov_b32 v{vTmp+5}, 0x7ffffff0")
    e(f"v_lshlrev_b32 v{vTmp}, 7, v{vLane}")
    e(f"v_cmp_gt_u32 vcc, 16, v{vLane}")
    e(f"v_lshlrev_b32 v{vTmp+1}, 10, v{vLane}")
    e(f"v_bfe_u32 v{vTmp+2}, v0, 3, 1")
    e(f"v_cndmask_b32 v{vTouch+3}, v{vTmp+5}, v{vTmp}, vcc")
    e(f"v_lshrrev_b32 v{vTmp+3}, 1, v{vLane}")
    e(f"v_mul_u32_u24 v{vTmp+3}, 400, v{vTmp+3}")
    e(f"v_and_b32 v{vTmp+4}, 1, v{vLane}")
    e(f"v_mul_u32_u24 v{vTmp+4}, 60, v{vTmp+4}")
    e(f"v_add_u32 v{vTmp+3}, v{vTmp+3}, v{vTmp+4}")
    e(f"v_cndmask_b32 v{vTouch+4}, v{vTmp+5}, v{vTmp+3}, vcc")
    e(f"v_lshrrev_b32 v{vTo}, 4, v{vLane}")
    e(f"v_lshlrev_b32 v{vTo}, 21, v{vTo}")
    e(f"v_bfe_u32 v{vTmp+3}, v{vLane}, 2, 2")
    e(f"v_lshl_add_u32 v{vTo}, v{vTmp+3}, 17, v{vTo}")
    e(f"v_and_b32 v{vTmp+3}, 3, v{vLane}")
    e(f"v_lshl_add_u32 v{vTo}, v{vTmp+3}, 10, v{vTo}")
    e(f"v_cmp_gt_u32 vcc, 16, v{vLane}")
    e("s_nop 1")
    e(f"v_cndmask_b32 v{vTo16}, v{vTmp+5}, v{vTo}, vcc")
    e(f"v_cmp_gt_u32 vcc, 32, v{vLane}")
    e("s_nop 1")
    e(f"v_cndmask_b32 v{vTouch+5}, v{vTmp+5}, v{vTo}, vcc")
    e(f"v_cmp_gt_u32 vcc, 4, v{vLane}")
    e("s_nop 1")
    e(f"v_cndmask_b32 v{vTo}, v{vTmp+5}, v{vTo}, vcc")
    e(f"v_lshlrev_b32 v{vB0}, 14, v{vB4}")
    e(f"v_lshl_add_u32 v{vB0}, v{vB5}, 13, v{vB0}")
    e(f"v_lshl_add_u32 v{vB0}, v{vTmp+2}, 10, v{vB0}")
    e(f"v_and_b32 v{vTmp+1}, 7, v0")
    e(f"v_lshl_add_u32 v{vB0}, v{vTmp+1}, 4, v{vB0}")
    e(f"v_add_u32 v{vB1}, 0x1000, v{vB0}")
    e(f"v_lshrrev_b32 v{vTmp}, 2, v{vLane}")
    e(f"v_and_b32 v{vTmp+1}, 3, v{vLane}")
    e(f"v_lshlrev_b32 v{vTmp+1}, 4, v{vTmp+1}")
    e(f"v_lshl_add_u32 v{vTBo}, v{vTmp}, 8, v{vTmp+1}")
    e(f"v_mad_u32_u24 v{vTBw}, v{vTmp}, s{s80}, v{vTmp+1}")
    e(f"s_mul_i32 s{sT0}, s{sW}, 20480")
    e(f"v_add_u32 v{vTBw}, s{sT0}, v{vTBw}")
    e(f"v_mov_b32 v{vSel}, 0x05040100")
    e(f"v_mov_b32 v{vTmp+3}, 0x03020706")
    e(f"v_cmp_eq_u32 vcc, 1, v{vTmp+2}")
    e(f"v_lshlrev_b32 v{vQ}, 4, v{vB5}")
    e(f"v_lshlrev_b32 v{vL16}, 4, v{vLane}")
    e(f"v_cndmask_b32 v{vSel}, v{vSel}, v{vTmp+3}, vcc")
    e(f"s_movk_i32 s{sT1}, 400")
    e(f"v_mul_u32_u24 v{vIXo}, s{sT1}, v{vTmp}")
    e(f"v_lshrrev_b32 v{vTmp}, 4, v{vLane}")
    e(f"v_and_b32 v{vTmp+1}, 3, v{vLane}")
    e(f"v_xor_b32 v{vTmp}, v{vTmp}, v{vTmp+1}")
    e(f"v_lshl_add_u32 v{vIXo}, v{vTmp}, 4, v{vIXo}")
    e("s_waitcnt lgkmcnt(0)")
    stamp()
    srd(sTB, P_TBL, 256000)
    srd(sIXF, P_IDX, 409600)
    srd(sW1, P_W1, 13107200)
    e(f"s_or_b32 s{sT0}, s2, s{sW}")
    e(f"s_cmp_lg_u32 s{sT0}, 0")
    e("s_cbranch_scc1 L_NONONCE")
    e(f"s_memrealtime s[{sT2}:{sT3}]")
    srd(sDBG, P_DBG, 256)
    e("s_waitcnt lgkmcnt(0)")
    e(f"s_and_b32 s{sT2}, s{sT2}, 0xffffff")
    e(f"s_or_b32 s{sT2}, s{sT2}, 0x80000000")
    e(f"v_mov_b32 v{vTmp}, s{sT2}")
    e(f"v_mov_b32 v{vTmp+1}, 0")
    e("s_mov_b64 s[74:75], exec")
    e("s_mov_b64 exec, 1")
    e(f"buffer_store_dword v{vTmp}, v{vTmp+1}, s[{sDBG}:{sDBG+3}], 0 offen sc1")
    e("s_mov_b64 exec, s[74:75]")
    E.lab("L_NONONCE")
    if touch:
        e(f"s_lshl_b32 s{sT0}, s{sX}, 11")
        E.vm(f"buffer_load_dword v{vTouch}, v{vTouch+3}, s[{sTB}:{sTB+3}], s{sT0} offen", "touchA")
        e(f"s_mul_i32 s{sT0}, s{sX}, 3200")
        E.vm(f"buffer_load_dword v{vTouch+1}, v{vTouch+4}, s[{sIXF}:{sIXF+3}], s{sT0} offen", "touchA")
        e(f"s_lshl_b32 s{sT0}, s{sMIi}, 12")
        e(f"s_add_u32 s{sT0}, s{sT0}, s{sBbase}")
        E.vm(f"buffer_load_dword v{vTouch+2}, v{vTo16}, s[{sW1}:{sW1+3}], s{sT0} offen", "touchA")

    def pstamp():
        if pro: stamp()
    pstamp()
    def fieldoff(i):
        return (16 * (i // 4) + i % 4) * 131072
    def bload(i):
        out = []
        if i < 24:
            out.append(("s", f"s_add_u32 s{sBoff}, s{sBbase}, {fieldoff(i)}"))
        else:
            out.append(("s", f"s_mov_b32 s{sBoff}, s{sB24}"))
        for jj in range(4):
            vo = vB0 if jj < 2 else vB1
            out.append(("vm", f"buffer_load_dwordx4 {raw(i,jj)}, v{vo}, s[{sW1}:{sW1+3}], s{sBoff} offen offset:{(jj%2)*2048}", f"raw{i}"))
        return out
    def touch_grp(m, dst):
        out = []
        out.append(("s", f"s_lshl_b32 s{sT0}, s{sMIi}, 12"))
        if m < 6:
            out.append(("s", f"s_add_u32 s{sT0}, s{sT0}, s{sBbase}"))
            out.append(("s", f"s_add_u32 s{sT0}, s{sT0}, {m<<21}"))
            out.append(("vm", f"buffer_load_dword v{dst}, v{vTo16}, s[{sW1}:{sW1+3}], s{sT0} offen", "touch"))
        else:
            out.append(("s", f"s_add_u32 s{sT0}, s{sT0}, s{sB24}"))
            out.append(("vm", f"buffer_load_dword v{dst}, v{vTo}, s[{sW1}:{sW1+3}], s{sT0} offen", "touch"))
        return out
    def touchB(dst):
        out = []
        out.append(("s", f"s_lshl_b32 s{sT0}, s{sMIi}, 12"))
        out.append(("s", f"s_add_u32 s{sT0}, s{sT0}, s{sBbase}"))
        out.append(("s", f"s_add_u32 s{sT0}, s{sT0}, {1<<21}"))
        out.append(("vm", f"buffer_load_dword v{dst}, v{vTouch+5}, s[{sW1}:{sW1+3}], s{sT0} offen", "touch"))
        return out
    for it in bload(0):
        emit_item(it)
    e(f"s_lshl_b32 s{sT1}, s{sW}, 16")
    e(f"s_lshl_b32 s{sT2}, s{sS}, 6")
    e(f"s_add_u32 s{sT1}, s{sT1}, s{sT2}")
    for n in range(16):
        if n > 0:
            e(f"s_add_u32 s{sT1}, s{sT1}, 4096")
        E.vm(f"buffer_load_dwordx4 {ar(aTB+4*n,4)}, v{vTBo}, s[{sTB}:{sTB+3}], s{sT1} offen", f"tbl{n}")
    pstamp()
    e(f"s_mul_i32 s{sT0}, s{sMIi}, 51200")
    srd(sIX, P_IDX, 51200, addoff=sT0)
    def idx_dma(c):
        out = []
        if c < 6:
            for h in range(2):
                out.append(("s", f"s_lshl_b32 s{sT0}, s{sW}, 11"))
                out.append(("s", f"s_add_u32 m0, s{sT0}, {IDXB + c*8192 + h*1024}"))
                out.append(("s", f"s_mul_i32 s{sT1}, s{sW}, 12800"))
                out.append(("s", f"s_add_u32 s{sT1}, s{sT1}, {h*6400 + c*64}"))
                out.append(("vm", f"buffer_load_dwordx4 v{vIXo}, s[{sIX}:{sIX+3}], s{sT1} offen lds", f"idxd{c}"))
        else:
            out.append(("s", f"s_and_b32 s{sT0}, s{sW}, 1"))
            out.append(("s", f"s_mul_i32 s{sT1}, s{sT0}, 25600"))
            out.append(("s", f"s_lshl_b32 s{sT0}, s{sT0}, 10"))
            out.append(("s", f"s_add_u32 m0, s{sT0}, {IDXL}"))
            out.append(("s", "s_nop 0"))
            out.append(("vm", f"buffer_load_dwordx4 v{vIXl}, s[{sIX}:{sIX+3}], s{sT1} offen lds", f"idxd{c}"))
        return out
    for it in idx_dma(0):
        emit_item(it)
    if touch:
        for it in touchB(vTouch + 3):
            emit_item(it)
    for it in bload(1):
        emit_item(it)
    e(f"s_movk_i32 s{sT1}, 400")
    e(f"v_mul_u32_u24 v{vIXl}, s{sT1}, v{vLane}")
    e(f"v_add_u32 v{vIXl}, 384, v{vIXl}")
    for it in idx_dma(1):
        emit_item(it)
    pstamp()
    for n in range(16):
        E.wait_vm(f"tbl{n}")
        if n == 0 or n == 8: pstamp()
        E.lg(f"ds_write_b128 v{vTBw}, {ar(aTB+4*n,4)} offset:{n*1280}", "tblw")
    e(f"v_bfe_u32 v{vTmp}, v{vR32}, 2, 2")
    e(f"v_xor_b32 v{vTmp}, s{sW}, v{vTmp}")
    e(f"v_lshlrev_b32 v{vTmp}, 4, v{vTmp}")
    e(f"v_lshl_add_u32 v{vTmp}, v{vR32}, 6, v{vTmp}")
    e(f"v_lshlrev_b32 v{vTmp+1}, 4, v{vR32}")
    for tp in range(4):
        e(f"s_add_u32 s{sT2}, s{sW}, {tp}")
        e(f"s_and_b32 s{sT2}, s{sT2}, 3")
        e(f"s_lshl_b32 s{sT3}, s{sT2}, 11")
        e(f"s_add_u32 s{sT3}, s{sT3}, {IDXB}")
        e(f"v_add_u32 v{vIA+tp}, s{sT3}, v{vTmp}")
        e(f"s_lshl_b32 s{sT3}, s{sT2}, 9")
        e(f"s_lshl_b32 s{sT2}, s{sW}, 2")
        e(f"s_add_u32 s{sT3}, s{sT3}, s{sT2}")
        e(f"s_add_u32 s{sT3}, s{sT3}, {IDXL}")
        e(f"v_add_u32 v{vIA2+tp}, s{sT3}, v{vTmp+1}")
    e(f"s_lshl_b32 s{sT0}, s{sMIi}, 5")
    e(f"s_add_u32 s{sT0}, s{sT0}, s{sP}")
    e(f"s_lshl_b32 s{sInbox}, s{sT0}, 15")
    for jj in range(4):
        for cp1 in range(2):
            e(f"v_permlane16_swap_b32 {raw(0,jj,2*cp1)}, {raw(0,jj,2*cp1+1)}")
    for k in range(8, 16):
        n, p = (k - 8) // 4, (k - 8) % 4
        t = vDT + (k % 4)
        e(f"v_mov_b32_dpp v{t}, {raw(0, p, 2*n)} row_ror:8 row_mask:0xf bank_mask:0xf")
        e(f"v_perm_b32 v{vBF+n*4+p}, v{t}, {raw(0, p, 2*n)}, v{vSel}")
    if fine:
        stamp()
    E.wait_vm("idxd0")
    E.wait_all(vm=False, lg=True)
    if fine:
        stamp()
    e("s_barrier")
    stamp()
    if pro:
        e("s_branch L_TS2")
        nostamp[0] = True

    def idx_read_items(group):
        out = []
        if group < 6:
            for tp in range(4):
                out.append(("lg", f"ds_read_b128 {vr(vI+4*tp,4)}, v{vIA+tp} offset:{group*8192}", f"idx{group}"))
        else:
            for tp in range(4):
                out.append(("lg", f"ds_read_b32 v{vI+4*tp}, v{vIA2+tp}", f"idx{group}"))
        return out
    def addr_item(i, tp):
        comp = i % 4 if i < 24 else 0
        return ("v", f"v_mad_u32_u24 v{vGA+tp}, v{vI+4*tp+comp}, s{s80}, v{vQ}")
    def gather_item(i, tp, ks):
        return ("lg", f"ds_read_b128 {afrag(tp,ks)}, v{vGA+tp} offset:{TBL + 32*ks}", f"g{i}_{tp}_{ks}")
    def swap_item(i, jj, cp1):
        if i >= NSTEP: return None
        return ("v", f"v_permlane16_swap_b32 {raw(i,jj,2*cp1)}, {raw(i,jj,2*cp1+1)}")
    def slot_info(G):
        i, k = divmod(G, 16)
        if k < 8:
            return (i, 1, k // 4, k % 4)
        return (i + 1, 0, (k - 8) // 4, (k - 8) % 4)
    def dpp_item(G):
        st, ks, n, p = slot_info(G)
        if st >= NSTEP: return None
        t = vDT + (G % 4)
        return ("v", f"v_mov_b32_dpp v{t}, {raw(st, p, 2*n+ks)} row_ror:8 row_mask:0xf bank_mask:0xf")
    def perm_item(G):
        st, ks, n, p = slot_info(G)
        if st >= NSTEP: return None
        t = vDT + (G % 4)
        return ("v", f"v_perm_b32 v{vBF+(ks*2+n)*4+p}, v{t}, {raw(st, p, 2*n+ks)}, v{vSel}")

    for it in idx_read_items(0):
        emit_item(it)
    for it in bload(2):
        emit_item(it)
    E.wait_lg("idx0")
    for tp in range(4):
        emit_item(addr_item(0, tp))
    for ks in range(2):
        for tp in range(4):
            emit_item(gather_item(0, tp, ks))
    E.wait_vm("raw1")
    emit_item(swap_item(1, 0, 0))
    emit_item(dpp_item(0))

    def small_items():
        out = []
        def S(x): out.append(("s", x))
        def V(x): out.append(("v", x))
        def srd_i(d, p, nbytes):
            S(f"s_mov_b32 s{d}, s{p}"); S(f"s_and_b32 s{d+1}, s{p+1}, 0xffff"); S(f"s_mov_b32 s{d+2}, {nbytes}"); S(f"s_mov_b32 s{d+3}, 0x00020000")
        srd_i(sWS, P_WS, 8 << 20 if not TS else 32 << 20)
        srd_i(sDBG, P_DBG, 256)
        srd_i(sOUT, P_OUT, 2048)
        V(f"v_mov_b32 v{vTmp+5}, 0")
        out.append(("vm", f"buffer_load_dword v{vFL}, v{vTmp+5}, s[{sDBG}:{sDBG+3}], 0 offen sc1", "nonce"))
        V(f"v_and_b32 v{vTmp}, 7, v{vLane}")
        V(f"v_lshlrev_b32 v{vTmp}, 3, v{vTmp}")
        V(f"v_lshl_add_u32 v{vTmp}, v{vB5}, 2, v{vTmp}")
        V(f"v_lshl_add_u32 v{vTmp}, v{vB4}, 1, v{vTmp}")
        V(f"v_bfe_u32 v{vTmp+1}, v{vLane}, 3, 1")
        V(f"v_add_u32 v{vTmp}, v{vTmp}, v{vTmp+1}")
        S(f"s_lshl_b32 s{sT0}, s{sW}, 7")
        V(f"v_add_u32 v{vTmp}, s{sT0}, v{vTmp}")
        V(f"v_lshlrev_b32 v{vTmp}, 1, v{vTmp}")
        srd_i(sMI, P_B1, 1024)
        out.append(("vm", f"buffer_load_ushort v{vB1a}, v{vTmp}, s[{sMI}:{sMI+3}], 0 offen", "small"))
        out.append(("vm", f"buffer_load_ushort v{vB1b}, v{vTmp}, s[{sMI}:{sMI+3}], 0 offen offset:128", "small"))
        srd_i(sMI, P_W2, 1024)
        out.append(("vm", f"buffer_load_ushort v{vW2a}, v{vTmp}, s[{sMI}:{sMI+3}], 0 offen", "small"))
        out.append(("vm", f"buffer_load_ushort v{vW2b}, v{vTmp}, s[{sMI}:{sMI+3}], 0 offen offset:128", "small"))
        S(f"s_lshl_b32 s{sT0}, s{sMIi}, 7")
        S(f"s_lshl_b32 s{sT1}, s{sP}, 2")
        S(f"s_add_u32 s{sT0}, s{sT0}, s{sT1}")
        V(f"v_lshrrev_b32 v{vTmp+1}, 4, v{vLane}")
        V(f"v_add_u32 v{vTmp+1}, s{sT0}, v{vTmp+1}")
        V(f"v_lshlrev_b32 v{vOUTO}, 1, v{vTmp+1}")
        V(f"v_mul_u32_u24 v{vTmp+1}, 13, v{vTmp+1}")
        V(f"v_add_u32 v{vTmp+1}, v{vTmp+1}, v{vC}")
        V(f"v_lshlrev_b32 v{vTmp+1}, 1, v{vTmp+1}")
        V(f"v_mov_b32 v{vTmp+2}, 0x7fffff00")
        V(f"v_cmp_gt_u32 vcc, 13, v{vC}")
        S("s_nop 1")
        V(f"v_cndmask_b32 v{vTmp+1}, v{vTmp+2}, v{vTmp+1}, vcc")
        V(f"v_lshlrev_b32 v{vTmp+2}, 1, v{vC}")
        srd_i(sMI, P_XW, 26624)
        out.append(("vm", f"buffer_load_ushort v{vXW}, v{vTmp+1}, s[{sMI}:{sMI+3}], 0 offen", "small"))
        srd_i(sMI, P_WW, 26)
        out.append(("vm", f"buffer_load_ushort v{vWW}, v{vTmp+2}, s[{sMI}:{sMI+3}], 0 offen", "small"))
        srd_i(sMI, P_BW, 2)
        out.append(("vm", f"buffer_load_ushort v{vBW}, v{vTmp+5}, s[{sMI}:{sMI+3}], 0 offen", "small"))
        srd_i(sMI, P_B2, 2)
        out.append(("vm", f"buffer_load_ushort v{vB2}, v{vTmp+5}, s[{sMI}:{sMI+3}], 0 offen", "small"))
        return out
    smalls = small_items()
    SM_FIRST = NSTEP - R
    nsm_steps = NSTEP - 1 - SM_FIRST
    per = -(-len(smalls) // (nsm_steps * 8))
    if loopstamp:
        stamp()
    swap_sched = {0: (1, 0), 2: (2, 0), 4: (3, 0), 6: (0, 1), 8: (1, 1), 10: (2, 1), 12: (3, 1)}
    for i in range(NSTEP):
        nxt = i + 1 < NSTEP
        E.c(f"---- step {i}")
        fill = [[] for _ in range(16)]
        for g in range(16):
            G = 16 * i + g
            if g in swap_sched:
                jj, cp1 = swap_sched[g]
                fill[g].append(swap_item(i + 1, jj, cp1))
            if g == 14 and i + 2 < NSTEP:
                fill[g].append(("wvm", f"raw{i+2}"))
                fill[g].append(swap_item(i + 2, 0, 0))
            fill[g].append(perm_item(G))
            fill[g].append(dpp_item(G + 1))
        if nxt:
            grp = (i + 1) // 4 if i + 1 < 24 else 6
            for tp in range(4):
                lst = fill[2 * tp + 1]
                if tp == 0 and ((i + 1) % 4 == 0):
                    lst.append(("wlg", f"idx{grp}"))
                lst.append(addr_item(i + 1, tp))
                lst.append(gather_item(i + 1, tp, 0))
            for tp in range(4):
                fill[9 + 2 * tp].append(gather_item(i + 1, tp, 1))
            if (i + 1) % 4 == 3 and i + 2 < NSTEP:
                grp = (i + 2) // 4 if i + 2 < 24 else 6
                its = idx_read_items(grp)
                if grp == 1:
                    fill[8].insert(0, ("wvm", "idxd1"))
                    fill[8].insert(1, ("s", "s_barrier"))
                if grp == 2:
                    fill[8].insert(0, ("wvm", "idxd6"))
                    fill[8].insert(1, ("s", "s_barrier"))
                for k, it in enumerate(its):
                    fill[8 + k].append(it)
        second = None; first = None
        if i <= 2:
            first = 3 + 2 * i; second = 4 + 2 * i
        elif i + R < NSTEP:
            second = i + R
        if first is not None:
            ld = bload(first)
            fill[0].append(ld[0])
            for j in range(4):
                fill[1 + 2 * j].append(ld[1 + j])
        if second is not None and second < NSTEP:
            ld = bload(second)
            fill[8].append(ld[0])
            for j in range(4):
                fill[9 + 2 * j].append(ld[1 + j])
        if i <= 4:
            its = idx_dma(2 + i)
            gaps = [2, 2, 2, 2, 4, 6, 6, 6, 6, 10] if len(its) == 10 else [2, 2, 4, 4, 6, 6]
            for it, g in zip(its, gaps):
                fill[g].append(it)
        if touch and i in (0, 4, 8, 12):
            m = {0: 3, 4: 4, 8: 5, 12: 6}[i]
            its = touch_grp(m, vTouch + 4)
            for it in its:
                fill[12].append(it)
        if SM_FIRST <= i < NSTEP - 1:
            for g in range(9, 16, 1):
                for _ in range(per + 1 if g % 2 == 1 else per - 1 if per > 1 else 0):
                    if smalls: fill[g].append(smalls.pop(0))
            if i == NSTEP - 2:
                while smalls: fill[15].append(smalls.pop(0))
        for m in range(16):
            ks, tp, n = m // 8, (m % 8) // 2, m % 2
            if m == 0 or m == 8:
                E.wait_lg(f"g{i}_3_{ks}")
            cin = "0" if (i == 0 and ks == 0) else acc(tp, n)
            e(f"v_mfma_f32_32x32x16_bf16 {acc(tp,n)}, {afrag(tp,ks)}, {bfrag(ks,n)}, {cin}")
            for it in fill[m]:
                emit_item(it)
    E.c("---- T1: intra-CU reduce")
    for tp in range(1, 4):
        e(f"s_add_u32 s{sT0}, s{sW}, {tp}")
        e(f"s_and_b32 s{sT0}, s{sT0}, 3")
        e(f"s_mul_i32 s{sT0}, s{sT0}, 24576")
        e(f"s_add_u32 s{sT0}, s{sT0}, {(tp-1)*8192}")
        e(f"v_add_u32 v{vW+tp-1}, s{sT0}, v{vL16}")
    e(f"s_mul_i32 s{sT0}, s{sW}, 24576")
    e(f"v_add_u32 v{vRD}, s{sT0}, v{vL16}")
    E.wait_all(vm=False, lg=True)
    stamp()
    e("s_barrier")
    def t1_writes(n):
        for tp in range(1, 4):
            for g in range(4):
                a = aACC + ((tp - 1) * 2 + n) * 16 + 4 * g
                E.lg(f"ds_write_b128 v{vW+tp-1}, {ar(a,4)} offset:{(n*4+g)*1024}", "t1w")
    def t1_reads(n):
        for g in range(4):
            q = n * 4 + g
            for k in range(3):
                E.lg(f"ds_read_b128 {vr(vT1+32*k+4*q,4)}, v{vRD} offset:{k*8192+q*1024}", f"t1r{q}_{k}")
    def t1_sum_store(n):
        for g in range(4):
            q = n * 4 + g
            b = n * 16 + 4 * g
            E.wait_lg(f"t1r{q}_2")
            for k in range(3):
                for h in range(2):
                    e(f"v_pk_add_f32 {vr(vACC0+b+2*h,2)}, {vr(vACC0+b+2*h,2)}, {vr(vT1+32*k+b+2*h,2)}")
            for r in range(4):
                e(f"v_and_or_b32 v{vACC0+b+r}, v{vACC0+b+r}, s{sT2}, v{vTag+r}")
            E.vm(f"buffer_store_dwordx4 {vr(vACC0+b,4)}, v{vST}, s[{sWS}:{sWS+3}], s{sSt+g} offen offset:{n*512} sc1", "pub")
    t1_writes(0)
    E.wait_vm("small")
    e(f"s_mov_b32 s{sCnt}, 0")
    E.lab("L_NONCE")
    e(f"v_readfirstlane_b32 s{sT3}, v{vFL}")
    e("s_nop 3")
    e(f"s_cmp_lt_i32 s{sT3}, 0")
    e("s_cbranch_scc1 L_NONCEOK")
    e(f"s_add_u32 s{sCnt}, s{sCnt}, 1")
    e(f"s_cmp_gt_u32 s{sCnt}, 200000")
    e("s_cbranch_scc1 L_NONCEOK")
    e(f"buffer_load_dword v{vFL}, v{vTmp+5}, s[{sDBG}:{sDBG+3}], 0 offen sc1")
    e("s_waitcnt vmcnt(0)")
    e("s_branch L_NONCE")
    E.lab("L_NONCEOK")
    for r in range(4):
        e(f"v_bfe_u32 v{vTag+r}, v{vFL}, {6*r}, 6")
    e(f"v_lshlrev_b32 v{vST}, 15, v{vB5}")
    e(f"v_lshl_add_u32 v{vST}, v{vR32}, 4, v{vST}")
    e(f"s_lshl_b32 s{sT0}, s{sMIi}, 5")
    e(f"s_lshl_b32 s{sT1}, s{sW}, 3")
    e(f"s_add_u32 s{sT0}, s{sT0}, s{sT1}")
    e(f"s_lshl_b32 s{sT0}, s{sT0}, 15")
    e(f"s_lshl_b32 s{sT1}, s{sP}, 10")
    e(f"s_add_u32 s{sT0}, s{sT0}, s{sT1}")
    for g in range(4):
        e(f"s_add_u32 s{sSt+g}, s{sT0}, {g*65536}")
    e(f"s_mov_b32 s{sT2}, 0xffffffc0")
    E.wait_all(vm=False, lg=True)
    e("s_barrier")
    t1_reads(0)
    t1_sum_store_first = True
    w1 = []
    for tp in range(1, 4):
        for g in range(4):
            a = aACC + ((tp - 1) * 2 + 1) * 16 + 4 * g
            w1.append(f"ds_write_b128 v{vW+tp-1}, {ar(a,4)} offset:{(4+g)*1024}")
    for g in range(4):
        q = g
        b = 4 * g
        E.wait_lg(f"t1r{q}_2")
        for x in range(3):
            E.lg(w1.pop(0), "t1w")
        for k in range(3):
            for h in range(2):
                e(f"v_pk_add_f32 {vr(vACC0+b+2*h,2)}, {vr(vACC0+b+2*h,2)}, {vr(vT1+32*k+b+2*h,2)}")
        for r in range(4):
            e(f"v_and_or_b32 v{vACC0+b+r}, v{vACC0+b+r}, s{sT2}, v{vTag+r}")
        E.vm(f"buffer_store_dwordx4 {vr(vACC0+b,4)}, v{vST}, s[{sWS}:{sWS+3}], s{sSt+g} offen offset:0 sc1", "pub")
    E.wait_all(vm=False, lg=True)
    e("s_barrier")
    t1_reads(1)
    t1_sum_store(1)
    E.lgq = []
    stamp()
    if tail:
        e("s_waitcnt vmcnt(0)")
        stamp()
    E.c("---- T3: poll + finish")
    e(f"s_lshl_b32 s{sT0}, s{sW}, 13")
    e(f"s_add_u32 s{sT0}, s{sT0}, s{sInbox}")
    e(f"s_add_u32 s{sT1}, s{sT0}, 4096")
    e(f"s_mov_b32 s{sCnt}, 0")
    vIN = vT1
    vH = vT1 + 40
    vD = vT1 + 48
    vX = vT1 + 52
    vM = vT1 + 56
    e(f"v_lshlrev_b32 v{vM+1}, 7, v{vLane}")
    e(f"buffer_load_dword v{vM+3}, v{vM+1}, s[{sWS}:{sWS+3}], s{sT0} offen sc1")
    e(f"v_lshlrev_b32 v{vB1a}, 16, v{vB1a}")
    e(f"v_lshlrev_b32 v{vB1b}, 16, v{vB1b}")
    e(f"v_lshlrev_b32 v{vW2a}, 16, v{vW2a}")
    e(f"v_lshlrev_b32 v{vW2b}, 16, v{vW2b}")
    e(f"s_mov_b32 s{sT2}, 0xffff0000")
    e(f"v_lshlrev_b32 v{vXW}, 16, v{vXW}")
    e(f"v_lshlrev_b32 v{vWW}, 16, v{vWW}")
    e(f"v_mul_f32 v{vXW}, v{vXW}, v{vWW}")
    e(f"v_lshlrev_b32 v{vBW}, 16, v{vBW}")
    e(f"v_lshlrev_b32 v{vB2}, 16, v{vB2}")
    for sh in (1, 2, 4, 8):
        e(f"v_add_f32_dpp v{vXW}, v{vXW}, v{vXW} row_shr:{sh} row_mask:0xf bank_mask:0xf")
        e("s_nop 1")
    def rnd(r):
        e(f"v_cvt_pk_bf16_f32 v{r}, v{r}, v{r}")
        e(f"v_and_b32 v{r}, s{sT2}, v{r}")
    rnd(vXW)
    e(f"v_add_f32 v{vXW}, v{vXW}, v{vBW}")
    rnd(vXW)
    e("s_branch L_INDCHK")
    E.lab("L_IND")
    e(f"s_sleep {sleep}")
    e(f"buffer_load_dword v{vM+3}, v{vM+1}, s[{sWS}:{sWS+3}], s{sT0} offen sc1")
    E.lab("L_INDCHK")
    e("s_waitcnt vmcnt(0)")
    e(f"v_xor_b32 v{vM+3}, v{vM+3}, v{vTag}")
    e(f"v_and_b32 v{vM+3}, 63, v{vM+3}")
    e(f"v_cmp_ne_u32 vcc, 0, v{vM+3}")
    e("s_cbranch_vccz L_INDOK")
    e(f"s_add_u32 s{sCnt}, s{sCnt}, 1")
    e(f"s_cmp_gt_u32 s{sCnt}, 100000")
    e("s_cbranch_scc0 L_IND")
    E.lab("L_INDOK")
    if tail:
        stamp()
        e(f"v_mov_b32 v{vM+4}, s{sCnt}")
    E.lab("L_POLL")
    for k in range(8):
        so = sT0 if k < 4 else sT1
        e(f"buffer_load_dwordx4 {vr(vIN+4*k,4)}, v{vL16}, s[{sWS}:{sWS+3}], s{so} offen offset:{(k%4)*1024} sc1")
    e("s_waitcnt vmcnt(0)")
    E.vmq = []
    for k in range(32):
        e(f"v_xor_b32 v{vIN+k}, v{vIN+k}, v{vTag+(k%4)}")
    e(f"v_or3_b32 v{vM}, v{vIN}, v{vIN+1}, v{vIN+2}")
    for k in range(3, 31, 2):
        e(f"v_or3_b32 v{vM}, v{vM}, v{vIN+k}, v{vIN+k+1}")
    e(f"v_or_b32 v{vM}, v{vM}, v{vIN+31}")
    e(f"v_and_b32 v{vM}, 63, v{vM}")
    e(f"v_cmp_ne_u32 vcc, 0, v{vM}")
    e("s_cbranch_vccz L_POLLOK")
    e(f"s_add_u32 s{sCnt}, s{sCnt}, 1")
    e(f"s_cmp_gt_u32 s{sCnt}, 100000")
    e("s_cbranch_scc0 L_POLL")
    E.lab("L_POLLOK")
    stamp()
    for nl in range(2):
        b = vIN + 16 * nl
        for h in range(2):
            e(f"v_pk_add_f32 {vr(vH+4*nl+2*h,2)}, {vr(b+2*h,2)}, {vr(b+4+2*h,2)}")
        for h in range(2):
            e(f"v_pk_add_f32 {vr(vH+4*nl+2*h,2)}, {vr(vH+4*nl+2*h,2)}, {vr(b+8+2*h,2)}")
        for h in range(2):
            e(f"v_pk_add_f32 {vr(vH+4*nl+2*h,2)}, {vr(vH+4*nl+2*h,2)}, {vr(b+12+2*h,2)}")
    for nl in range(2):
        b1r = vB1a if nl == 0 else vB1b
        w2r = vW2a if nl == 0 else vW2b
        hs = [vH + 4 * nl + r for r in range(4)]
        for h in hs: e(f"v_cvt_pk_bf16_f32 v{h}, v{h}, v{h}")
        for h in hs: e(f"v_and_b32 v{h}, s{sT2}, v{h}")
        for h in hs: e(f"v_add_f32 v{h}, v{h}, v{b1r}")
        for h in hs: e(f"v_cvt_pk_bf16_f32 v{h}, v{h}, v{h}")
        for h in hs: e(f"v_and_b32 v{h}, s{sT2}, v{h}")
        for r, h in enumerate(hs):
            e(f"v_cmp_lt_f32 s[{sSt+2*(r%2)}:{sSt+2*(r%2)+1}], 0, v{h}")
            if r % 2 == 1:
                e("s_nop 0")
                e(f"v_cndmask_b32 v{vX+r-1}, 0, 1.0, s[{sSt}:{sSt+1}]")
                e(f"v_cndmask_b32 v{vX+r}, 0, 1.0, s[{sSt+2}:{sSt+3}]")
        for r, h in enumerate(hs): e(f"v_mul_f32 v{h}, v{h}, v{vX+r}")
        for r, h in enumerate(hs):
            if nl == 0:
                e(f"v_mul_f32 v{vD+r}, v{h}, v{w2r}")
            else:
                e(f"v_fmac_f32 v{vD+r}, v{h}, v{w2r}")
    regs = [vD, vD + 1, vD + 2, vD + 3]
    for sh in (1, 2, 4, 8):
        for rg in regs:
            e(f"v_add_f32_dpp v{rg}, v{rg}, v{rg} row_shr:{sh} row_mask:0xf bank_mask:0xf")
    for rg in regs:
        e(f"v_add_f32_dpp v{rg}, v{rg}, v{rg} row_bcast:15 row_mask:0xa bank_mask:0xf")
    for rg in regs:
        e(f"v_add_f32_dpp v{rg}, v{rg}, v{rg} row_bcast:31 row_mask:0xc bank_mask:0xf")
    e(f"s_lshl_b32 s{sT0}, s{sW}, 4")
    e(f"s_add_u32 s{sT0}, s{sT0}, {FIN}")
    e(f"v_mov_b32 v{vX}, s{sT0}")
    e("s_mov_b64 s[76:77], exec")
    e("s_mov_b32 exec_lo, 0")
    e("s_mov_b32 exec_hi, 0x80000000")
    e(f"ds_write_b128 v{vX}, {vr(vD,4)}")
    e("s_mov_b64 exec, s[76:77]")
    e(f"v_lshrrev_b32 v{vX+1}, 4, v{vLane}")
    e(f"v_lshlrev_b32 v{vX+1}, 2, v{vX+1}")
    e(f"v_add_u32 v{vX+1}, {FIN}, v{vX+1}")
    e("s_waitcnt lgkmcnt(0)")
    e("s_barrier")
    e(f"s_cmp_lg_u32 s{sW}, 0")
    e("s_cbranch_scc1 L_TS")
    for k in range(4):
        e(f"ds_read_b32 v{vD+k}, v{vX+1} offset:{16*k}")
    e("s_waitcnt lgkmcnt(0)")
    e(f"v_add_f32 v{vD}, v{vD}, v{vD+1}")
    e(f"v_add_f32 v{vD+2}, v{vD+2}, v{vD+3}")
    e(f"v_add_f32 v{vD}, v{vD}, v{vD+2}")
    rnd(vD)
    e(f"v_add_f32 v{vD}, v{vD}, v{vB2}")
    rnd(vD)
    e(f"v_add_f32 v{vD}, v{vD}, v{vXW}")
    rnd(vD)
    e(f"v_mul_f32 v{vD}, 0xbfb8aa3b, v{vD}")
    e(f"v_exp_f32 v{vD}, v{vD}")
    e("s_nop 0")
    e(f"v_add_f32 v{vD}, 1.0, v{vD}")
    e(f"v_rcp_f32 v{vD}, v{vD}")
    e("s_nop 0")
    e(f"v_cvt_pk_bf16_f32 v{vD}, v{vD}, v{vD}")
    e("s_mov_b32 exec_lo, 0x80008000")
    e("s_mov_b32 exec_hi, 0x80008000")
    e(f"buffer_store_short v{vD}, v{vOUTO}, s[{sOUT}:{sOUT+3}], 0 offen")
    e("s_mov_b64 exec, -1")
    E.lab("L_TS")
    if pro:
        e("s_branch L_END")
        E.lab("L_TS2")
        srd(sWS, P_WS, 32 << 20)
    if TS:
        if not pro: stamp()
        n = tsn[0]
        assert sTS + 2 * n <= 102
        e(f"s_lshl_b32 s{sT0}, s2, 2")
        e(f"s_add_u32 s{sT0}, s{sT0}, s{sW}")
        e(f"s_lshl_b32 s{sT0}, s{sT0}, 6")
        e(f"s_add_u32 s{sT0}, s{sT0}, {16<<20}")
        e(f"v_mov_b32 v{vTmp}, 0")
        e("s_mov_b64 exec, 1")
        e(f"v_mov_b32 v{vTmp+1}, s{sCnt}")
        e(f"buffer_store_dword v{vTmp+1}, v{vTmp}, s[{sWS}:{sWS+3}], s{sT0} offen offset:60")
        for k in range(n):
            e(f"s_sub_u32 s{sT1}, s{sTS+2*k}, s{sTS}")
            e(f"v_mov_b32 v{vTmp+1}, s{sT1}")
            e(f"buffer_store_dword v{vTmp+1}, v{vTmp}, s[{sWS}:{sWS+3}], s{sT0} offen offset:{4*k}")
    E.lab("L_END")
    e("s_endpgm")

    out = [HDR + f"; @launch grid=(256,1,1) block=(256,1,1) lds={LDS_TOTAL}",
           '.amdgcn_target "amdgcn-amd-amdhsa--gfx950"', ".text", f".globl {NAME}", ".p2align 8",
           f".type {NAME},@function"]
    out += E.L
    out += ['.section .rodata,"a"', ".p2align 6", f".amdhsa_kernel {NAME}",
            "  .amdhsa_next_free_vgpr 384", "  .amdhsa_next_free_sgpr 102", "  .amdhsa_accum_offset 256",
            "  .amdhsa_group_segment_fixed_size 0", "  .amdhsa_kernarg_size 96", "  .amdhsa_user_sgpr_count 2",
            "  .amdhsa_user_sgpr_kernarg_segment_ptr 1", "  .amdhsa_system_sgpr_workgroup_id_x 1",
            ".end_amdhsa_kernel"]
    return "\n".join(out) + "\n"

if __name__ == "__main__":
    ap = argparse.ArgumentParser()
    ap.add_argument("-o", default="k.s")
    ap.add_argument("-R", type=int, default=6)
    ap.add_argument("--ts", action="store_true")
    ap.add_argument("--fine", action="store_true")
    ap.add_argument("--notouch", action="store_true")
    ap.add_argument("--npre", type=int, default=3)
    ap.add_argument("--pro", action="store_true")
    ap.add_argument("--early", action="store_true")
    ap.add_argument("--sleep", type=int, default=4)
    ap.add_argument("--loopstamp", action="store_true")
    ap.add_argument("--tail", action="store_true")
    a = ap.parse_args()
    open(a.o, "w").write(gen(R=a.R, TS=a.ts, fine=a.fine, touch=not a.notouch, npre=a.npre, pro=a.pro, early=a.early, sleep=a.sleep, loopstamp=a.loopstamp, tail=a.tail))
```

```python
import sys, argparse
from gen import Em, vr, ar, HDR, NAME

def gen(R=4, TS=False, NSTEP=25, touch=True, stamps=(), sleep=4, codetouch=True, stepstamps=(), pro=False, rt=False,
        direct=False, earlyw=True):
    E = Em()
    e = E.e
    OOB = 0x7ffffff0
    TBL = 0
    IDXL = 81920
    def IDXC(c): return 83968 + (5 - c) * 8192
    T1B = 51200
    FIN = T1B + 98304
    LDS_TOTAL = FIN + 64
    sW1, sTB, sIX, sWS, sMI = 4, 8, 12, 16, 20
    P_IDX, P_TBL, P_XW, P_WW, P_BW, P_W1, P_B1, P_W2, P_B2, P_OUT, P_DBG, P_WS = [24 + 2 * i for i in range(12)]
    sW = 3
    sNI, sS, sMIi, sP = 48, 49, 50, 51
    sT0, sT1, sT2, sT3 = 52, 53, 54, 55
    sBbase, sB24, sBoff = 56, 57, 58
    s80 = 59
    sX = 60
    sIn0 = 61
    sMask = 62
    sCnt = 63
    sDBG = 64
    sOUT = 68
    sSt = 72
    sIXF = 76
    sPC = 78
    sTS = 80
    vLane, vC, vQ4 = 1, 2, 3
    vB0, vB1, vQ = 4, 5, 6
    vL16 = 7
    vTmp = 8
    vB1a, vB1b, vW2a, vW2b = 14, 15, 16, 17
    vXW, vWW, vBW, vB2 = 18, 19, 20, 21
    vFL = 22
    vSel = 23
    vGA = 24
    vIA = 32
    vIA2 = 40
    vDT = 48
    vST = 52
    vW = 53
    vRD = 56
    vOUTO = 57
    vIND = 58
    vTag = 60
    vACC0 = 64
    vBF = 96
    vI = 128
    vRAW = 160
    assert vRAW + 16 * R <= 236
    vT1 = 96
    vTo48, vTo16, vTo4, vIXl, vIXo, vTBo, vTBw = 239, 240, 241, 242, 243, 244, 245
    vTouch = 250
    aACC = 0
    aAF = 96
    aTB = 0

    def acc(tp, n):
        if tp < 2: return vr(vACC0 + (tp * 4 + n) * 4, 4)
        return ar(aACC + ((tp - 2) * 4 + n) * 4, 4)
    def afrag(tp): return ar(aAF + tp * 4, 4)
    def bfrag(i, n): return vr(vBF + (i % 2) * 16 + n * 4, 4)
    def raw(i, jj, cp=None):
        b = vRAW + 16 * (i % R) + 4 * jj
        return vr(b, 4) if cp is None else vr(b + cp)

    tsn = [0]; names = []; nostamp = [False]
    def stamp(name):
        if not TS or nostamp[0]: return
        if stamps and name not in stamps and name != "cal": return
        k = tsn[0]; tsn[0] += 1
        names.append(name)
        e(f"{'s_memrealtime' if rt else 's_memtime'} s[{sTS+2*k}:{sTS+2*k+1}]")
        E.wait_all(vm=False, lg=True)

    def emit_item(it):
        if it is None: return
        if it[0] in ("s", "v"): e(it[1])
        elif it[0] == "vm": E.vm(it[1], it[2])
        elif it[0] == "lg": E.lg(it[1], it[2])
        elif it[0] == "wvm": E.wait_vm(it[1])
        elif it[0] == "wlg": E.wait_lg(it[1])
        else: raise ValueError(it)
    def emit_items(its):
        for it in its: emit_item(it)
    def srd_items(d, p, nbytes, addoff=None):
        out = []
        if addoff is None:
            out.append(("s", f"s_mov_b32 s{d}, s{p}"))
            out.append(("s", f"s_and_b32 s{d+1}, s{p+1}, 0xffff"))
        else:
            out.append(("s", f"s_add_u32 s{d}, s{p}, s{addoff}"))
            out.append(("s", f"s_addc_u32 s{d+1}, s{p+1}, 0"))
            out.append(("s", f"s_and_b32 s{d+1}, s{d+1}, 0xffff"))
        out.append(("s", f"s_mov_b32 s{d+2}, {nbytes}"))
        out.append(("s", f"s_mov_b32 s{d+3}, 0x00020000"))
        return out
    def srd(*a, **k): emit_items(srd_items(*a, **k))
    def fieldoff(i): return (16 * (i // 4) + i % 4) * 131072
    def bload(i):
        out = []
        if i < 24: out.append(("s", f"s_add_u32 s{sBoff}, s{sBbase}, {fieldoff(i)}"))
        else: out.append(("s", f"s_mov_b32 s{sBoff}, s{sB24}"))
        for jj in range(4):
            vo = vB0 if jj < 2 else vB1
            out.append(("vm", f"buffer_load_dwordx4 {raw(i,jj)}, v{vo}, s[{sW1}:{sW1+3}], s{sBoff} offen offset:{(jj%2)*2048}", f"raw{i}"))
        return out
    def idx_dma(c):
        out = []
        if c < 6:
            out.append(("s", f"s_lshl_b32 s{sT0}, s{sW}, 11"))
            out.append(("s", f"s_mul_i32 s{sT1}, s{sW}, 12800"))
            for h in range(2):
                out.append(("s", f"s_add_u32 m0, s{sT0}, {IDXC(c) + h*1024}"))
                out.append(("s", f"s_add_u32 s{sT2}, s{sT1}, {h*6400 + c*64}"))
                out.append(("vm", f"buffer_load_dwordx4 v{vIXo}, s[{sIX}:{sIX+3}], s{sT2} offen lds", f"idxd{c}"))
        else:
            out.append(("s", f"s_and_b32 s{sT0}, s{sW}, 1"))
            out.append(("s", f"s_mul_i32 s{sT1}, s{sT0}, 25600"))
            out.append(("s", f"s_lshl_b32 s{sT0}, s{sT0}, 10"))
            out.append(("s", f"s_add_u32 m0, s{sT0}, {IDXL}"))
            out.append(("s", "s_nop 0"))
            out.append(("vm", f"buffer_load_dwordx4 v{vIXl}, s[{sIX}:{sIX+3}], s{sT1} offen lds", f"idxd{c}"))
        return out
    def touch_grp(m, dst):
        out = [("s", f"s_lshl_b32 s{sT0}, s{sMIi}, 12")]
        if m < 6:
            out.append(("s", f"s_add_u32 s{sT0}, s{sT0}, s{sBbase}"))
            if m: out.append(("s", f"s_add_u32 s{sT0}, s{sT0}, {m<<21}"))
            out.append(("vm", f"buffer_load_dword v{dst}, v{vTo16}, s[{sW1}:{sW1+3}], s{sT0} offen", "touch"))
        else:
            out.append(("s", f"s_add_u32 s{sT0}, s{sT0}, s{sB24}"))
            out.append(("vm", f"buffer_load_dword v{dst}, v{vTo4}, s[{sW1}:{sW1+3}], s{sT0} offen", "touch"))
        return out
    def xp(i, k):
        cp, jj = k // 4, k % 4
        t = vDT + (k % 4)
        return (("v", f"v_mov_b32_dpp v{t}, {raw(i, jj, cp)} row_ror:8 row_mask:0xf bank_mask:0xf"),
                ("v", f"v_perm_b32 v{vBF + (i%2)*16 + cp*4 + jj}, v{t}, {raw(i, jj, cp)}, v{vSel}"))

    E.lab(NAME)
    e("s_cmp_ge_u32 s2, 256")
    e("s_cbranch_scc1 L_END")
    e("s_load_dwordx16 s[24:39], s[0:1], 0")
    e("s_load_dwordx8 s[40:47], s[0:1], 64")
    if TS:
        e(f"{'s_memrealtime' if rt else 's_memtime'} s[{sTS}:{sTS+1}]"); tsn[0] = 1
    e(f"s_getpc_b64 s[{sPC}:{sPC+1}]")
    E.lab("L_PCREF")
    e(f"v_and_b32 v{vLane}, 63, v0")
    e(f"v_lshrrev_b32 v{vTmp}, 6, v0")
    e(f"v_and_b32 v{vC}, 15, v0")
    e(f"v_readfirstlane_b32 s{sW}, v{vTmp}")
    e(f"s_lshr_b32 s{sT0}, s2, 3")
    e(f"s_lshl_b32 s{sX}, s{sT0}, 2")
    e(f"v_mov_b32 v{vTmp+5}, 0x{OOB:x}")
    e(f"s_add_u32 s{sX}, s{sX}, s{sW}")
    if codetouch:
        e(f"v_lshlrev_b32 v{vTmp}, 14, v{vLane}")
        e(f"s_lshl_b32 s{sT1}, s{sX}, 7")
        e(f"v_add_u32 v{vTmp}, s{sT1}, v{vTmp}")
        e(f"s_mov_b32 s{sT1}, L_CODE_END-L_PCREF")
        e(f"v_cmp_gt_u32 vcc, s{sT1}, v{vTmp}")
        e(f"s_and_saveexec_b64 s[{sIXF}:{sIXF+1}], vcc")
        e("s_cbranch_execz L_NOCT")
        E.vm(f"global_load_dword v{vTouch}, v{vTmp}, s[{sPC}:{sPC+1}]", "touchC")
        E.lab("L_NOCT")
        e(f"s_mov_b64 exec, s[{sIXF}:{sIXF+1}]")
    e(f"v_lshrrev_b32 v{vQ4}, 4, v{vLane}")
    e(f"s_and_b32 s{sNI}, s2, 7")
    e(f"s_and_b32 s{sS}, s{sT0}, 3")
    e(f"s_lshr_b32 s{sMIi}, s{sT0}, 2")
    e(f"s_lshl_b32 s{sP}, s{sNI}, 2")
    e(f"s_add_u32 s{sP}, s{sP}, s{sS}")
    e(f"s_movk_i32 s{s80}, 80")
    e(f"s_lshl_b32 s{sT0}, s{sS}, 15")
    e(f"s_lshl_b32 s{sT1}, s{sNI}, 7")
    e(f"s_add_u32 s{sT0}, s{sT0}, s{sT1}")
    e(f"s_lshl_b32 s{sT1}, s{sW}, 19")
    e(f"s_add_u32 s{sBbase}, s{sT0}, s{sT1}")
    e(f"s_add_u32 s{sT1}, s{sW}, 96")
    e(f"s_lshl_b32 s{sT1}, s{sT1}, 17")
    e(f"s_add_u32 s{sB24}, s{sT0}, s{sT1}")
    e(f"v_lshlrev_b32 v{vTmp}, 7, v{vLane}")
    e(f"v_cmp_gt_u32 vcc, 16, v{vLane}")
    e(f"v_lshrrev_b32 v{vTmp+3}, 1, v{vLane}")
    e(f"v_mul_u32_u24 v{vTmp+3}, 400, v{vTmp+3}")
    e(f"v_cndmask_b32 v{vTouch+3}, v{vTmp+5}, v{vTmp}, vcc")
    e(f"v_and_b32 v{vTmp+4}, 1, v{vLane}")
    e(f"v_mul_u32_u24 v{vTmp+4}, 60, v{vTmp+4}")
    e(f"v_add_u32 v{vTmp+3}, v{vTmp+3}, v{vTmp+4}")
    e(f"v_cndmask_b32 v{vTouch+4}, v{vTmp+5}, v{vTmp+3}, vcc")
    e(f"v_lshlrev_b32 v{vTmp}, 21, v{vQ4}")
    e(f"v_bfe_u32 v{vTmp+3}, v{vLane}, 2, 2")
    e(f"v_lshl_add_u32 v{vTmp}, v{vTmp+3}, 17, v{vTmp}")
    e(f"v_and_b32 v{vTmp+3}, 3, v{vLane}")
    e(f"v_lshl_add_u32 v{vTmp}, v{vTmp+3}, 10, v{vTmp}")
    e(f"v_bfe_u32 v{vTmp+2}, v0, 3, 1")
    e(f"v_cndmask_b32 v{vTo16}, v{vTmp+5}, v{vTmp}, vcc")
    e(f"v_cmp_gt_u32 vcc, 48, v{vLane}")
    e(f"v_lshlrev_b32 v{vB0}, 13, v{vQ4}")
    e(f"v_lshl_add_u32 v{vB0}, v{vTmp+2}, 10, v{vB0}")
    e(f"v_cndmask_b32 v{vTo48}, v{vTmp+5}, v{vTmp}, vcc")
    e(f"v_cmp_gt_u32 vcc, 4, v{vLane}")
    e(f"v_and_b32 v{vTmp+1}, 7, v0")
    e(f"v_lshl_add_u32 v{vB0}, v{vTmp+1}, 4, v{vB0}")
    e(f"v_cndmask_b32 v{vTo4}, v{vTmp+5}, v{vTmp}, vcc")
    e(f"v_add_u32 v{vB1}, 0x1000, v{vB0}")
    e(f"v_lshrrev_b32 v{vTmp}, 2, v{vLane}")
    e(f"v_and_b32 v{vTmp+1}, 3, v{vLane}")
    e(f"v_lshlrev_b32 v{vTmp+1}, 4, v{vTmp+1}")
    e(f"v_lshl_add_u32 v{vTBo}, v{vTmp}, 8, v{vTmp+1}")
    e(f"v_mad_u32_u24 v{vTBw}, v{vTmp}, s{s80}, v{vTmp+1}")
    e(f"s_mul_i32 s{sT0}, s{sW}, 20480")
    e(f"v_add_u32 v{vTBw}, s{sT0}, v{vTBw}")
    e(f"s_movk_i32 s{sT1}, 400")
    e(f"v_mul_u32_u24 v{vIXo}, s{sT1}, v{vTmp}")
    e(f"v_and_b32 v{vTmp+1}, 3, v{vLane}")
    e(f"v_xor_b32 v{vTmp}, v{vQ4}, v{vTmp+1}")
    e(f"v_lshl_add_u32 v{vIXo}, v{vTmp}, 4, v{vIXo}")
    e(f"v_mul_u32_u24 v{vIXl}, s{sT1}, v{vLane}")
    e(f"v_add_u32 v{vIXl}, 384, v{vIXl}")
    e("s_waitcnt lgkmcnt(0)")
    stamp("kernarg")
    srd(sTB, P_TBL, 256000)
    srd(sIXF, P_IDX, 409600)
    if touch:
        e(f"s_lshl_b32 s{sT0}, s{sX}, 11")
        E.vm(f"buffer_load_dword v{vTouch}, v{vTouch+3}, s[{sTB}:{sTB+3}], s{sT0} offen", "touchA")
        e(f"s_mul_i32 s{sT0}, s{sX}, 3200")
        E.vm(f"buffer_load_dword v{vTouch+1}, v{vTouch+4}, s[{sIXF}:{sIXF+3}], s{sT0} offen", "touchA")
    e(f"s_lshl_b32 s{sT1}, s{sW}, 16")
    e(f"s_lshl_b32 s{sT2}, s{sS}, 6")
    e(f"s_add_u32 s{sT1}, s{sT1}, s{sT2}")
    for n in range(16):
        if n > 0: e(f"s_add_u32 s{sT1}, s{sT1}, 4096")
        E.vm(f"buffer_load_dwordx4 {ar(aTB+4*n,4)}, v{vTBo}, s[{sTB}:{sTB+3}], s{sT1} offen", f"tbl{n}")
    e(f"s_mul_i32 s{sT3}, s{sMIi}, 51200")
    srd(sIX, P_IDX, 51200, addoff=sT3)
    emit_items(idx_dma(0))
    srd(sW1, P_W1, 13107200)
    emit_items(bload(0))
    if touch:
        e(f"s_lshl_b32 s{sT0}, s{sMIi}, 12")
        e(f"s_add_u32 s{sT0}, s{sT0}, s{sBbase}")
        E.vm(f"buffer_load_dword v{vTouch+2}, v{vTo48}, s[{sW1}:{sW1+3}], s{sT0} offen", "touchB")
    stamp("issued")
    e(f"v_mov_b32 v{vSel}, 0x05040100")
    e(f"v_mov_b32 v{vTmp+3}, 0x03020706")
    e(f"v_cmp_eq_u32 vcc, 1, v{vTmp+2}")
    e(f"v_lshlrev_b32 v{vQ}, 4, v{vQ4}")
    e(f"v_lshlrev_b32 v{vL16}, 4, v{vLane}")
    e(f"v_cndmask_b32 v{vSel}, v{vSel}, v{vTmp+3}, vcc")
    for n in range(8):
        E.wait_vm(f"tbl{n}")
        E.lg(f"ds_write_b128 v{vTBw}, {ar(aTB+4*n,4)} offset:{n*1280}", "tblw")
    e(f"v_bfe_u32 v{vTmp}, v{vC}, 2, 2")
    e(f"v_xor_b32 v{vTmp}, s{sW}, v{vTmp}")
    e(f"v_lshlrev_b32 v{vTmp}, 4, v{vTmp}")
    e(f"v_lshl_add_u32 v{vTmp}, v{vC}, 6, v{vTmp}")
    e(f"v_lshlrev_b32 v{vTmp+1}, 4, v{vC}")
    e(f"s_lshl_b32 s{sT0}, s{sW}, 1")
    e(f"s_lshl_b32 s{sT1}, s{sW}, 2")
    for tp in range(8):
        e(f"s_add_u32 s{sT2}, s{sT0}, {tp}")
        e(f"s_and_b32 s{sT2}, s{sT2}, 7")
        e(f"s_lshl_b32 s{sT3}, s{sT2}, 10")
        e(f"s_add_u32 s{sT3}, s{sT3}, {IDXC(5)}")
        e(f"v_add_u32 v{vIA+tp}, s{sT3}, v{vTmp}")
        e(f"s_lshl_b32 s{sT3}, s{sT2}, 8")
        e(f"s_add_u32 s{sT3}, s{sT3}, s{sT1}")
        e(f"s_add_u32 s{sT3}, s{sT3}, {IDXL}")
        e(f"v_add_u32 v{vIA2+tp}, s{sT3}, v{vTmp+1}")
    for n in range(8, 16):
        E.wait_vm(f"tbl{n}")
        E.lg(f"ds_write_b128 v{vTBw}, {ar(aTB+4*n,4)} offset:{n*1280}", "tblw")
    e(f"s_or_b32 s{sT0}, s2, s{sW}")
    e(f"s_cmp_lg_u32 s{sT0}, 0")
    e("s_cbranch_scc1 L_NONONCE")
    e(f"s_memrealtime s[{sT2}:{sT3}]")
    srd(sDBG, P_DBG, 256)
    e("s_waitcnt lgkmcnt(0)")
    e(f"s_and_b32 s{sT2}, s{sT2}, 0xffffff")
    e(f"s_or_b32 s{sT2}, s{sT2}, 0x80000000")
    e(f"v_mov_b32 v{vTmp}, s{sT2}")
    e(f"v_mov_b32 v{vTmp+1}, 0")
    e(f"s_mov_b64 s[{sSt}:{sSt+1}], exec")
    e("s_mov_b64 exec, 1")
    e(f"buffer_store_dword v{vTmp}, v{vTmp+1}, s[{sDBG}:{sDBG+3}], 0 offen sc1")
    e(f"s_mov_b64 exec, s[{sSt}:{sSt+1}]")
    E.lab("L_NONONCE")
    emit_items(bload(1))
    emit_items(idx_dma(1))
    E.wait_vm("raw0")
    for k in range(16):
        d, p = xp(0, k)
        emit_item(d); emit_item(p)
    stamp("tblw")
    E.wait_vm("idxd0")
    E.wait_all(vm=False, lg=True)
    e("s_barrier")
    stamp("barrier1")
    if pro:
        e("s_branch L_TS2")
        nostamp[0] = True

    def idx_read_items(group):
        out = []
        for tp in range(8):
            if group < 6:
                out.append(("lg", f"ds_read_b128 {vr(vI+4*tp,4)}, v{vIA+tp} offset:{(5-group)*8192}", f"idx{group}_{tp}"))
            else:
                out.append(("lg", f"ds_read_b32 v{vI+4*tp}, v{vIA2+tp}", f"idx{group}_{tp}"))
        return out
    def addr_item(i, tp):
        comp = i % 4 if i < 24 else 0
        return ("v", f"v_mad_u32_u24 v{vGA+tp}, v{vI+4*tp+comp}, s{s80}, v{vQ}")
    def gather_item(i, tp):
        return ("lg", f"ds_read_b128 {afrag(tp)}, v{vGA+tp} offset:{TBL}", f"g{i}_{tp}")

    emit_items(idx_read_items(0))
    emit_items(bload(2))
    for tp in range(8):
        E.wait_lg(f"idx0_{tp}")
        emit_item(addr_item(0, tp))
        emit_item(gather_item(0, tp))

    def small_items():
        out = []
        def S(x): out.append(("s", x))
        def V(x): out.append(("v", x))
        out += srd_items(sWS, P_WS, 8 << 20 if not TS else 32 << 20)
        out += srd_items(sDBG, P_DBG, 256)
        V(f"v_mov_b32 v{vTmp+5}, 0")
        out.append(("vm", f"buffer_load_dword v{vFL}, v{vTmp+5}, s[{sDBG}:{sDBG+3}], 0 offen sc1", "nonce"))
        out += srd_items(sOUT, P_OUT, 2048)
        V(f"v_and_b32 v{vTmp}, 7, v{vLane}")
        V(f"v_lshlrev_b32 v{vTmp}, 3, v{vTmp}")
        V(f"v_lshl_add_u32 v{vTmp}, v{vQ4}, 1, v{vTmp}")
        V(f"v_bfe_u32 v{vTmp+1}, v{vLane}, 3, 1")
        V(f"v_add_u32 v{vTmp}, v{vTmp}, v{vTmp+1}")
        S(f"s_lshl_b32 s{sT0}, s{sW}, 7")
        V(f"v_add_u32 v{vTmp}, s{sT0}, v{vTmp}")
        V(f"v_lshlrev_b32 v{vTmp}, 1, v{vTmp}")
        out += srd_items(sMI, P_B1, 1024)
        out.append(("vm", f"buffer_load_ushort v{vB1a}, v{vTmp}, s[{sMI}:{sMI+3}], 0 offen", "small"))
        out.append(("vm", f"buffer_load_ushort v{vB1b}, v{vTmp}, s[{sMI}:{sMI+3}], 0 offen offset:128", "small"))
        out += srd_items(sMI, P_W2, 1024)
        out.append(("vm", f"buffer_load_ushort v{vW2a}, v{vTmp}, s[{sMI}:{sMI+3}], 0 offen", "small"))
        out.append(("vm", f"buffer_load_ushort v{vW2b}, v{vTmp}, s[{sMI}:{sMI+3}], 0 offen offset:128", "small"))
        S(f"s_lshl_b32 s{sT0}, s{sMIi}, 7")
        S(f"s_lshl_b32 s{sT1}, s{sP}, 2")
        S(f"s_add_u32 s{sT0}, s{sT0}, s{sT1}")
        V(f"v_add_u32 v{vTmp+1}, s{sT0}, v{vQ4}")
        V(f"v_lshlrev_b32 v{vOUTO}, 1, v{vTmp+1}")
        V(f"v_mul_u32_u24 v{vTmp+1}, 13, v{vTmp+1}")
        V(f"v_add_u32 v{vTmp+1}, v{vTmp+1}, v{vC}")
        V(f"v_lshlrev_b32 v{vTmp+1}, 1, v{vTmp+1}")
        V(f"v_mov_b32 v{vTmp+2}, 0x7fffff00")
        V(f"v_cmp_gt_u32 vcc, 13, v{vC}")
        S("s_nop 1")
        V(f"v_cndmask_b32 v{vTmp+1}, v{vTmp+2}, v{vTmp+1}, vcc")
        V(f"v_lshlrev_b32 v{vTmp+2}, 1, v{vC}")
        out += srd_items(sMI, P_XW, 26624)
        out.append(("vm", f"buffer_load_ushort v{vXW}, v{vTmp+1}, s[{sMI}:{sMI+3}], 0 offen", "small"))
        out += srd_items(sMI, P_WW, 26)
        out.append(("vm", f"buffer_load_ushort v{vWW}, v{vTmp+2}, s[{sMI}:{sMI+3}], 0 offen", "small"))
        out += srd_items(sMI, P_BW, 2)
        out.append(("vm", f"buffer_load_ushort v{vBW}, v{vTmp+5}, s[{sMI}:{sMI+3}], 0 offen", "small"))
        out += srd_items(sMI, P_B2, 2)
        out.append(("vm", f"buffer_load_ushort v{vB2}, v{vTmp+5}, s[{sMI}:{sMI+3}], 0 offen", "small"))
        for dd in range(1, 4):
            S(f"s_add_u32 s{sT0}, s{sW}, {dd}")
            S(f"s_and_b32 s{sT0}, s{sT0}, 3")
            S(f"s_mul_i32 s{sT0}, s{sT0}, 12288")
            S(f"s_add_u32 s{sT0}, s{sT0}, {T1B + (dd-1)*4096}")
            V(f"v_add_u32 v{vW+dd-1}, s{sT0}, v{vL16}")
        S(f"s_mul_i32 s{sT0}, s{sW}, 12288")
        S(f"s_add_u32 s{sT0}, s{sT0}, {T1B}")
        V(f"v_add_u32 v{vRD}, s{sT0}, v{vL16}")
        S(f"s_lshl_b32 s{sT0}, s{sMIi}, 5")
        V(f"v_lshlrev_b32 v{vST}, 15, v{vQ4}")
        V(f"v_lshl_add_u32 v{vST}, v{vC}, 4, v{vST}")
        S(f"s_lshl_b32 s{sT1}, s{sW}, 3")
        S(f"s_add_u32 s{sT1}, s{sT0}, s{sT1}")
        S(f"s_lshl_b32 s{sT1}, s{sT1}, 15")
        S(f"s_lshl_b32 s{sT2}, s{sP}, 10")
        S(f"s_add_u32 s{sSt}, s{sT1}, s{sT2}")
        S(f"s_add_u32 s{sSt+1}, s{sSt}, {4*32768}")
        S(f"s_add_u32 s{sT1}, s{sT0}, s{sP}")
        S(f"s_lshl_b32 s{sT1}, s{sT1}, 15")
        S(f"s_lshl_b32 s{sT2}, s{sW}, 13")
        S(f"s_add_u32 s{sIn0}, s{sT1}, s{sT2}")
        V(f"v_lshlrev_b32 v{vIND}, 7, v{vLane}")
        S(f"s_mov_b32 s{sMask}, 0xffffffc0")
        out.append(("wvm", "nonce"))
        for r in range(4): V(f"v_bfe_u32 v{vTag+r}, v{vFL}, {6*r}, 6")
        return out
    smalls = small_items()
    SM_FIRST = 14

    OFF = {0: 49152, 1: 0}
    def t1_write(tp, n4):
        dd, sub = tp // 2, tp % 2
        a = aACC + ((tp - 2) * 4 + n4) * 4
        return f"ds_write_b128 v{vW+dd-1}, {ar(a,4)} offset:{OFF[sub] + n4*1024}"

    idx_dma_at = {1: 2, 3: 3, 7: 4, 9: 5, 11: 6}
    idx_bar_at = {1: "idxd1", 2: "idxd3", 4: "idxd6"}
    touch_at = {0: 3, 4: 4, 8: 5, 12: 6}
    for i in range(NSTEP):
        nxt = i + 1 < NSTEP
        last = not nxt
        E.c(f"---- step {i}")
        if i in stepstamps: stamp(f"s{i}")
        fill = [[] for _ in range(32)]
        order = list(range(8))
        if last and earlyw: order = [2, 4, 6, 0, 1, 3, 5, 7]
        if nxt:
            fill[0].append(("wvm", f"raw{i+1}"))
            for k in range(16):
                d, p = xp(i + 1, k)
                fill[2 * k].append(d)
                fill[2 * k + 1].append(p)
            grp = (i + 1) // 4 if i + 1 < 24 else 6
            for tp in range(8):
                if (i + 1) % 4 == 0:
                    if tp in (0, 4): fill[4 * tp + 2].append(("wlg", f"idx{grp}_{tp+3}"))
                fill[4 * tp + 2].append(addr_item(i + 1, tp))
                fill[4 * tp + 3].append(gather_item(i + 1, tp))
            if (i + 1) % 4 == 3 and i + 2 < NSTEP:
                grp2 = (i + 2) // 4 if i + 2 < 24 else 6
                its = idx_read_items(grp2)
                if grp2 in idx_bar_at:
                    fill[4].insert(0, ("wvm", idx_bar_at[grp2]))
                    fill[4].insert(1, ("s", "s_barrier"))
                for tp, it in enumerate(its):
                    g = min(4 * tp + 5, 31) if tp < 7 else 31
                    fill[g].append(it)
        lds_ = [3, 4] if i == 0 else ([i + R] if i + R < NSTEP else [])
        if R != 4: raise NotImplementedError
        for x, j in enumerate(lds_):
            ld = bload(j)
            gs = (4, 8, 12, 16) if x == 0 else (20, 24, 28, 30)
            fill[gs[0] - 3].append(ld[0])
            for q_, g in enumerate(gs): fill[g].append(ld[1 + q_])
        if i in idx_dma_at:
            its = idx_dma(idx_dma_at[i])
            gaps = [20, 20, 21, 21, 24, 25, 25, 28] if len(its) == 8 else [20, 20, 21, 21, 24, 24]
            for it, g in zip(its, gaps): fill[g].append(it)
        if touch and i in touch_at:
            for it in touch_grp(touch_at[i], vTouch + 4): fill[28].append(it)
        if SM_FIRST <= i < NSTEP - 1:
            nleft = NSTEP - 1 - i
            take = -(-len(smalls) // nleft)
            chunk = smalls[:take]; smalls = smalls[take:]
            gl = [g for g in range(32) if g % 4 in (0, 1) and g >= 5]
            per = -(-len(chunk) // len(gl))
            k = 0
            for g in gl:
                for _ in range(per):
                    if k < len(chunk): fill[g].append(chunk[k]); k += 1
        if last and earlyw:
            for pos, tp in enumerate([2, 4, 6]):
                base = 4 * pos + 4 + 6
                for n4 in range(4):
                    fill[base + n4].append(("lg", t1_write(tp, n4), "t1w"))
        for m in range(32):
            tp, n4 = order[m // 4], m % 4
            if m == 0: E.wait_lg(f"g{i}_{order[3] if not last else 7}" if not last else f"g{i}_7")
            if m == 16 and not last: E.wait_lg(f"g{i}_7")
            cin = "0" if i == 0 else acc(tp, n4)
            e(f"v_mfma_f32_16x16x32_bf16 {acc(tp,n4)}, {afrag(tp)}, {bfrag(i,n4)}, {cin}")
            for it in fill[m]: emit_item(it)
    assert not smalls
    stamp("loop")
    E.c("---- T1: intra-CU reduce + publish")
    def t1_reads(sub):
        for n4 in range(4):
            for k in range(3):
                E.lg(f"ds_read_b128 {vr(vT1+32*k+16*sub+4*n4,4)}, v{vRD} offset:{OFF[sub] + k*4096+n4*1024}", f"t1r{sub}{n4}_{k}")
    def t1_sum_store(sub, n4):
        b = sub * 16 + 4 * n4
        for k in range(3):
            for h in range(2):
                e(f"v_pk_add_f32 {vr(vACC0+b+2*h,2)}, {vr(vACC0+b+2*h,2)}, {vr(vT1+32*k+b+2*h,2)}")
        for r in range(4):
            e(f"v_and_or_b32 v{vACC0+b+r}, v{vACC0+b+r}, s{sMask}, v{vTag+r}")
        E.vm(f"buffer_store_dwordx4 {vr(vACC0+b,4)}, v{vST}, s[{sWS}:{sWS+3}], s{sSt+sub} offen offset:{n4*256} sc1", "pub")
    e(f"v_readfirstlane_b32 s{sT3}, v{vFL}")
    e(f"s_mov_b32 s{sCnt}, 0")
    e("s_nop 3")
    e(f"s_cmp_lt_i32 s{sT3}, 0")
    e("s_cbranch_scc0 L_NONCE_SLOW")
    E.lab("L_NONCEOK")
    if not earlyw:
        e("s_nop 7")
        for tp in (2, 4, 6):
            for n4 in range(4): E.lg(t1_write(tp, n4), "t1w")
    E.wait_all(vm=False, lg=True)
    e("s_barrier")
    t1_reads(0)
    w1 = [t1_write(tp, n4) for tp in (3, 5, 7) for n4 in range(4)]
    for n4 in range(4):
        E.wait_lg(f"t1r0{n4}_2")
        for x in range(3): E.lg(w1.pop(0), "t1w")
        t1_sum_store(0, n4)
    E.wait_all(vm=False, lg=True)
    e("s_barrier")
    t1_reads(1)
    for n4 in range(4):
        E.wait_lg(f"t1r1{n4}_2")
        t1_sum_store(1, n4)
    stamp("T1pub")
    E.c("---- T3: poll + finish")
    vIN = vT1
    vH = vT1 + 40
    vD = vT1 + 48
    vX = vT1 + 52
    vM = vT1 + 56
    vY = vT1 + 60
    e(f"s_mov_b32 s{sT2}, 0xffff0000")
    e(f"s_add_u32 s{sT1}, s{sIn0}, 4096")
    E.wait_vm("small")
    e(f"v_lshlrev_b32 v{vB1a}, 16, v{vB1a}")
    e(f"v_lshlrev_b32 v{vB1b}, 16, v{vB1b}")
    e(f"v_lshlrev_b32 v{vW2a}, 16, v{vW2a}")
    e(f"v_lshlrev_b32 v{vW2b}, 16, v{vW2b}")
    e(f"v_lshlrev_b32 v{vXW}, 16, v{vXW}")
    e(f"v_lshlrev_b32 v{vWW}, 16, v{vWW}")
    e(f"v_mul_f32 v{vXW}, v{vXW}, v{vWW}")
    e(f"v_lshlrev_b32 v{vBW}, 16, v{vBW}")
    e(f"v_lshlrev_b32 v{vB2}, 16, v{vB2}")
    for sh in (1, 2, 4, 8):
        e(f"v_add_f32_dpp v{vXW}, v{vXW}, v{vXW} row_shr:{sh} row_mask:0xf bank_mask:0xf")
        e("s_nop 1")
    def rnd(r):
        e(f"v_cvt_pk_bf16_f32 v{r}, v{r}, v{r}")
        e(f"v_and_b32 v{r}, s{sT2}, v{r}")
    rnd(vXW)
    e(f"v_add_f32 v{vXW}, v{vXW}, v{vBW}")
    rnd(vXW)
    so = [sIn0] * 4 + [sT1] * 4
    offs = [(k % 4) * 1024 for k in range(8)]
    if "drain" in stamps:
        e("s_waitcnt vmcnt(0)")
        stamp("drain")
    if not direct:
        e("s_branch L_IND1")
        E.lab("L_IND")
        e(f"s_sleep {sleep}")
        E.lab("L_IND1")
        e(f"buffer_load_dword v{vM+3}, v{vIND}, s[{sWS}:{sWS+3}], s{sIn0} offen sc1")
        e("s_waitcnt vmcnt(0)")
        e(f"v_xor_b32 v{vM+3}, v{vM+3}, v{vTag}")
        e(f"v_and_b32 v{vM+3}, 63, v{vM+3}")
        e(f"v_cmp_ne_u32 vcc, 0, v{vM+3}")
        e("s_cbranch_vccz L_INDOK")
        e(f"s_add_u32 s{sCnt}, s{sCnt}, 1")
        e(f"s_cmp_gt_u32 s{sCnt}, 100000")
        e("s_cbranch_scc0 L_IND")
        E.lab("L_INDOK")
        stamp("ind")
    e("s_branch L_POLL1")
    E.lab("L_POLL")
    e(f"s_sleep {sleep}")
    E.lab("L_POLL1")
    for k in range(8):
        e(f"buffer_load_dwordx4 {vr(vIN+4*k,4)}, v{vL16}, s[{sWS}:{sWS+3}], s{so[k]} offen offset:{offs[k]} sc1")
    e("s_waitcnt vmcnt(0)")
    E.vmq = []
    for k in range(32): e(f"v_xor_b32 v{vIN+k}, v{vIN+k}, v{vTag+(k%4)}")
    e(f"v_or3_b32 v{vM}, v{vIN}, v{vIN+1}, v{vIN+2}")
    e(f"v_or3_b32 v{vM+1}, v{vIN+3}, v{vIN+4}, v{vIN+5}")
    for k in range(6, 30, 4):
        e(f"v_or3_b32 v{vM}, v{vM}, v{vIN+k}, v{vIN+k+1}")
        e(f"v_or3_b32 v{vM+1}, v{vM+1}, v{vIN+k+2}, v{vIN+k+3}")
    e(f"v_or3_b32 v{vM}, v{vM}, v{vIN+30}, v{vIN+31}")
    e(f"v_or_b32 v{vM}, v{vM}, v{vM+1}")
    e(f"v_and_b32 v{vM}, 63, v{vM}")
    e(f"v_cmp_ne_u32 vcc, 0, v{vM}")
    e("s_cbranch_vccz L_POLLOK")
    e(f"s_add_u32 s{sCnt}, s{sCnt}, 1")
    e(f"s_cmp_gt_u32 s{sCnt}, 100000")
    e("s_cbranch_scc0 L_POLL")
    E.lab("L_POLLOK")
    stamp("poll")
    for off in (4, 8, 12):
        for nl in range(2):
            b = vIN + 16 * nl
            for h in range(2):
                a0 = vr(b + 2 * h, 2) if off == 4 else vr(vH + 4 * nl + 2 * h, 2)
                e(f"v_pk_add_f32 {vr(vH+4*nl+2*h,2)}, {a0}, {vr(b+off+2*h,2)}")
    hs = [vH + k for k in range(8)]
    for h in hs: e(f"v_cvt_pk_bf16_f32 v{h}, v{h}, v{h}")
    for h in hs: e(f"v_and_b32 v{h}, s{sT2}, v{h}")
    for k, h in enumerate(hs): e(f"v_add_f32 v{h}, v{h}, v{vB1a if k < 4 else vB1b}")
    for h in hs: e(f"v_cvt_pk_bf16_f32 v{h}, v{h}, v{h}")
    for h in hs: e(f"v_and_b32 v{h}, s{sT2}, v{h}")
    for half in range(2):
        for r in range(4):
            k = 4 * half + r
            e(f"v_cmp_lt_f32 s[{sSt+2*(r%2)}:{sSt+2*(r%2)+1}], 0, v{hs[k]}")
            if r % 2 == 1:
                e("s_nop 0")
                e(f"v_cndmask_b32 v{vY+k-1}, 0, 1.0, s[{sSt}:{sSt+1}]")
                e(f"v_cndmask_b32 v{vY+k}, 0, 1.0, s[{sSt+2}:{sSt+3}]")
    for k, h in enumerate(hs): e(f"v_mul_f32 v{h}, v{h}, v{vY+k}")
    for r in range(4): e(f"v_mul_f32 v{vD+r}, v{hs[r]}, v{vW2a}")
    for r in range(4): e(f"v_fmac_f32 v{vD+r}, v{hs[4+r]}, v{vW2b}")
    regs = [vD, vD + 1, vD + 2, vD + 3]
    for sh in (1, 2, 4, 8):
        for rg in regs: e(f"v_add_f32_dpp v{rg}, v{rg}, v{rg} row_shr:{sh} row_mask:0xf bank_mask:0xf")
    for rg in regs: e(f"v_add_f32_dpp v{rg}, v{rg}, v{rg} row_bcast:15 row_mask:0xa bank_mask:0xf")
    for rg in regs: e(f"v_add_f32_dpp v{rg}, v{rg}, v{rg} row_bcast:31 row_mask:0xc bank_mask:0xf")
    e(f"s_lshl_b32 s{sT0}, s{sW}, 4")
    e(f"s_add_u32 s{sT0}, s{sT0}, {FIN}")
    e(f"v_mov_b32 v{vX}, s{sT0}")
    e(f"s_mov_b64 s[{sIXF}:{sIXF+1}], exec")
    e("s_mov_b32 exec_lo, 0")
    e("s_mov_b32 exec_hi, 0x80000000")
    e(f"ds_write_b128 v{vX}, {vr(vD,4)}")
    e(f"s_mov_b64 exec, s[{sIXF}:{sIXF+1}]")
    e(f"v_lshlrev_b32 v{vX+1}, 2, v{vQ4}")
    e(f"v_add_u32 v{vX+1}, {FIN}, v{vX+1}")
    e("s_waitcnt lgkmcnt(0)")
    e("s_barrier")
    e(f"s_cmp_lg_u32 s{sW}, 0")
    e("s_cbranch_scc1 L_TS")
    for k in range(4): e(f"ds_read_b32 v{vD+k}, v{vX+1} offset:{16*k}")
    e("s_waitcnt lgkmcnt(0)")
    e(f"v_add_f32 v{vD}, v{vD}, v{vD+1}")
    e(f"v_add_f32 v{vD+2}, v{vD+2}, v{vD+3}")
    e(f"v_add_f32 v{vD}, v{vD}, v{vD+2}")
    rnd(vD)
    e(f"v_add_f32 v{vD}, v{vD}, v{vB2}")
    rnd(vD)
    e(f"v_add_f32 v{vD}, v{vD}, v{vXW}")
    rnd(vD)
    e(f"v_mul_f32 v{vD}, 0xbfb8aa3b, v{vD}")
    e(f"v_exp_f32 v{vD}, v{vD}")
    e("s_nop 0")
    e(f"v_add_f32 v{vD}, 1.0, v{vD}")
    e(f"v_rcp_f32 v{vD}, v{vD}")
    e("s_nop 0")
    e(f"v_cvt_pk_bf16_f32 v{vD}, v{vD}, v{vD}")
    e("s_mov_b32 exec_lo, 0x80008000")
    e("s_mov_b32 exec_hi, 0x80008000")
    e(f"buffer_store_short v{vD}, v{vOUTO}, s[{sOUT}:{sOUT+3}], 0 offen")
    e("s_mov_b64 exec, -1")
    E.lab("L_TS")
    if pro:
        e("s_branch L_END")
        E.lab("L_TS2")
        srd(sWS, P_WS, 32 << 20)
        srd(sDBG, P_DBG, 256)
    if TS:
        nostamp[0] = pro
        stamp("end")
        nostamp[0] = False
        if rt:
            e(f"v_mov_b32 v{vTmp}, 16")
            e(f"v_mov_b32 v{vTmp+1}, 1")
            e("s_mov_b64 exec, 1")
            e(f"buffer_atomic_add v{vTmp+1}, v{vTmp}, s[{sDBG}:{sDBG+3}], 0 offen sc1")
            e("s_waitcnt vmcnt(0)")
            e(f"s_mov_b32 s{sCnt}, 0")
            E.lab("L_CAL")
            e(f"buffer_load_dword v{vTmp+2}, v{vTmp}, s[{sDBG}:{sDBG+3}], 0 offen sc1")
            e("s_waitcnt vmcnt(0)")
            e(f"v_readfirstlane_b32 s{sT0}, v{vTmp+2}")
            e(f"s_add_u32 s{sCnt}, s{sCnt}, 1")
            e(f"s_cmp_gt_u32 s{sCnt}, 20000")
            e("s_cbranch_scc1 L_CALOK")
            e(f"s_cmp_lt_u32 s{sT0}, 1024")
            e("s_cbranch_scc1 L_CAL")
            E.lab("L_CALOK")
            stamp("cal")
            e("s_mov_b64 exec, -1")
        n = tsn[0]
        assert sTS + 2 * n <= 102, n
        e(f"s_lshl_b32 s{sT0}, s2, 2")
        e(f"s_add_u32 s{sT0}, s{sT0}, s{sW}")
        e(f"s_lshl_b32 s{sT0}, s{sT0}, 6")
        e(f"s_add_u32 s{sT0}, s{sT0}, {16<<20}")
        e(f"v_mov_b32 v{vTmp}, 0")
        e("s_mov_b64 exec, 1")
        for k in range(n):
            if rt: e(f"s_mov_b32 s{sT1}, s{sTS+2*k}")
            else: e(f"s_sub_u32 s{sT1}, s{sTS+2*k}, s{sTS}")
            e(f"v_mov_b32 v{vTmp+1}, s{sT1}")
            e(f"buffer_store_dword v{vTmp+1}, v{vTmp}, s[{sWS}:{sWS+3}], s{sT0} offen offset:{4*k}")
    e("s_branch L_END")
    E.lab("L_NONCE_SLOW")
    e(f"buffer_load_dword v{vFL}, v{vTmp+5}, s[{sDBG}:{sDBG+3}], 0 offen sc1")
    e("s_waitcnt vmcnt(0)")
    e(f"v_readfirstlane_b32 s{sT3}, v{vFL}")
    e(f"s_add_u32 s{sCnt}, s{sCnt}, 1")
    e("s_nop 3")
    e(f"s_cmp_gt_u32 s{sCnt}, 200000")
    e("s_cbranch_scc1 L_NONCE_FIX")
    e(f"s_cmp_lt_i32 s{sT3}, 0")
    e("s_cbranch_scc0 L_NONCE_SLOW")
    E.lab("L_NONCE_FIX")
    for r in range(4): e(f"v_bfe_u32 v{vTag+r}, v{vFL}, {6*r}, 6")
    e("s_branch L_NONCEOK")
    E.lab("L_END")
    e("s_endpgm")
    E.lab("L_CODE_END")

    out = [HDR + f"; @launch grid=(256,1,1) block=(256,1,1) lds={LDS_TOTAL}",
           '.amdgcn_target "amdgcn-amd-amdhsa--gfx950"', ".text", f".globl {NAME}", ".p2align 8",
           f".type {NAME},@function"]
    out += E.L
    out += ['.section .rodata,"a"', ".p2align 6", f".amdhsa_kernel {NAME}",
            "  .amdhsa_next_free_vgpr 384", "  .amdhsa_next_free_sgpr 102", "  .amdhsa_accum_offset 256",
            "  .amdhsa_group_segment_fixed_size 0", "  .amdhsa_kernarg_size 96", "  .amdhsa_user_sgpr_count 2",
            "  .amdhsa_user_sgpr_kernarg_segment_ptr 1", "  .amdhsa_system_sgpr_workgroup_id_x 1",
            ".end_amdhsa_kernel"]
    return "\n".join(out) + "\n", names

if __name__ == "__main__":
    ap = argparse.ArgumentParser()
    ap.add_argument("-o", default="k.s")
    ap.add_argument("-R", type=int, default=4)
    ap.add_argument("--ts", default=None)
    ap.add_argument("--notouch", action="store_true")
    ap.add_argument("--nocodetouch", action="store_true")
    ap.add_argument("--sleep", type=int, default=4)
    ap.add_argument("--steps", default="")
    ap.add_argument("--pro", action="store_true")
    ap.add_argument("--rt", action="store_true")
    ap.add_argument("--direct", action="store_true")
    ap.add_argument("--noearlyw", action="store_true")
    a = ap.parse_args()
    st = tuple(a.ts.split(",")) if a.ts else ()
    steps = tuple(int(x) for x in a.steps.split(",") if x)
    st = st + tuple(f"s{x}" for x in steps)
    txt, names = gen(R=a.R, TS=a.ts is not None, touch=not a.notouch, stamps=st, sleep=a.sleep,
                     codetouch=not a.nocodetouch, stepstamps=steps, pro=a.pro, rt=a.rt, direct=a.direct, earlyw=not a.noearlyw)
    open(a.o, "w").write(txt)
    if a.ts: open(a.o.replace(".s", ".names"), "w").write(" ".join(names))
```

```python
import sys, argparse
from gen import Em, vr, ar, HDR, NAME

def gen(R=4, TS=False, NSTEP=25, touch=True, stamps=(), sleep=4, codetouch=True, stepstamps=(), pro=False, rt=False,
        direct=False, earlyw=True):
    E = Em()
    e = E.e
    OOB = 0x7ffffff0
    TBL = 0
    IDXL = 81920
    def IDXC(c): return 83968 + (5 - c) * 8192
    T1B = 51200
    FIN = T1B + 98304
    LDS_TOTAL = FIN + 64
    sW1, sTB, sIX, sWS, sMI = 4, 8, 12, 16, 20
    P_IDX, P_TBL, P_XW, P_WW, P_BW, P_W1, P_B1, P_W2, P_B2, P_OUT, P_DBG, P_WS = [24 + 2 * i for i in range(12)]
    sW = 3
    sNI, sS, sMIi, sP = 48, 49, 50, 51
    sT0, sT1, sT2, sT3 = 52, 53, 54, 55
    sBbase, sB24, sBoff = 56, 57, 58
    s80 = 59
    sX = 60
    sIn0 = 61
    sMask = 62
    sCnt = 63
    sDBG = 64
    sOUT = 68
    sSt = 72
    sIXF = 76
    sPC = 78
    sTS = 80
    vLane, vC, vQ4 = 1, 2, 3
    vB0, vB1, vQ = 4, 5, 6
    vL16 = 7
    vTmp = 8
    vB1a, vB1b, vW2a, vW2b = 14, 15, 16, 17
    vXW, vWW, vBW, vB2 = 18, 19, 20, 21
    vFL = 22
    vSel = 23
    vGA = 24
    vIA = 32
    vIA2 = 40
    vDT = 48
    vST = 52
    vW = 53
    vRD = 56
    vOUTO = 57
    vIND = 58
    vTag = 60
    vACC0 = 64
    vBF = 96
    vI = 128
    vRAW = 160
    assert vRAW + 16 * R <= 236
    vT1 = 96
    vTo48, vTo16, vTo4, vIXl, vIXo, vTBo, vTBw = 239, 240, 241, 242, 243, 244, 245
    vTouch = 250
    aACC = 0
    aAF = 96
    aTB = 0

    def acc(tp, n):
        if tp < 2: return vr(vACC0 + (tp * 4 + n) * 4, 4)
        return ar(aACC + ((tp - 2) * 4 + n) * 4, 4)
    def afrag(tp): return ar(aAF + tp * 4, 4)
    def bfrag(i, n): return vr(vBF + (i % 2) * 16 + n * 4, 4)
    def raw(i, jj, cp=None):
        b = vRAW + 16 * (i % R) + 4 * jj
        return vr(b, 4) if cp is None else vr(b + cp)

    tsn = [0]; names = []; nostamp = [False]
    def stamp(name):
        if not TS or nostamp[0]: return
        if stamps and name not in stamps and name != "cal": return
        k = tsn[0]; tsn[0] += 1
        names.append(name)
        e(f"{'s_memrealtime' if rt else 's_memtime'} s[{sTS+2*k}:{sTS+2*k+1}]")
        E.wait_all(vm=False, lg=True)

    def emit_item(it):
        if it is None: return
        if it[0] in ("s", "v"): e(it[1])
        elif it[0] == "vm": E.vm(it[1], it[2])
        elif it[0] == "lg": E.lg(it[1], it[2])
        elif it[0] == "wvm": E.wait_vm(it[1])
        elif it[0] == "wlg": E.wait_lg(it[1])
        elif it[0] == "wboth": wait_both(it[1], it[2])
        else: raise ValueError(it)
    def wait_both(vtag, ltag):
        parts = []
        if vtag is not None and vtag in E.vmq:
            idx = len(E.vmq) - 1 - E.vmq[::-1].index(vtag)
            n = len(E.vmq) - 1 - idx
            E.vmq = E.vmq[idx + 1:]
            parts.append(f"vmcnt({min(n, 63)})")
        if ltag is not None and ltag in E.lgq:
            idx = len(E.lgq) - 1 - E.lgq[::-1].index(ltag)
            n = len(E.lgq) - 1 - idx
            assert n <= 15, n
            E.lgq = E.lgq[idx + 1:]
            parts.append(f"lgkmcnt({n})")
        if parts: e("s_waitcnt " + " ".join(parts))
    def emit_items(its):
        for it in its: emit_item(it)
    def srd_items(d, p, nbytes, addoff=None):
        out = []
        if addoff is None:
            out.append(("s", f"s_mov_b32 s{d}, s{p}"))
            out.append(("s", f"s_and_b32 s{d+1}, s{p+1}, 0xffff"))
        else:
            out.append(("s", f"s_add_u32 s{d}, s{p}, s{addoff}"))
            out.append(("s", f"s_addc_u32 s{d+1}, s{p+1}, 0"))
            out.append(("s", f"s_and_b32 s{d+1}, s{d+1}, 0xffff"))
        out.append(("s", f"s_mov_b32 s{d+2}, {nbytes}"))
        out.append(("s", f"s_mov_b32 s{d+3}, 0x00020000"))
        return out
    def srd(*a, **k): emit_items(srd_items(*a, **k))
    def fieldoff(i): return (16 * (i // 4) + i % 4) * 131072
    def bload(i):
        out = []
        if i < 24: out.append(("s", f"s_add_u32 s{sBoff}, s{sBbase}, {fieldoff(i)}"))
        else: out.append(("s", f"s_mov_b32 s{sBoff}, s{sB24}"))
        for jj in range(4):
            vo = vB0 if jj < 2 else vB1
            out.append(("vm", f"buffer_load_dwordx4 {raw(i,jj)}, v{vo}, s[{sW1}:{sW1+3}], s{sBoff} offen offset:{(jj%2)*2048}", f"raw{i}"))
        return out
    def idx_dma(c):
        out = []
        if c < 6:
            out.append(("s", f"s_lshl_b32 s{sT0}, s{sW}, 11"))
            out.append(("s", f"s_mul_i32 s{sT1}, s{sW}, 12800"))
            for h in range(2):
                out.append(("s", f"s_add_u32 m0, s{sT0}, {IDXC(c) + h*1024}"))
                out.append(("s", f"s_add_u32 s{sT2}, s{sT1}, {h*6400 + c*64}"))
                out.append(("vm", f"buffer_load_dwordx4 v{vIXo}, s[{sIX}:{sIX+3}], s{sT2} offen lds", f"idxd{c}"))
        else:
            out.append(("s", f"s_and_b32 s{sT0}, s{sW}, 1"))
            out.append(("s", f"s_mul_i32 s{sT1}, s{sT0}, 25600"))
            out.append(("s", f"s_lshl_b32 s{sT0}, s{sT0}, 10"))
            out.append(("s", f"s_add_u32 m0, s{sT0}, {IDXL}"))
            out.append(("s", "s_nop 0"))
            out.append(("vm", f"buffer_load_dwordx4 v{vIXl}, s[{sIX}:{sIX+3}], s{sT1} offen lds", f"idxd{c}"))
        return out
    def touch_grp(m, dst):
        out = [("s", f"s_lshl_b32 s{sT0}, s{sMIi}, 12")]
        if m < 6:
            out.append(("s", f"s_add_u32 s{sT0}, s{sT0}, s{sBbase}"))
            if m: out.append(("s", f"s_add_u32 s{sT0}, s{sT0}, {m<<21}"))
            out.append(("vm", f"buffer_load_dword v{dst}, v{vTo16}, s[{sW1}:{sW1+3}], s{sT0} offen", "touch"))
        else:
            out.append(("s", f"s_add_u32 s{sT0}, s{sT0}, s{sB24}"))
            out.append(("vm", f"buffer_load_dword v{dst}, v{vTo4}, s[{sW1}:{sW1+3}], s{sT0} offen", "touch"))
        return out
    def xp(i, k):
        cp, jj = k // 4, k % 4
        t = vDT + (k % 4)
        return (("v", f"v_mov_b32_dpp v{t}, {raw(i, jj, cp)} row_ror:8 row_mask:0xf bank_mask:0xf"),
                ("v", f"v_perm_b32 v{vBF + (i%2)*16 + cp*4 + jj}, v{t}, {raw(i, jj, cp)}, v{vSel}"))

    E.lab(NAME)
    e("s_cmp_ge_u32 s2, 256")
    e("s_cbranch_scc1 L_END")
    e("s_load_dwordx16 s[24:39], s[0:1], 0")
    e("s_load_dwordx8 s[40:47], s[0:1], 64")
    if TS:
        e(f"{'s_memrealtime' if rt else 's_memtime'} s[{sTS}:{sTS+1}]"); tsn[0] = 1
    e(f"s_getpc_b64 s[{sPC}:{sPC+1}]")
    E.lab("L_PCREF")
    e(f"v_and_b32 v{vLane}, 63, v0")
    e(f"v_lshrrev_b32 v{vTmp}, 6, v0")
    e(f"v_and_b32 v{vC}, 15, v0")
    e(f"v_readfirstlane_b32 s{sW}, v{vTmp}")
    e(f"s_lshr_b32 s{sT0}, s2, 3")
    e(f"s_lshl_b32 s{sX}, s{sT0}, 2")
    e(f"v_mov_b32 v{vTmp+5}, 0x{OOB:x}")
    e(f"s_add_u32 s{sX}, s{sX}, s{sW}")
    if codetouch:
        e(f"v_lshlrev_b32 v{vTmp}, 14, v{vLane}")
        e(f"s_lshl_b32 s{sT1}, s{sX}, 7")
        e(f"v_add_u32 v{vTmp}, s{sT1}, v{vTmp}")
        e(f"s_mov_b32 s{sT1}, L_CODE_END-L_PCREF")
        e(f"v_cmp_gt_u32 vcc, s{sT1}, v{vTmp}")
        e(f"s_and_saveexec_b64 s[{sIXF}:{sIXF+1}], vcc")
        e("s_cbranch_execz L_NOCT")
        E.vm(f"global_load_dword v{vTouch}, v{vTmp}, s[{sPC}:{sPC+1}]", "touchC")
        E.lab("L_NOCT")
        e(f"s_mov_b64 exec, s[{sIXF}:{sIXF+1}]")
    e(f"v_lshrrev_b32 v{vQ4}, 4, v{vLane}")
    e(f"s_and_b32 s{sNI}, s2, 7")
    e(f"s_and_b32 s{sS}, s{sT0}, 3")
    e(f"s_lshr_b32 s{sMIi}, s{sT0}, 2")
    e(f"s_lshl_b32 s{sP}, s{sNI}, 2")
    e(f"s_add_u32 s{sP}, s{sP}, s{sS}")
    e(f"s_movk_i32 s{s80}, 80")
    e(f"s_lshl_b32 s{sT0}, s{sS}, 15")
    e(f"s_lshl_b32 s{sT1}, s{sNI}, 7")
    e(f"s_add_u32 s{sT0}, s{sT0}, s{sT1}")
    e(f"s_lshl_b32 s{sT1}, s{sW}, 19")
    e(f"s_add_u32 s{sBbase}, s{sT0}, s{sT1}")
    e(f"s_add_u32 s{sT1}, s{sW}, 96")
    e(f"s_lshl_b32 s{sT1}, s{sT1}, 17")
    e(f"s_add_u32 s{sB24}, s{sT0}, s{sT1}")
    e(f"v_lshlrev_b32 v{vTmp}, 7, v{vLane}")
    e(f"v_cmp_gt_u32 vcc, 16, v{vLane}")
    e(f"v_lshrrev_b32 v{vTmp+3}, 1, v{vLane}")
    e(f"v_mul_u32_u24 v{vTmp+3}, 400, v{vTmp+3}")
    e(f"v_cndmask_b32 v{vTouch+3}, v{vTmp+5}, v{vTmp}, vcc")
    e(f"v_and_b32 v{vTmp+4}, 1, v{vLane}")
    e(f"v_mul_u32_u24 v{vTmp+4}, 60, v{vTmp+4}")
    e(f"v_add_u32 v{vTmp+3}, v{vTmp+3}, v{vTmp+4}")
    e(f"v_cndmask_b32 v{vTouch+4}, v{vTmp+5}, v{vTmp+3}, vcc")
    e(f"v_lshlrev_b32 v{vTmp}, 21, v{vQ4}")
    e(f"v_bfe_u32 v{vTmp+3}, v{vLane}, 2, 2")
    e(f"v_lshl_add_u32 v{vTmp}, v{vTmp+3}, 17, v{vTmp}")
    e(f"v_and_b32 v{vTmp+3}, 3, v{vLane}")
    e(f"v_lshl_add_u32 v{vTmp}, v{vTmp+3}, 10, v{vTmp}")
    e(f"v_bfe_u32 v{vTmp+2}, v0, 3, 1")
    e(f"v_cndmask_b32 v{vTo16}, v{vTmp+5}, v{vTmp}, vcc")
    e(f"v_cmp_gt_u32 vcc, 48, v{vLane}")
    e(f"v_lshlrev_b32 v{vB0}, 13, v{vQ4}")
    e(f"v_lshl_add_u32 v{vB0}, v{vTmp+2}, 10, v{vB0}")
    e(f"v_cndmask_b32 v{vTo48}, v{vTmp+5}, v{vTmp}, vcc")
    e(f"v_cmp_gt_u32 vcc, 4, v{vLane}")
    e(f"v_and_b32 v{vTmp+1}, 7, v0")
    e(f"v_lshl_add_u32 v{vB0}, v{vTmp+1}, 4, v{vB0}")
    e(f"v_cndmask_b32 v{vTo4}, v{vTmp+5}, v{vTmp}, vcc")
    e(f"v_add_u32 v{vB1}, 0x1000, v{vB0}")
    e(f"v_lshrrev_b32 v{vTmp}, 2, v{vLane}")
    e(f"v_and_b32 v{vTmp+1}, 3, v{vLane}")
    e(f"v_lshlrev_b32 v{vTmp+1}, 4, v{vTmp+1}")
    e(f"v_lshl_add_u32 v{vTBo}, v{vTmp}, 8, v{vTmp+1}")
    e(f"v_mad_u32_u24 v{vTBw}, v{vTmp}, s{s80}, v{vTmp+1}")
    e(f"s_mul_i32 s{sT0}, s{sW}, 20480")
    e(f"v_add_u32 v{vTBw}, s{sT0}, v{vTBw}")
    e(f"s_movk_i32 s{sT1}, 400")
    e(f"v_mul_u32_u24 v{vIXo}, s{sT1}, v{vTmp}")
    e(f"v_and_b32 v{vTmp+1}, 3, v{vLane}")
    e(f"v_xor_b32 v{vTmp}, v{vQ4}, v{vTmp+1}")
    e(f"v_lshl_add_u32 v{vIXo}, v{vTmp}, 4, v{vIXo}")
    e(f"v_mul_u32_u24 v{vIXl}, s{sT1}, v{vLane}")
    e(f"v_add_u32 v{vIXl}, 384, v{vIXl}")
    e("s_waitcnt lgkmcnt(0)")
    stamp("kernarg")
    srd(sTB, P_TBL, 256000)
    srd(sIXF, P_IDX, 409600)
    if touch:
        e(f"s_lshl_b32 s{sT0}, s{sX}, 11")
        E.vm(f"buffer_load_dword v{vTouch}, v{vTouch+3}, s[{sTB}:{sTB+3}], s{sT0} offen", "touchA")
        e(f"s_mul_i32 s{sT0}, s{sX}, 3200")
        E.vm(f"buffer_load_dword v{vTouch+1}, v{vTouch+4}, s[{sIXF}:{sIXF+3}], s{sT0} offen", "touchA")
    e(f"s_lshl_b32 s{sT1}, s{sW}, 16")
    e(f"s_lshl_b32 s{sT2}, s{sS}, 6")
    e(f"s_add_u32 s{sT1}, s{sT1}, s{sT2}")
    for n in range(16):
        if n > 0: e(f"s_add_u32 s{sT1}, s{sT1}, 4096")
        E.vm(f"buffer_load_dwordx4 {ar(aTB+4*n,4)}, v{vTBo}, s[{sTB}:{sTB+3}], s{sT1} offen", f"tbl{n}")
    e(f"s_mul_i32 s{sT3}, s{sMIi}, 51200")
    srd(sIX, P_IDX, 51200, addoff=sT3)
    emit_items(idx_dma(0))
    srd(sW1, P_W1, 13107200)
    emit_items(bload(0))
    if touch:
        e(f"s_lshl_b32 s{sT0}, s{sMIi}, 12")
        e(f"s_add_u32 s{sT0}, s{sT0}, s{sBbase}")
        E.vm(f"buffer_load_dword v{vTouch+2}, v{vTo48}, s[{sW1}:{sW1+3}], s{sT0} offen", "touchB")
    stamp("issued")
    e(f"v_mov_b32 v{vSel}, 0x05040100")
    e(f"v_mov_b32 v{vTmp+3}, 0x03020706")
    e(f"v_cmp_eq_u32 vcc, 1, v{vTmp+2}")
    e(f"v_lshlrev_b32 v{vQ}, 4, v{vQ4}")
    e(f"v_lshlrev_b32 v{vL16}, 4, v{vLane}")
    e(f"v_cndmask_b32 v{vSel}, v{vSel}, v{vTmp+3}, vcc")
    for n in range(8):
        E.wait_vm(f"tbl{n}")
        E.lg(f"ds_write_b128 v{vTBw}, {ar(aTB+4*n,4)} offset:{n*1280}", "tblw")
    e(f"v_bfe_u32 v{vTmp}, v{vC}, 2, 2")
    e(f"v_xor_b32 v{vTmp}, s{sW}, v{vTmp}")
    e(f"v_lshlrev_b32 v{vTmp}, 4, v{vTmp}")
    e(f"v_lshl_add_u32 v{vTmp}, v{vC}, 6, v{vTmp}")
    e(f"v_lshlrev_b32 v{vTmp+1}, 4, v{vC}")
    e(f"s_lshl_b32 s{sT0}, s{sW}, 1")
    e(f"s_lshl_b32 s{sT1}, s{sW}, 2")
    for tp in range(8):
        e(f"s_add_u32 s{sT2}, s{sT0}, {tp}")
        e(f"s_and_b32 s{sT2}, s{sT2}, 7")
        e(f"s_lshl_b32 s{sT3}, s{sT2}, 10")
        e(f"s_add_u32 s{sT3}, s{sT3}, {IDXC(5)}")
        e(f"v_add_u32 v{vIA+tp}, s{sT3}, v{vTmp}")
        e(f"s_lshl_b32 s{sT3}, s{sT2}, 8")
        e(f"s_add_u32 s{sT3}, s{sT3}, s{sT1}")
        e(f"s_add_u32 s{sT3}, s{sT3}, {IDXL}")
        e(f"v_add_u32 v{vIA2+tp}, s{sT3}, v{vTmp+1}")
    for n in range(8, 16):
        E.wait_vm(f"tbl{n}")
        E.lg(f"ds_write_b128 v{vTBw}, {ar(aTB+4*n,4)} offset:{n*1280}", "tblw")
    e(f"s_or_b32 s{sT0}, s2, s{sW}")
    e(f"s_cmp_lg_u32 s{sT0}, 0")
    e("s_cbranch_scc1 L_NONONCE")
    e(f"s_memrealtime s[{sT2}:{sT3}]")
    srd(sDBG, P_DBG, 256)
    e("s_waitcnt lgkmcnt(0)")
    e(f"s_and_b32 s{sT2}, s{sT2}, 0xffffff")
    e(f"s_or_b32 s{sT2}, s{sT2}, 0x80000000")
    e(f"v_mov_b32 v{vTmp}, s{sT2}")
    e(f"v_mov_b32 v{vTmp+1}, 0")
    e(f"s_mov_b64 s[{sSt}:{sSt+1}], exec")
    e("s_mov_b64 exec, 1")
    e(f"buffer_store_dword v{vTmp}, v{vTmp+1}, s[{sDBG}:{sDBG+3}], 0 offen sc1")
    e(f"s_mov_b64 exec, s[{sSt}:{sSt+1}]")
    E.lab("L_NONONCE")
    emit_items(bload(1))
    emit_items(idx_dma(1))
    E.wait_vm("raw0")
    for k in range(16):
        d, p = xp(0, k)
        emit_item(d); emit_item(p)
    stamp("tblw")
    E.wait_vm("idxd0")
    E.wait_all(vm=False, lg=True)
    e("s_barrier")
    stamp("barrier1")
    if pro:
        e("s_branch L_TS2")
        nostamp[0] = True

    def idx_read_items(group):
        out = []
        for tp in range(8):
            if group < 6:
                out.append(("lg", f"ds_read_b128 {vr(vI+4*tp,4)}, v{vIA+tp} offset:{(5-group)*8192}", f"idx{group}_{tp}"))
            else:
                out.append(("lg", f"ds_read_b32 v{vI+4*tp}, v{vIA2+tp}", f"idx{group}_{tp}"))
        return out
    def addr_item(i, tp):
        comp = i % 4 if i < 24 else 0
        return ("v", f"v_mad_u32_u24 v{vGA+tp}, v{vI+4*tp+comp}, s{s80}, v{vQ}")
    def gather_item(i, tp):
        return ("lg", f"ds_read_b128 {afrag(tp)}, v{vGA+tp} offset:{TBL}", f"g{i}_{tp}")

    emit_items(idx_read_items(0))
    emit_items(bload(2))
    for tp in range(8):
        E.wait_lg(f"idx0_{tp}")
        emit_item(addr_item(0, tp))
        if tp < 7: emit_item(gather_item(0, tp))
    wait_both("raw1", "g0_3")

    def small_items():
        out = []
        def S(x): out.append(("s", x))
        def V(x): out.append(("v", x))
        out += srd_items(sWS, P_WS, 8 << 20 if not TS else 32 << 20)
        out += srd_items(sDBG, P_DBG, 256)
        V(f"v_mov_b32 v{vTmp+5}, 0")
        out.append(("vm", f"buffer_load_dword v{vFL}, v{vTmp+5}, s[{sDBG}:{sDBG+3}], 0 offen sc1", "nonce"))
        out += srd_items(sOUT, P_OUT, 2048)
        V(f"v_and_b32 v{vTmp}, 7, v{vLane}")
        V(f"v_lshlrev_b32 v{vTmp}, 3, v{vTmp}")
        V(f"v_lshl_add_u32 v{vTmp}, v{vQ4}, 1, v{vTmp}")
        V(f"v_bfe_u32 v{vTmp+1}, v{vLane}, 3, 1")
        V(f"v_add_u32 v{vTmp}, v{vTmp}, v{vTmp+1}")
        S(f"s_lshl_b32 s{sT0}, s{sW}, 7")
        V(f"v_add_u32 v{vTmp}, s{sT0}, v{vTmp}")
        V(f"v_lshlrev_b32 v{vTmp}, 1, v{vTmp}")
        out += srd_items(sMI, P_B1, 1024)
        out.append(("vm", f"buffer_load_ushort v{vB1a}, v{vTmp}, s[{sMI}:{sMI+3}], 0 offen", "small"))
        out.append(("vm", f"buffer_load_ushort v{vB1b}, v{vTmp}, s[{sMI}:{sMI+3}], 0 offen offset:128", "small"))
        out += srd_items(sMI, P_W2, 1024)
        out.append(("vm", f"buffer_load_ushort v{vW2a}, v{vTmp}, s[{sMI}:{sMI+3}], 0 offen", "small"))
        out.append(("vm", f"buffer_load_ushort v{vW2b}, v{vTmp}, s[{sMI}:{sMI+3}], 0 offen offset:128", "small"))
        S(f"s_lshl_b32 s{sT0}, s{sMIi}, 7")
        S(f"s_lshl_b32 s{sT1}, s{sP}, 2")
        S(f"s_add_u32 s{sT0}, s{sT0}, s{sT1}")
        V(f"v_add_u32 v{vTmp+1}, s{sT0}, v{vQ4}")
        V(f"v_lshlrev_b32 v{vOUTO}, 1, v{vTmp+1}")
        V(f"v_mul_u32_u24 v{vTmp+1}, 13, v{vTmp+1}")
        V(f"v_add_u32 v{vTmp+1}, v{vTmp+1}, v{vC}")
        V(f"v_lshlrev_b32 v{vTmp+1}, 1, v{vTmp+1}")
        V(f"v_mov_b32 v{vTmp+2}, 0x7fffff00")
        V(f"v_cmp_gt_u32 vcc, 13, v{vC}")
        S("s_nop 1")
        V(f"v_cndmask_b32 v{vTmp+1}, v{vTmp+2}, v{vTmp+1}, vcc")
        V(f"v_lshlrev_b32 v{vTmp+2}, 1, v{vC}")
        out += srd_items(sMI, P_XW, 26624)
        out.append(("vm", f"buffer_load_ushort v{vXW}, v{vTmp+1}, s[{sMI}:{sMI+3}], 0 offen", "small"))
        out += srd_items(sMI, P_WW, 26)
        out.append(("vm", f"buffer_load_ushort v{vWW}, v{vTmp+2}, s[{sMI}:{sMI+3}], 0 offen", "small"))
        out += srd_items(sMI, P_BW, 2)
        out.append(("vm", f"buffer_load_ushort v{vBW}, v{vTmp+5}, s[{sMI}:{sMI+3}], 0 offen", "small"))
        out += srd_items(sMI, P_B2, 2)
        out.append(("vm", f"buffer_load_ushort v{vB2}, v{vTmp+5}, s[{sMI}:{sMI+3}], 0 offen", "small"))
        for dd in range(1, 4):
            S(f"s_add_u32 s{sT0}, s{sW}, {dd}")
            S(f"s_and_b32 s{sT0}, s{sT0}, 3")
            S(f"s_mul_i32 s{sT0}, s{sT0}, 12288")
            S(f"s_add_u32 s{sT0}, s{sT0}, {T1B + (dd-1)*4096}")
            V(f"v_add_u32 v{vW+dd-1}, s{sT0}, v{vL16}")
        S(f"s_mul_i32 s{sT0}, s{sW}, 12288")
        S(f"s_add_u32 s{sT0}, s{sT0}, {T1B}")
        V(f"v_add_u32 v{vRD}, s{sT0}, v{vL16}")
        S(f"s_lshl_b32 s{sT0}, s{sMIi}, 5")
        V(f"v_lshlrev_b32 v{vST}, 15, v{vQ4}")
        V(f"v_lshl_add_u32 v{vST}, v{vC}, 4, v{vST}")
        S(f"s_lshl_b32 s{sT1}, s{sW}, 3")
        S(f"s_add_u32 s{sT1}, s{sT0}, s{sT1}")
        S(f"s_lshl_b32 s{sT1}, s{sT1}, 15")
        S(f"s_lshl_b32 s{sT2}, s{sP}, 10")
        S(f"s_add_u32 s{sSt}, s{sT1}, s{sT2}")
        S(f"s_add_u32 s{sSt+1}, s{sSt}, {4*32768}")
        S(f"s_add_u32 s{sT1}, s{sT0}, s{sP}")
        S(f"s_lshl_b32 s{sT1}, s{sT1}, 15")
        S(f"s_lshl_b32 s{sT2}, s{sW}, 13")
        S(f"s_add_u32 s{sIn0}, s{sT1}, s{sT2}")
        V(f"v_lshlrev_b32 v{vIND}, 7, v{vLane}")
        S(f"s_mov_b32 s{sMask}, 0xffffffc0")
        out.append(("wvm", "nonce"))
        for r in range(4): V(f"v_bfe_u32 v{vTag+r}, v{vFL}, {6*r}, 6")
        return out
    smalls = small_items()
    SM_FIRST = 14

    OFF = {0: 49152, 1: 0}
    def t1_write(tp, n4):
        dd, sub = tp // 2, tp % 2
        a = aACC + ((tp - 2) * 4 + n4) * 4
        return f"ds_write_b128 v{vW+dd-1}, {ar(a,4)} offset:{OFF[sub] + n4*1024}"

    idx_dma_at = {1: 2, 3: 3, 7: 4, 9: 5, 11: 6}
    idx_bar_at = {1: "idxd1", 2: "idxd3", 4: "idxd6"}
    touch_at = {0: 3, 4: 4, 8: 5, 12: 6}
    for i in range(NSTEP):
        nxt = i + 1 < NSTEP
        last = not nxt
        E.c(f"---- step {i}")
        if i in stepstamps: stamp(f"s{i}")
        first = [[] for _ in range(32)]
        rest = [[] for _ in range(32)]
        order = list(range(8))
        if last and earlyw: order = [2, 4, 6, 0, 1, 3, 5, 7]
        first[0].append(gather_item(i, 7))
        idxstep = nxt and (i + 1) % 4 == 3 and i + 2 < NSTEP
        if nxt:
            for k in range(1, 8): first[4 * k].append(gather_item(i + 1, k - 1))
            for k in range(8): rest[4 * k].append(addr_item(i + 1, k))
            seq = []
            for k in range(16):
                d, p = xp(i + 1, k); seq.append((d, p))
            slots = [g for g in range(32) if g % 4 in (1, 2)]
            for x, g in enumerate(slots):
                rest[g].append(seq[x][0])
                if x > 0: rest[g].append(seq[x - 1][1])
            rest[31].append(seq[15][1])
            if idxstep:
                grp2 = (i + 2) // 4 if i + 2 < 24 else 6
                its = idx_read_items(grp2)
                if grp2 in idx_bar_at:
                    rest[2].append(("wvm", idx_bar_at[grp2]))
                    rest[2].append(("s", "s_barrier"))
                for tp, it in enumerate(its): first[4 * tp + 3].append(it)
        lds_ = [3, 4] if i == 0 else ([i + R] if i + R < NSTEP else [])
        for x, j in enumerate(lds_):
            ld = bload(j)
            if idxstep: gs = (6, 10, 14, 18)
            else: gs = (3, 7, 11, 15) if x == 0 else (19, 23, 27, 30)
            rest[gs[0] - 1 if gs[0] % 4 != 3 else gs[0] - 3].append(ld[0])
            for q_, g in enumerate(gs): first[g].append(ld[1 + q_])
        if i in idx_dma_at:
            its = idx_dma(idx_dma_at[i])
            if len(its) == 8:
                for it in its[:4]: rest[19].append(it)
                first[23].append(its[4])
                for it in its[5:7]: rest[23].append(it)
                first[27].append(its[7])
            else:
                for it in its[:5]: rest[19].append(it)
                first[23].append(its[5])
        if touch and i in touch_at:
            its = touch_grp(touch_at[i], vTouch + 4)
            for it in its[:-1]: rest[19].append(it)
            first[23 if i else 31].append(its[-1])
        if SM_FIRST <= i < NSTEP - 1:
            nleft = NSTEP - 1 - i
            take = -(-len(smalls) // nleft)
            chunk = smalls[:take]; smalls = smalls[take:]
            gl = [g for g in range(32) if g % 4 == 3 and not idxstep] or [g for g in range(32) if g % 4 == 3]
            per = -(-len(chunk) // len(gl))
            k = 0
            for g in gl:
                for _ in range(per):
                    if k < len(chunk): rest[g].append(chunk[k]); k += 1
        rest[15].append(("wboth", None, f"g{i}_7"))
        if nxt:
            rest[31].append(("wboth", f"raw{i+2}" if i + 2 < NSTEP else None, f"g{i+1}_3"))
        if last:
            rest[15] = []
            if earlyw:
                for pos, tp in enumerate([2, 4, 6]):
                    base = 4 * pos + 4 + 6
                    for n4 in range(4): first[base + n4].append(("lg", t1_write(tp, n4), "t1w"))
        for m in range(32):
            tp, n4 = order[m // 4], m % 4
            if last and m == 0: E.wait_lg(f"g{i}_6")
            if last and m == 16: E.wait_lg(f"g{i}_7")
            cin = "0" if i == 0 else acc(tp, n4)
            e(f"v_mfma_f32_16x16x32_bf16 {acc(tp,n4)}, {afrag(tp)}, {bfrag(i,n4)}, {cin}")
            for it in first[m]: emit_item(it)
            for it in rest[m]: emit_item(it)
    assert not smalls
    stamp("loop")
    E.c("---- T1: intra-CU reduce + publish")
    def t1_reads(sub):
        for n4 in range(4):
            for k in range(3):
                E.lg(f"ds_read_b128 {vr(vT1+32*k+16*sub+4*n4,4)}, v{vRD} offset:{OFF[sub] + k*4096+n4*1024}", f"t1r{sub}{n4}_{k}")
    def t1_sum_store(sub, n4):
        b = sub * 16 + 4 * n4
        for k in range(3):
            for h in range(2):
                e(f"v_pk_add_f32 {vr(vACC0+b+2*h,2)}, {vr(vACC0+b+2*h,2)}, {vr(vT1+32*k+b+2*h,2)}")
        for r in range(4):
            e(f"v_and_or_b32 v{vACC0+b+r}, v{vACC0+b+r}, s{sMask}, v{vTag+r}")
        E.vm(f"buffer_store_dwordx4 {vr(vACC0+b,4)}, v{vST}, s[{sWS}:{sWS+3}], s{sSt+sub} offen offset:{n4*256} sc1", "pub")
    e(f"v_readfirstlane_b32 s{sT3}, v{vFL}")
    e(f"s_mov_b32 s{sCnt}, 0")
    e("s_nop 3")
    e(f"s_cmp_lt_i32 s{sT3}, 0")
    e("s_cbranch_scc0 L_NONCE_SLOW")
    E.lab("L_NONCEOK")
    if not earlyw:
        e("s_nop 7")
        for tp in (2, 4, 6):
            for n4 in range(4): E.lg(t1_write(tp, n4), "t1w")
    E.wait_all(vm=False, lg=True)
    e("s_barrier")
    t1_reads(0)
    w1 = [t1_write(tp, n4) for tp in (3, 5, 7) for n4 in range(4)]
    for n4 in range(4):
        E.wait_lg(f"t1r0{n4}_2")
        for x in range(3): E.lg(w1.pop(0), "t1w")
        t1_sum_store(0, n4)
    E.wait_all(vm=False, lg=True)
    e("s_barrier")
    t1_reads(1)
    for n4 in range(4):
        E.wait_lg(f"t1r1{n4}_2")
        t1_sum_store(1, n4)
    stamp("T1pub")
    E.c("---- T3: poll + finish")
    vIN = vT1
    vH = vT1 + 40
    vD = vT1 + 48
    vX = vT1 + 52
    vM = vT1 + 56
    vY = vT1 + 60
    e(f"s_mov_b32 s{sT2}, 0xffff0000")
    e(f"s_add_u32 s{sT1}, s{sIn0}, 4096")
    E.wait_vm("small")
    e(f"v_lshlrev_b32 v{vB1a}, 16, v{vB1a}")
    e(f"v_lshlrev_b32 v{vB1b}, 16, v{vB1b}")
    e(f"v_lshlrev_b32 v{vW2a}, 16, v{vW2a}")
    e(f"v_lshlrev_b32 v{vW2b}, 16, v{vW2b}")
    e(f"v_lshlrev_b32 v{vXW}, 16, v{vXW}")
    e(f"v_lshlrev_b32 v{vWW}, 16, v{vWW}")
    e(f"v_mul_f32 v{vXW}, v{vXW}, v{vWW}")
    e(f"v_lshlrev_b32 v{vBW}, 16, v{vBW}")
    e(f"v_lshlrev_b32 v{vB2}, 16, v{vB2}")
    for sh in (1, 2, 4, 8):
        e(f"v_add_f32_dpp v{vXW}, v{vXW}, v{vXW} row_shr:{sh} row_mask:0xf bank_mask:0xf")
        e("s_nop 1")
    def rnd(r):
        e(f"v_cvt_pk_bf16_f32 v{r}, v{r}, v{r}")
        e(f"v_and_b32 v{r}, s{sT2}, v{r}")
    rnd(vXW)
    e(f"v_add_f32 v{vXW}, v{vXW}, v{vBW}")
    rnd(vXW)
    so = [sIn0] * 4 + [sT1] * 4
    offs = [(k % 4) * 1024 for k in range(8)]
    if "drain" in stamps:
        e("s_waitcnt vmcnt(0)")
        stamp("drain")
    if not direct:
        e("s_branch L_IND1")
        E.lab("L_IND")
        e(f"s_sleep {sleep}")
        E.lab("L_IND1")
        e(f"buffer_load_dword v{vM+3}, v{vIND}, s[{sWS}:{sWS+3}], s{sIn0} offen sc1")
        e("s_waitcnt vmcnt(0)")
        e(f"v_xor_b32 v{vM+3}, v{vM+3}, v{vTag}")
        e(f"v_and_b32 v{vM+3}, 63, v{vM+3}")
        e(f"v_cmp_ne_u32 vcc, 0, v{vM+3}")
        e("s_cbranch_vccz L_INDOK")
        e(f"s_add_u32 s{sCnt}, s{sCnt}, 1")
        e(f"s_cmp_gt_u32 s{sCnt}, 100000")
        e("s_cbranch_scc0 L_IND")
        E.lab("L_INDOK")
        stamp("ind")
    e("s_branch L_POLL1")
    E.lab("L_POLL")
    e(f"s_sleep {sleep}")
    E.lab("L_POLL1")
    for k in range(8):
        e(f"buffer_load_dwordx4 {vr(vIN+4*k,4)}, v{vL16}, s[{sWS}:{sWS+3}], s{so[k]} offen offset:{offs[k]} sc1")
    e("s_waitcnt vmcnt(0)")
    E.vmq = []
    for k in range(32): e(f"v_xor_b32 v{vIN+k}, v{vIN+k}, v{vTag+(k%4)}")
    e(f"v_or3_b32 v{vM}, v{vIN}, v{vIN+1}, v{vIN+2}")
    e(f"v_or3_b32 v{vM+1}, v{vIN+3}, v{vIN+4}, v{vIN+5}")
    for k in range(6, 30, 4):
        e(f"v_or3_b32 v{vM}, v{vM}, v{vIN+k}, v{vIN+k+1}")
        e(f"v_or3_b32 v{vM+1}, v{vM+1}, v{vIN+k+2}, v{vIN+k+3}")
    e(f"v_or3_b32 v{vM}, v{vM}, v{vIN+30}, v{vIN+31}")
    e(f"v_or_b32 v{vM}, v{vM}, v{vM+1}")
    e(f"v_and_b32 v{vM}, 63, v{vM}")
    e(f"v_cmp_ne_u32 vcc, 0, v{vM}")
    e("s_cbranch_vccz L_POLLOK")
    e(f"s_add_u32 s{sCnt}, s{sCnt}, 1")
    e(f"s_cmp_gt_u32 s{sCnt}, 100000")
    e("s_cbranch_scc0 L_POLL")
    E.lab("L_POLLOK")
    stamp("poll")
    for off in (4, 8, 12):
        for nl in range(2):
            b = vIN + 16 * nl
            for h in range(2):
                a0 = vr(b + 2 * h, 2) if off == 4 else vr(vH + 4 * nl + 2 * h, 2)
                e(f"v_pk_add_f32 {vr(vH+4*nl+2*h,2)}, {a0}, {vr(b+off+2*h,2)}")
    hs = [vH + k for k in range(8)]
    for h in hs: e(f"v_cvt_pk_bf16_f32 v{h}, v{h}, v{h}")
    for h in hs: e(f"v_and_b32 v{h}, s{sT2}, v{h}")
    for k, h in enumerate(hs): e(f"v_add_f32 v{h}, v{h}, v{vB1a if k < 4 else vB1b}")
    for h in hs: e(f"v_cvt_pk_bf16_f32 v{h}, v{h}, v{h}")
    for h in hs: e(f"v_and_b32 v{h}, s{sT2}, v{h}")
    for half in range(2):
        for r in range(4):
            k = 4 * half + r
            e(f"v_cmp_lt_f32 s[{sSt+2*(r%2)}:{sSt+2*(r%2)+1}], 0, v{hs[k]}")
            if r % 2 == 1:
                e("s_nop 0")
                e(f"v_cndmask_b32 v{vY+k-1}, 0, 1.0, s[{sSt}:{sSt+1}]")
                e(f"v_cndmask_b32 v{vY+k}, 0, 1.0, s[{sSt+2}:{sSt+3}]")
    for k, h in enumerate(hs): e(f"v_mul_f32 v{h}, v{h}, v{vY+k}")
    for r in range(4): e(f"v_mul_f32 v{vD+r}, v{hs[r]}, v{vW2a}")
    for r in range(4): e(f"v_fmac_f32 v{vD+r}, v{hs[4+r]}, v{vW2b}")
    regs = [vD, vD + 1, vD + 2, vD + 3]
    for sh in (1, 2, 4, 8):
        for rg in regs: e(f"v_add_f32_dpp v{rg}, v{rg}, v{rg} row_shr:{sh} row_mask:0xf bank_mask:0xf")
    for rg in regs: e(f"v_add_f32_dpp v{rg}, v{rg}, v{rg} row_bcast:15 row_mask:0xa bank_mask:0xf")
    for rg in regs: e(f"v_add_f32_dpp v{rg}, v{rg}, v{rg} row_bcast:31 row_mask:0xc bank_mask:0xf")
    e(f"s_lshl_b32 s{sT0}, s{sW}, 4")
    e(f"s_add_u32 s{sT0}, s{sT0}, {FIN}")
    e(f"v_mov_b32 v{vX}, s{sT0}")
    e(f"s_mov_b64 s[{sIXF}:{sIXF+1}], exec")
    e("s_mov_b32 exec_lo, 0")
    e("s_mov_b32 exec_hi, 0x80000000")
    e(f"ds_write_b128 v{vX}, {vr(vD,4)}")
    e(f"s_mov_b64 exec, s[{sIXF}:{sIXF+1}]")
    e(f"v_lshlrev_b32 v{vX+1}, 2, v{vQ4}")
    e(f"v_add_u32 v{vX+1}, {FIN}, v{vX+1}")
    e("s_waitcnt lgkmcnt(0)")
    e("s_barrier")
    e(f"s_cmp_lg_u32 s{sW}, 0")
    e("s_cbranch_scc1 L_TS")
    for k in range(4): e(f"ds_read_b32 v{vD+k}, v{vX+1} offset:{16*k}")
    e("s_waitcnt lgkmcnt(0)")
    e(f"v_add_f32 v{vD}, v{vD}, v{vD+1}")
    e(f"v_add_f32 v{vD+2}, v{vD+2}, v{vD+3}")
    e(f"v_add_f32 v{vD}, v{vD}, v{vD+2}")
    rnd(vD)
    e(f"v_add_f32 v{vD}, v{vD}, v{vB2}")
    rnd(vD)
    e(f"v_add_f32 v{vD}, v{vD}, v{vXW}")
    rnd(vD)
    e(f"v_mul_f32 v{vD}, 0xbfb8aa3b, v{vD}")
    e(f"v_exp_f32 v{vD}, v{vD}")
    e("s_nop 0")
    e(f"v_add_f32 v{vD}, 1.0, v{vD}")
    e(f"v_rcp_f32 v{vD}, v{vD}")
    e("s_nop 0")
    e(f"v_cvt_pk_bf16_f32 v{vD}, v{vD}, v{vD}")
    e("s_mov_b32 exec_lo, 0x80008000")
    e("s_mov_b32 exec_hi, 0x80008000")
    e(f"buffer_store_short v{vD}, v{vOUTO}, s[{sOUT}:{sOUT+3}], 0 offen")
    e("s_mov_b64 exec, -1")
    E.lab("L_TS")
    if pro:
        e("s_branch L_END")
        E.lab("L_TS2")
        srd(sWS, P_WS, 32 << 20)
        srd(sDBG, P_DBG, 256)
    if TS:
        nostamp[0] = pro
        stamp("end")
        nostamp[0] = False
        if rt:
            e(f"v_mov_b32 v{vTmp}, 16")
            e(f"v_mov_b32 v{vTmp+1}, 1")
            e("s_mov_b64 exec, 1")
            e(f"buffer_atomic_add v{vTmp+1}, v{vTmp}, s[{sDBG}:{sDBG+3}], 0 offen sc1")
            e("s_waitcnt vmcnt(0)")
            e(f"s_mov_b32 s{sCnt}, 0")
            E.lab("L_CAL")
            e(f"buffer_load_dword v{vTmp+2}, v{vTmp}, s[{sDBG}:{sDBG+3}], 0 offen sc1")
            e("s_waitcnt vmcnt(0)")
            e(f"v_readfirstlane_b32 s{sT0}, v{vTmp+2}")
            e(f"s_add_u32 s{sCnt}, s{sCnt}, 1")
            e(f"s_cmp_gt_u32 s{sCnt}, 20000")
            e("s_cbranch_scc1 L_CALOK")
            e(f"s_cmp_lt_u32 s{sT0}, 1024")
            e("s_cbranch_scc1 L_CAL")
            E.lab("L_CALOK")
            stamp("cal")
            e("s_mov_b64 exec, -1")
        n = tsn[0]
        assert sTS + 2 * n <= 102, n
        e(f"s_lshl_b32 s{sT0}, s2, 2")
        e(f"s_add_u32 s{sT0}, s{sT0}, s{sW}")
        e(f"s_lshl_b32 s{sT0}, s{sT0}, 6")
        e(f"s_add_u32 s{sT0}, s{sT0}, {16<<20}")
        e(f"v_mov_b32 v{vTmp}, 0")
        e("s_mov_b64 exec, 1")
        for k in range(n):
            if rt: e(f"s_mov_b32 s{sT1}, s{sTS+2*k}")
            else: e(f"s_sub_u32 s{sT1}, s{sTS+2*k}, s{sTS}")
            e(f"v_mov_b32 v{vTmp+1}, s{sT1}")
            e(f"buffer_store_dword v{vTmp+1}, v{vTmp}, s[{sWS}:{sWS+3}], s{sT0} offen offset:{4*k}")
    e("s_branch L_END")
    E.lab("L_NONCE_SLOW")
    e(f"buffer_load_dword v{vFL}, v{vTmp+5}, s[{sDBG}:{sDBG+3}], 0 offen sc1")
    e("s_waitcnt vmcnt(0)")
    e(f"v_readfirstlane_b32 s{sT3}, v{vFL}")
    e(f"s_add_u32 s{sCnt}, s{sCnt}, 1")
    e("s_nop 3")
    e(f"s_cmp_gt_u32 s{sCnt}, 200000")
    e("s_cbranch_scc1 L_NONCE_FIX")
    e(f"s_cmp_lt_i32 s{sT3}, 0")
    e("s_cbranch_scc0 L_NONCE_SLOW")
    E.lab("L_NONCE_FIX")
    for r in range(4): e(f"v_bfe_u32 v{vTag+r}, v{vFL}, {6*r}, 6")
    e("s_branch L_NONCEOK")
    E.lab("L_END")
    e("s_endpgm")
    E.lab("L_CODE_END")

    out = [HDR + f"; @launch grid=(256,1,1) block=(256,1,1) lds={LDS_TOTAL}",
           '.amdgcn_target "amdgcn-amd-amdhsa--gfx950"', ".text", f".globl {NAME}", ".p2align 8",
           f".type {NAME},@function"]
    out += E.L
    out += ['.section .rodata,"a"', ".p2align 6", f".amdhsa_kernel {NAME}",
            "  .amdhsa_next_free_vgpr 384", "  .amdhsa_next_free_sgpr 102", "  .amdhsa_accum_offset 256",
            "  .amdhsa_group_segment_fixed_size 0", "  .amdhsa_kernarg_size 96", "  .amdhsa_user_sgpr_count 2",
            "  .amdhsa_user_sgpr_kernarg_segment_ptr 1", "  .amdhsa_system_sgpr_workgroup_id_x 1",
            ".end_amdhsa_kernel"]
    return "\n".join(out) + "\n", names

if __name__ == "__main__":
    ap = argparse.ArgumentParser()
    ap.add_argument("-o", default="k.s")
    ap.add_argument("-R", type=int, default=4)
    ap.add_argument("--ts", default=None)
    ap.add_argument("--notouch", action="store_true")
    ap.add_argument("--nocodetouch", action="store_true")
    ap.add_argument("--sleep", type=int, default=4)
    ap.add_argument("--steps", default="")
    ap.add_argument("--pro", action="store_true")
    ap.add_argument("--rt", action="store_true")
    ap.add_argument("--direct", action="store_true")
    ap.add_argument("--noearlyw", action="store_true")
    a = ap.parse_args()
    st = tuple(a.ts.split(",")) if a.ts else ()
    steps = tuple(int(x) for x in a.steps.split(",") if x)
    st = st + tuple(f"s{x}" for x in steps)
    txt, names = gen(R=a.R, TS=a.ts is not None, touch=not a.notouch, stamps=st, sleep=a.sleep,
                     codetouch=not a.nocodetouch, stepstamps=steps, pro=a.pro, rt=a.rt, direct=a.direct, earlyw=not a.noearlyw)
    open(a.o, "w").write(txt)
    if a.ts: open(a.o.replace(".s", ".names"), "w").write(" ".join(names))
```

```python
import sys, argparse
from gen import Em, vr, ar, HDR, NAME

def gen(R=4, TS=False, NSTEP=25, touch=True, stamps=(), sleep=4, codetouch=True, stepstamps=(), pro=False, rt=False,
        direct=False, earlyw=True, tlag=6, wsoff=0):
    E = Em()
    e = E.e
    OOB = 0x7ffffff0
    TBL = 0
    IDXL = 81920
    def IDXC(c): return 83968 + (5 - c) * 8192
    T1B = 51200
    FIN = T1B + 98304
    LDS_TOTAL = FIN + 64
    sW1, sTB, sIX, sWS, sMI = 4, 8, 12, 16, 20
    P_IDX, P_TBL, P_XW, P_WW, P_BW, P_W1, P_B1, P_W2, P_B2, P_OUT, P_DBG, P_WS = [24 + 2 * i for i in range(12)]
    sW = 3
    sNI, sS, sMIi, sP = 48, 49, 50, 51
    sT0, sT1, sT2, sT3 = 52, 53, 54, 55
    sBbase, sB24, sBoff = 56, 57, 58
    s80 = 59
    sX = 60
    sIn0 = 61
    sMask = 62
    sCnt = 63
    sDBG = 64
    sOUT = 68
    sSt = 72
    sIXF = 76
    sPC = 78
    sTS = 80
    vLane, vC, vQ4 = 1, 2, 3
    vB0, vB1, vQ = 4, 5, 6
    vL16 = 7
    vTmp = 8
    vB1a, vB1b, vW2a, vW2b = 14, 15, 16, 17
    vXW, vWW, vBW, vB2 = 18, 19, 20, 21
    vFL = 22
    vSel = 23
    vGA = 24
    vIA = 32
    vIA2 = 40
    vDT = 48
    vST = 52
    vW = 53
    vRD = 56
    vOUTO = 57
    vIND = 58
    vTag = 60
    vACC0 = 64
    vBF = 96
    vI = 128
    vRAW = 160
    assert vRAW + 16 * R <= 236
    vT1 = 96
    vTo48, vTo16, vTo4, vIXl, vIXo, vTBo, vTBw = 239, 240, 241, 242, 243, 244, 245
    vTouch = 250
    aACC = 0
    aAF = 96
    aTB = 0

    def acc(tp, n):
        if tp < 2: return vr(vACC0 + (tp * 4 + n) * 4, 4)
        return ar(aACC + ((tp - 2) * 4 + n) * 4, 4)
    def afrag(tp): return ar(aAF + tp * 4, 4)
    def bfrag(i, n): return vr(vBF + (i % 2) * 16 + n * 4, 4)
    def raw(i, jj, cp=None):
        b = vRAW + 16 * (i % R) + 4 * jj
        return vr(b, 4) if cp is None else vr(b + cp)

    tsn = [0]; names = []; nostamp = [False]
    def stamp(name):
        if not TS or nostamp[0]: return
        if stamps and name not in stamps and name != "cal": return
        k = tsn[0]; tsn[0] += 1
        names.append(name)
        e(f"{'s_memrealtime' if rt else 's_memtime'} s[{sTS+2*k}:{sTS+2*k+1}]")
        E.wait_all(vm=False, lg=True)

    def emit_item(it):
        if it is None: return
        if it[0] in ("s", "v"): e(it[1])
        elif it[0] == "vm": E.vm(it[1], it[2])
        elif it[0] == "lg": E.lg(it[1], it[2])
        elif it[0] == "wvm": E.wait_vm(it[1])
        elif it[0] == "wlg": E.wait_lg(it[1])
        elif it[0] == "wboth": wait_both(it[1], it[2])
        else: raise ValueError(it)
    def wait_both(vtag, ltag):
        parts = []
        if vtag is not None and vtag in E.vmq:
            idx = len(E.vmq) - 1 - E.vmq[::-1].index(vtag)
            n = len(E.vmq) - 1 - idx
            E.vmq = E.vmq[idx + 1:]
            parts.append(f"vmcnt({min(n, 63)})")
        if ltag is not None and ltag in E.lgq:
            idx = len(E.lgq) - 1 - E.lgq[::-1].index(ltag)
            n = len(E.lgq) - 1 - idx
            assert n <= 15, n
            E.lgq = E.lgq[idx + 1:]
            parts.append(f"lgkmcnt({n})")
        if parts: e("s_waitcnt " + " ".join(parts))
    def emit_items(its):
        for it in its: emit_item(it)
    def srd_items(d, p, nbytes, addoff=None):
        out = []
        if addoff is None:
            out.append(("s", f"s_mov_b32 s{d}, s{p}"))
            out.append(("s", f"s_and_b32 s{d+1}, s{p+1}, 0xffff"))
        else:
            out.append(("s", f"s_add_u32 s{d}, s{p}, s{addoff}"))
            out.append(("s", f"s_addc_u32 s{d+1}, s{p+1}, 0"))
            out.append(("s", f"s_and_b32 s{d+1}, s{d+1}, 0xffff"))
        out.append(("s", f"s_mov_b32 s{d+2}, {nbytes}"))
        out.append(("s", f"s_mov_b32 s{d+3}, 0x00020000"))
        return out
    def srd(*a, **k): emit_items(srd_items(*a, **k))
    def fieldoff(i): return (16 * (i // 4) + i % 4) * 131072
    def bload(i):
        out = []
        if i < 24: out.append(("s", f"s_add_u32 s{sBoff}, s{sBbase}, {fieldoff(i)}"))
        else: out.append(("s", f"s_mov_b32 s{sBoff}, s{sB24}"))
        for jj in range(4):
            vo = vB0 if jj < 2 else vB1
            out.append(("vm", f"buffer_load_dwordx4 {raw(i,jj)}, v{vo}, s[{sW1}:{sW1+3}], s{sBoff} offen offset:{(jj%2)*2048}", f"raw{i}"))
        return out
    def idx_dma(c):
        out = []
        if c < 6:
            out.append(("s", f"s_lshl_b32 s{sT0}, s{sW}, 11"))
            out.append(("s", f"s_mul_i32 s{sT1}, s{sW}, 12800"))
            for h in range(2):
                out.append(("s", f"s_add_u32 m0, s{sT0}, {IDXC(c) + h*1024}"))
                out.append(("s", f"s_add_u32 s{sT2}, s{sT1}, {h*6400 + c*64}"))
                out.append(("vm", f"buffer_load_dwordx4 v{vIXo}, s[{sIX}:{sIX+3}], s{sT2} offen lds", f"idxd{c}"))
        else:
            out.append(("s", f"s_and_b32 s{sT0}, s{sW}, 1"))
            out.append(("s", f"s_mul_i32 s{sT1}, s{sT0}, 25600"))
            out.append(("s", f"s_lshl_b32 s{sT0}, s{sT0}, 10"))
            out.append(("s", f"s_add_u32 m0, s{sT0}, {IDXL}"))
            out.append(("s", "s_nop 0"))
            out.append(("vm", f"buffer_load_dwordx4 v{vIXl}, s[{sIX}:{sIX+3}], s{sT1} offen lds", f"idxd{c}"))
        return out
    def touch_grp(m, dst):
        out = [("s", f"s_lshl_b32 s{sT0}, s{sMIi}, 12")]
        if m < 6:
            out.append(("s", f"s_add_u32 s{sT0}, s{sT0}, s{sBbase}"))
            if m: out.append(("s", f"s_add_u32 s{sT0}, s{sT0}, {m<<21}"))
            out.append(("vm", f"buffer_load_dword v{dst}, v{vTo16}, s[{sW1}:{sW1+3}], s{sT0} offen", "touch"))
        else:
            out.append(("s", f"s_add_u32 s{sT0}, s{sT0}, s{sB24}"))
            out.append(("vm", f"buffer_load_dword v{dst}, v{vTo4}, s[{sW1}:{sW1+3}], s{sT0} offen", "touch"))
        return out
    def xp(i, k):
        cp, jj = k // 4, k % 4
        t = vDT + (k % 4)
        return (("v", f"v_mov_b32_dpp v{t}, {raw(i, jj, cp)} row_ror:8 row_mask:0xf bank_mask:0xf"),
                ("v", f"v_perm_b32 v{vBF + (i%2)*16 + cp*4 + jj}, v{t}, {raw(i, jj, cp)}, v{vSel}"))

    E.lab(NAME)
    e("s_cmp_ge_u32 s2, 256")
    e("s_cbranch_scc1 L_END")
    e("s_load_dwordx16 s[24:39], s[0:1], 0")
    e("s_load_dwordx8 s[40:47], s[0:1], 64")
    if TS:
        e(f"{'s_memrealtime' if rt else 's_memtime'} s[{sTS}:{sTS+1}]"); tsn[0] = 1
    e(f"s_getpc_b64 s[{sPC}:{sPC+1}]")
    E.lab("L_PCREF")
    e(f"v_and_b32 v{vLane}, 63, v0")
    e(f"v_lshrrev_b32 v{vTmp}, 6, v0")
    e(f"v_and_b32 v{vC}, 15, v0")
    e(f"v_readfirstlane_b32 s{sW}, v{vTmp}")
    e(f"s_lshr_b32 s{sT0}, s2, 3")
    e(f"s_lshl_b32 s{sX}, s{sT0}, 2")
    e(f"v_mov_b32 v{vTmp+5}, 0x{OOB:x}")
    e(f"s_add_u32 s{sX}, s{sX}, s{sW}")
    if codetouch:
        e(f"v_lshlrev_b32 v{vTmp}, 14, v{vLane}")
        e(f"s_lshl_b32 s{sT1}, s{sX}, 7")
        e(f"v_add_u32 v{vTmp}, s{sT1}, v{vTmp}")
        e(f"s_mov_b32 s{sT1}, L_CODE_END-L_PCREF")
        e(f"v_cmp_gt_u32 vcc, s{sT1}, v{vTmp}")
        e(f"s_and_saveexec_b64 s[{sIXF}:{sIXF+1}], vcc")
        e("s_cbranch_execz L_NOCT")
        E.vm(f"global_load_dword v{vTouch}, v{vTmp}, s[{sPC}:{sPC+1}]", "touchC")
        E.lab("L_NOCT")
        e(f"s_mov_b64 exec, s[{sIXF}:{sIXF+1}]")
    e(f"v_lshrrev_b32 v{vQ4}, 4, v{vLane}")
    e(f"s_and_b32 s{sNI}, s2, 7")
    e(f"s_and_b32 s{sS}, s{sT0}, 3")
    e(f"s_lshr_b32 s{sMIi}, s{sT0}, 2")
    e(f"s_lshl_b32 s{sP}, s{sNI}, 2")
    e(f"s_add_u32 s{sP}, s{sP}, s{sS}")
    e(f"s_movk_i32 s{s80}, 80")
    e(f"s_lshl_b32 s{sT0}, s{sS}, 15")
    e(f"s_lshl_b32 s{sT1}, s{sNI}, 7")
    e(f"s_add_u32 s{sT0}, s{sT0}, s{sT1}")
    e(f"s_lshl_b32 s{sT1}, s{sW}, 19")
    e(f"s_add_u32 s{sBbase}, s{sT0}, s{sT1}")
    e(f"s_add_u32 s{sT1}, s{sW}, 96")
    e(f"s_lshl_b32 s{sT1}, s{sT1}, 17")
    e(f"s_add_u32 s{sB24}, s{sT0}, s{sT1}")
    e(f"v_lshlrev_b32 v{vTmp}, 7, v{vLane}")
    e(f"v_cmp_gt_u32 vcc, 16, v{vLane}")
    e(f"v_lshrrev_b32 v{vTmp+3}, 1, v{vLane}")
    e(f"v_mul_u32_u24 v{vTmp+3}, 400, v{vTmp+3}")
    e(f"v_cndmask_b32 v{vTouch+3}, v{vTmp+5}, v{vTmp}, vcc")
    e(f"v_and_b32 v{vTmp+4}, 1, v{vLane}")
    e(f"v_mul_u32_u24 v{vTmp+4}, 60, v{vTmp+4}")
    e(f"v_add_u32 v{vTmp+3}, v{vTmp+3}, v{vTmp+4}")
    e(f"v_cndmask_b32 v{vTouch+4}, v{vTmp+5}, v{vTmp+3}, vcc")
    e(f"v_lshlrev_b32 v{vTmp}, 21, v{vQ4}")
    e(f"v_bfe_u32 v{vTmp+3}, v{vLane}, 2, 2")
    e(f"v_lshl_add_u32 v{vTmp}, v{vTmp+3}, 17, v{vTmp}")
    e(f"v_and_b32 v{vTmp+3}, 3, v{vLane}")
    e(f"v_lshl_add_u32 v{vTmp}, v{vTmp+3}, 10, v{vTmp}")
    e(f"v_bfe_u32 v{vTmp+2}, v0, 3, 1")
    e(f"v_cndmask_b32 v{vTo16}, v{vTmp+5}, v{vTmp}, vcc")
    e(f"v_cmp_gt_u32 vcc, 48, v{vLane}")
    e(f"v_lshlrev_b32 v{vB0}, 13, v{vQ4}")
    e(f"v_lshl_add_u32 v{vB0}, v{vTmp+2}, 10, v{vB0}")
    e(f"v_cndmask_b32 v{vTo48}, v{vTmp+5}, v{vTmp}, vcc")
    e(f"v_cmp_gt_u32 vcc, 4, v{vLane}")
    e(f"v_and_b32 v{vTmp+1}, 7, v0")
    e(f"v_lshl_add_u32 v{vB0}, v{vTmp+1}, 4, v{vB0}")
    e(f"v_cndmask_b32 v{vTo4}, v{vTmp+5}, v{vTmp}, vcc")
    e(f"v_add_u32 v{vB1}, 0x1000, v{vB0}")
    e(f"v_lshrrev_b32 v{vTmp}, 2, v{vLane}")
    e(f"v_and_b32 v{vTmp+1}, 3, v{vLane}")
    e(f"v_lshlrev_b32 v{vTmp+1}, 4, v{vTmp+1}")
    e(f"v_lshl_add_u32 v{vTBo}, v{vTmp}, 8, v{vTmp+1}")
    e(f"v_mad_u32_u24 v{vTBw}, v{vTmp}, s{s80}, v{vTmp+1}")
    e(f"s_mul_i32 s{sT0}, s{sW}, 20480")
    e(f"v_add_u32 v{vTBw}, s{sT0}, v{vTBw}")
    e(f"s_movk_i32 s{sT1}, 400")
    e(f"v_mul_u32_u24 v{vIXo}, s{sT1}, v{vTmp}")
    e(f"v_and_b32 v{vTmp+1}, 3, v{vLane}")
    e(f"v_xor_b32 v{vTmp}, v{vQ4}, v{vTmp+1}")
    e(f"v_lshl_add_u32 v{vIXo}, v{vTmp}, 4, v{vIXo}")
    e(f"v_mul_u32_u24 v{vIXl}, s{sT1}, v{vLane}")
    e(f"v_add_u32 v{vIXl}, 384, v{vIXl}")
    e("s_waitcnt lgkmcnt(0)")
    stamp("kernarg")
    srd(sTB, P_TBL, 256000)
    srd(sIXF, P_IDX, 409600)
    if touch:
        e(f"s_lshl_b32 s{sT0}, s{sX}, 11")
        E.vm(f"buffer_load_dword v{vTouch}, v{vTouch+3}, s[{sTB}:{sTB+3}], s{sT0} offen", "touchA")
        e(f"s_mul_i32 s{sT0}, s{sX}, 3200")
        E.vm(f"buffer_load_dword v{vTouch+1}, v{vTouch+4}, s[{sIXF}:{sIXF+3}], s{sT0} offen", "touchA")
    stamp("touchA")
    srd(sW1, P_W1, 13107200)
    emit_items(bload(0))
    e(f"s_mul_i32 s{sT3}, s{sMIi}, 51200")
    srd(sIX, P_IDX, 51200, addoff=sT3)
    emit_items(idx_dma(0))
    consts = []
    def C(x): consts.append(x)
    C(f"v_mov_b32 v{vSel}, 0x05040100")
    C(f"v_mov_b32 v{vTmp+3}, 0x03020706")
    C(f"v_cmp_eq_u32 vcc, 1, v{vTmp+2}")
    C(f"v_lshlrev_b32 v{vQ}, 4, v{vQ4}")
    C(f"v_lshlrev_b32 v{vL16}, 4, v{vLane}")
    C(f"v_cndmask_b32 v{vSel}, v{vSel}, v{vTmp+3}, vcc")
    C(f"v_bfe_u32 v{vTmp}, v{vC}, 2, 2")
    C(f"v_xor_b32 v{vTmp}, s{sW}, v{vTmp}")
    C(f"v_lshlrev_b32 v{vTmp}, 4, v{vTmp}")
    C(f"v_lshl_add_u32 v{vTmp}, v{vC}, 6, v{vTmp}")
    C(f"v_lshlrev_b32 v{vTmp+1}, 4, v{vC}")
    C(f"s_lshl_b32 s{sT0}, s{sW}, 1")
    C(f"s_lshl_b32 s{sT2}, s{sW}, 2")
    for tp in range(8):
        C(f"s_add_u32 s{sSt}, s{sT0}, {tp}")
        C(f"s_and_b32 s{sSt}, s{sSt}, 7")
        C(f"s_lshl_b32 s{sT3}, s{sSt}, 10")
        C(f"s_add_u32 s{sT3}, s{sT3}, {IDXC(5)}")
        C(f"v_add_u32 v{vIA+tp}, s{sT3}, v{vTmp}")
        C(f"s_lshl_b32 s{sT3}, s{sSt}, 8")
        C(f"s_add_u32 s{sT3}, s{sT3}, s{sT2}")
        C(f"s_add_u32 s{sT3}, s{sT3}, {IDXL}")
        C(f"v_add_u32 v{vIA2+tp}, s{sT3}, v{vTmp+1}")
    e(f"s_lshl_b32 s{sT1}, s{sW}, 16")
    e(f"s_lshl_b32 s{sSt+1}, s{sS}, 6")
    e(f"s_add_u32 s{sT1}, s{sT1}, s{sSt+1}")
    LAG = tlag
    per = -(-len(consts) // 12)
    for n in range(16):
        if n > 0: e(f"s_add_u32 s{sT1}, s{sT1}, 4096")
        E.vm(f"buffer_load_dwordx4 {ar(aTB+4*n,4)}, v{vTBo}, s[{sTB}:{sTB+3}], s{sT1} offen", f"tbl{n}")
        for _ in range(per):
            if consts: e(consts.pop(0))
        if n >= LAG:
            E.wait_vm(f"tbl{n-LAG}")
            E.lg(f"ds_write_b128 v{vTBw}, {ar(aTB+4*(n-LAG),4)} offset:{(n-LAG)*1280}", "tblw")
    while consts: e(consts.pop(0))
    stamp("tbliss")
    if touch:
        e(f"s_lshl_b32 s{sT0}, s{sMIi}, 12")
        e(f"s_add_u32 s{sT0}, s{sT0}, s{sBbase}")
        E.vm(f"buffer_load_dword v{vTouch+2}, v{vTo48}, s[{sW1}:{sW1+3}], s{sT0} offen", "touchB")
    E.wait_vm("raw0")
    for k in range(16):
        d, p = xp(0, k)
        emit_item(d); emit_item(p)
        if k % 3 == 2 and (16 - LAG + k // 3) < 16:
            n = 16 - LAG + k // 3
            E.wait_vm(f"tbl{n}")
            E.lg(f"ds_write_b128 v{vTBw}, {ar(aTB+4*n,4)} offset:{n*1280}", "tblw")
    for n in range(16 - LAG, 16):
        if f"tbl{n}" in E.vmq:
            E.wait_vm(f"tbl{n}")
            E.lg(f"ds_write_b128 v{vTBw}, {ar(aTB+4*n,4)} offset:{n*1280}", "tblw")
    stamp("tbl15")
    emit_items(bload(1))
    emit_items(idx_dma(1))
    e(f"s_or_b32 s{sT0}, s2, s{sW}")
    e(f"s_cmp_lg_u32 s{sT0}, 0")
    e("s_cbranch_scc1 L_NONONCE")
    e(f"s_memrealtime s[{sT2}:{sT3}]")
    srd(sDBG, P_DBG, 256)
    e("s_waitcnt lgkmcnt(0)")
    e(f"s_and_b32 s{sT2}, s{sT2}, 0xffffff")
    e(f"s_or_b32 s{sT2}, s{sT2}, 0x80000000")
    e(f"v_mov_b32 v{vTmp}, s{sT2}")
    e(f"v_mov_b32 v{vTmp+1}, 0")
    e(f"s_mov_b64 s[{sSt}:{sSt+1}], exec")
    e("s_mov_b64 exec, 1")
    e(f"buffer_store_dword v{vTmp}, v{vTmp+1}, s[{sDBG}:{sDBG+3}], 0 offen sc1")
    e(f"s_mov_b64 exec, s[{sSt}:{sSt+1}]")
    E.lab("L_NONONCE")
    stamp("tblw")
    E.wait_vm("idxd0")
    E.wait_all(vm=False, lg=True)
    e("s_barrier")
    stamp("barrier1")
    if pro:
        e("s_branch L_TS2")
        nostamp[0] = True

    def idx_read_items(group):
        out = []
        for tp in range(8):
            if group < 6:
                out.append(("lg", f"ds_read_b128 {vr(vI+4*tp,4)}, v{vIA+tp} offset:{(5-group)*8192}", f"idx{group}_{tp}"))
            else:
                out.append(("lg", f"ds_read_b32 v{vI+4*tp}, v{vIA2+tp}", f"idx{group}_{tp}"))
        return out
    def addr_item(i, tp):
        comp = i % 4 if i < 24 else 0
        return ("v", f"v_mad_u32_u24 v{vGA+tp}, v{vI+4*tp+comp}, s{s80}, v{vQ}")
    def gather_item(i, tp):
        return ("lg", f"ds_read_b128 {afrag(tp)}, v{vGA+tp} offset:{TBL}", f"g{i}_{tp}")

    emit_items(idx_read_items(0))
    emit_items(bload(2))
    for tp in range(8):
        E.wait_lg(f"idx0_{tp}")
        emit_item(addr_item(0, tp))
        if tp < 7: emit_item(gather_item(0, tp))
    wait_both("raw1", "g0_3")

    def small_items():
        out = []
        def S(x): out.append(("s", x))
        def V(x): out.append(("v", x))
        if wsoff:
            S(f"s_mov_b32 s{sT0}, {wsoff}")
            out += srd_items(sWS, P_WS, 8 << 20, addoff=sT0)
        else:
            out += srd_items(sWS, P_WS, 8 << 20 if not TS else 32 << 20)
        out += srd_items(sDBG, P_DBG, 256)
        V(f"v_mov_b32 v{vTmp+5}, 0")
        out.append(("vm", f"buffer_load_dword v{vFL}, v{vTmp+5}, s[{sDBG}:{sDBG+3}], 0 offen sc1", "nonce"))
        out += srd_items(sOUT, P_OUT, 2048)
        V(f"v_and_b32 v{vTmp}, 7, v{vLane}")
        V(f"v_lshlrev_b32 v{vTmp}, 3, v{vTmp}")
        V(f"v_lshl_add_u32 v{vTmp}, v{vQ4}, 1, v{vTmp}")
        V(f"v_bfe_u32 v{vTmp+1}, v{vLane}, 3, 1")
        V(f"v_add_u32 v{vTmp}, v{vTmp}, v{vTmp+1}")
        S(f"s_lshl_b32 s{sT0}, s{sW}, 7")
        V(f"v_add_u32 v{vTmp}, s{sT0}, v{vTmp}")
        V(f"v_lshlrev_b32 v{vTmp}, 1, v{vTmp}")
        out += srd_items(sMI, P_B1, 1024)
        out.append(("vm", f"buffer_load_ushort v{vB1a}, v{vTmp}, s[{sMI}:{sMI+3}], 0 offen", "small"))
        out.append(("vm", f"buffer_load_ushort v{vB1b}, v{vTmp}, s[{sMI}:{sMI+3}], 0 offen offset:128", "small"))
        out += srd_items(sMI, P_W2, 1024)
        out.append(("vm", f"buffer_load_ushort v{vW2a}, v{vTmp}, s[{sMI}:{sMI+3}], 0 offen", "small"))
        out.append(("vm", f"buffer_load_ushort v{vW2b}, v{vTmp}, s[{sMI}:{sMI+3}], 0 offen offset:128", "small"))
        S(f"s_lshl_b32 s{sT0}, s{sMIi}, 7")
        S(f"s_lshl_b32 s{sT1}, s{sP}, 2")
        S(f"s_add_u32 s{sT0}, s{sT0}, s{sT1}")
        V(f"v_add_u32 v{vTmp+1}, s{sT0}, v{vQ4}")
        V(f"v_lshlrev_b32 v{vOUTO}, 1, v{vTmp+1}")
        V(f"v_mul_u32_u24 v{vTmp+1}, 13, v{vTmp+1}")
        V(f"v_add_u32 v{vTmp+1}, v{vTmp+1}, v{vC}")
        V(f"v_lshlrev_b32 v{vTmp+1}, 1, v{vTmp+1}")
        V(f"v_mov_b32 v{vTmp+2}, 0x7fffff00")
        V(f"v_cmp_gt_u32 vcc, 13, v{vC}")
        S("s_nop 1")
        V(f"v_cndmask_b32 v{vTmp+1}, v{vTmp+2}, v{vTmp+1}, vcc")
        V(f"v_lshlrev_b32 v{vTmp+2}, 1, v{vC}")
        out += srd_items(sMI, P_XW, 26624)
        out.append(("vm", f"buffer_load_ushort v{vXW}, v{vTmp+1}, s[{sMI}:{sMI+3}], 0 offen", "small"))
        out += srd_items(sMI, P_WW, 26)
        out.append(("vm", f"buffer_load_ushort v{vWW}, v{vTmp+2}, s[{sMI}:{sMI+3}], 0 offen", "small"))
        out += srd_items(sMI, P_BW, 2)
        out.append(("vm", f"buffer_load_ushort v{vBW}, v{vTmp+5}, s[{sMI}:{sMI+3}], 0 offen", "small"))
        out += srd_items(sMI, P_B2, 2)
        out.append(("vm", f"buffer_load_ushort v{vB2}, v{vTmp+5}, s[{sMI}:{sMI+3}], 0 offen", "small"))
        for dd in range(1, 4):
            S(f"s_add_u32 s{sT0}, s{sW}, {dd}")
            S(f"s_and_b32 s{sT0}, s{sT0}, 3")
            S(f"s_mul_i32 s{sT0}, s{sT0}, 12288")
            S(f"s_add_u32 s{sT0}, s{sT0}, {T1B + (dd-1)*4096}")
            V(f"v_add_u32 v{vW+dd-1}, s{sT0}, v{vL16}")
        S(f"s_mul_i32 s{sT0}, s{sW}, 12288")
        S(f"s_add_u32 s{sT0}, s{sT0}, {T1B}")
        V(f"v_add_u32 v{vRD}, s{sT0}, v{vL16}")
        S(f"s_lshl_b32 s{sT0}, s{sMIi}, 5")
        V(f"v_lshlrev_b32 v{vST}, 15, v{vQ4}")
        V(f"v_lshl_add_u32 v{vST}, v{vC}, 4, v{vST}")
        S(f"s_lshl_b32 s{sT1}, s{sW}, 3")
        S(f"s_add_u32 s{sT1}, s{sT0}, s{sT1}")
        S(f"s_lshl_b32 s{sT1}, s{sT1}, 15")
        S(f"s_lshl_b32 s{sT2}, s{sP}, 10")
        S(f"s_add_u32 s{sSt}, s{sT1}, s{sT2}")
        S(f"s_add_u32 s{sSt+1}, s{sSt}, {4*32768}")
        S(f"s_add_u32 s{sT1}, s{sT0}, s{sP}")
        S(f"s_lshl_b32 s{sT1}, s{sT1}, 15")
        S(f"s_lshl_b32 s{sT2}, s{sW}, 13")
        S(f"s_add_u32 s{sIn0}, s{sT1}, s{sT2}")
        V(f"v_lshlrev_b32 v{vIND}, 7, v{vLane}")
        S(f"s_mov_b32 s{sMask}, 0xffffffc0")
        out.append(("wvm", "nonce"))
        for r in range(4): V(f"v_bfe_u32 v{vTag+r}, v{vFL}, {6*r}, 6")
        return out
    smalls = small_items()
    SM_FIRST = 14

    OFF = {0: 49152, 1: 0}
    def t1_write(tp, n4):
        dd, sub = tp // 2, tp % 2
        a = aACC + ((tp - 2) * 4 + n4) * 4
        return f"ds_write_b128 v{vW+dd-1}, {ar(a,4)} offset:{OFF[sub] + n4*1024}"

    idx_dma_at = {1: 2, 3: 3, 7: 4, 9: 5, 11: 6}
    idx_bar_at = {1: "idxd1", 2: "idxd3", 4: "idxd6"}
    touch_at = {0: 3, 4: 4, 8: 5, 12: 6}
    for i in range(NSTEP):
        nxt = i + 1 < NSTEP
        last = not nxt
        E.c(f"---- step {i}")
        if i in stepstamps: stamp(f"s{i}")
        first = [[] for _ in range(32)]
        rest = [[] for _ in range(32)]
        order = list(range(8))
        if last and earlyw: order = [2, 4, 6, 0, 1, 3, 5, 7]
        first[0].append(gather_item(i, 7))
        idxstep = nxt and (i + 1) % 4 == 3 and i + 2 < NSTEP
        if nxt:
            for k in range(1, 8): first[4 * k].append(gather_item(i + 1, k - 1))
            for k in range(8): rest[4 * k].append(addr_item(i + 1, k))
            seq = []
            for k in range(16):
                d, p = xp(i + 1, k); seq.append((d, p))
            slots = [g for g in range(32) if g % 4 in (1, 2)]
            for x, g in enumerate(slots):
                rest[g].append(seq[x][0])
                if x > 0: rest[g].append(seq[x - 1][1])
            rest[31].append(seq[15][1])
            if idxstep:
                grp2 = (i + 2) // 4 if i + 2 < 24 else 6
                its = idx_read_items(grp2)
                if grp2 in idx_bar_at:
                    rest[2].append(("wvm", idx_bar_at[grp2]))
                    rest[2].append(("s", "s_barrier"))
                for tp, it in enumerate(its): first[4 * tp + 3].append(it)
        lds_ = [3, 4] if i == 0 else ([i + R] if i + R < NSTEP else [])
        for x, j in enumerate(lds_):
            ld = bload(j)
            if idxstep: gs = (6, 10, 14, 18)
            else: gs = (3, 7, 11, 15) if x == 0 else (19, 23, 27, 30)
            rest[gs[0] - 1 if gs[0] % 4 != 3 else gs[0] - 3].append(ld[0])
            for q_, g in enumerate(gs): first[g].append(ld[1 + q_])
        if i in idx_dma_at:
            its = idx_dma(idx_dma_at[i])
            if len(its) == 8:
                for it in its[:4]: rest[19].append(it)
                first[23].append(its[4])
                for it in its[5:7]: rest[23].append(it)
                first[27].append(its[7])
            else:
                for it in its[:5]: rest[19].append(it)
                first[23].append(its[5])
        if touch and i in touch_at:
            its = touch_grp(touch_at[i], vTouch + 4)
            for it in its[:-1]: rest[19].append(it)
            first[23 if i else 31].append(its[-1])
        if SM_FIRST <= i < NSTEP - 1:
            nleft = NSTEP - 1 - i
            take = -(-len(smalls) // nleft)
            chunk = smalls[:take]; smalls = smalls[take:]
            gl = [g for g in range(32) if g % 4 == 3 and not idxstep] or [g for g in range(32) if g % 4 == 3]
            per = -(-len(chunk) // len(gl))
            k = 0
            for g in gl:
                for _ in range(per):
                    if k < len(chunk): rest[g].append(chunk[k]); k += 1
        rest[15].append(("wboth", None, f"g{i}_7"))
        if nxt:
            rest[31].append(("wboth", f"raw{i+2}" if i + 2 < NSTEP else None, f"g{i+1}_3"))
        if last:
            rest[15] = []
            if earlyw:
                for pos, tp in enumerate([2, 4, 6]):
                    base = 4 * pos + 4 + 6
                    for n4 in range(4): first[base + n4].append(("lg", t1_write(tp, n4), "t1w"))
        for m in range(32):
            tp, n4 = order[m // 4], m % 4
            if last and m == 0: E.wait_lg(f"g{i}_6")
            if last and m == 16: E.wait_lg(f"g{i}_7")
            cin = "0" if i == 0 else acc(tp, n4)
            e(f"v_mfma_f32_16x16x32_bf16 {acc(tp,n4)}, {afrag(tp)}, {bfrag(i,n4)}, {cin}")
            for it in first[m]: emit_item(it)
            for it in rest[m]: emit_item(it)
    assert not smalls
    stamp("loop")
    E.c("---- T1: intra-CU reduce + publish")
    def t1_reads(sub):
        for n4 in range(4):
            for k in range(3):
                E.lg(f"ds_read_b128 {vr(vT1+32*k+16*sub+4*n4,4)}, v{vRD} offset:{OFF[sub] + k*4096+n4*1024}", f"t1r{sub}{n4}_{k}")
    def t1_sum_store(sub, n4):
        b = sub * 16 + 4 * n4
        for k in range(3):
            for h in range(2):
                e(f"v_pk_add_f32 {vr(vACC0+b+2*h,2)}, {vr(vACC0+b+2*h,2)}, {vr(vT1+32*k+b+2*h,2)}")
        for r in range(4):
            e(f"v_and_or_b32 v{vACC0+b+r}, v{vACC0+b+r}, s{sMask}, v{vTag+r}")
        E.vm(f"buffer_store_dwordx4 {vr(vACC0+b,4)}, v{vST}, s[{sWS}:{sWS+3}], s{sSt+sub} offen offset:{n4*256} sc1", "pub")
    e(f"v_readfirstlane_b32 s{sT3}, v{vFL}")
    e(f"s_mov_b32 s{sCnt}, 0")
    e("s_nop 3")
    e(f"s_cmp_lt_i32 s{sT3}, 0")
    e("s_cbranch_scc0 L_NONCE_SLOW")
    E.lab("L_NONCEOK")
    if not earlyw:
        e("s_nop 7")
        for tp in (2, 4, 6):
            for n4 in range(4): E.lg(t1_write(tp, n4), "t1w")
    E.wait_all(vm=False, lg=True)
    e("s_barrier")
    t1_reads(0)
    w1 = [t1_write(tp, n4) for tp in (3, 5, 7) for n4 in range(4)]
    for n4 in range(4):
        E.wait_lg(f"t1r0{n4}_2")
        for x in range(3): E.lg(w1.pop(0), "t1w")
        t1_sum_store(0, n4)
    E.wait_all(vm=False, lg=True)
    e("s_barrier")
    t1_reads(1)
    for n4 in range(4):
        E.wait_lg(f"t1r1{n4}_2")
        t1_sum_store(1, n4)
    stamp("T1pub")
    E.c("---- T3: poll + finish")
    vIN = vT1
    vH = vT1 + 40
    vD = vT1 + 48
    vX = vT1 + 52
    vM = vT1 + 56
    vY = vT1 + 60
    e(f"s_mov_b32 s{sT2}, 0xffff0000")
    e(f"s_add_u32 s{sT1}, s{sIn0}, 4096")
    E.wait_vm("small")
    e(f"v_lshlrev_b32 v{vB1a}, 16, v{vB1a}")
    e(f"v_lshlrev_b32 v{vB1b}, 16, v{vB1b}")
    e(f"v_lshlrev_b32 v{vW2a}, 16, v{vW2a}")
    e(f"v_lshlrev_b32 v{vW2b}, 16, v{vW2b}")
    e(f"v_lshlrev_b32 v{vXW}, 16, v{vXW}")
    e(f"v_lshlrev_b32 v{vWW}, 16, v{vWW}")
    e(f"v_mul_f32 v{vXW}, v{vXW}, v{vWW}")
    e(f"v_lshlrev_b32 v{vBW}, 16, v{vBW}")
    e(f"v_lshlrev_b32 v{vB2}, 16, v{vB2}")
    for sh in (1, 2, 4, 8):
        e(f"v_add_f32_dpp v{vXW}, v{vXW}, v{vXW} row_shr:{sh} row_mask:0xf bank_mask:0xf")
        e("s_nop 1")
    def rnd(r):
        e(f"v_cvt_pk_bf16_f32 v{r}, v{r}, v{r}")
        e(f"v_and_b32 v{r}, s{sT2}, v{r}")
    rnd(vXW)
    e(f"v_add_f32 v{vXW}, v{vXW}, v{vBW}")
    rnd(vXW)
    so = [sIn0] * 4 + [sT1] * 4
    offs = [(k % 4) * 1024 for k in range(8)]
    if "drain" in stamps:
        e("s_waitcnt vmcnt(0)")
        stamp("drain")
    if not direct:
        e("s_branch L_IND1")
        E.lab("L_IND")
        e(f"s_sleep {sleep}")
        E.lab("L_IND1")
        e(f"buffer_load_dword v{vM+3}, v{vIND}, s[{sWS}:{sWS+3}], s{sIn0} offen sc1")
        e("s_waitcnt vmcnt(0)")
        e(f"v_xor_b32 v{vM+3}, v{vM+3}, v{vTag}")
        e(f"v_and_b32 v{vM+3}, 63, v{vM+3}")
        e(f"v_cmp_ne_u32 vcc, 0, v{vM+3}")
        e("s_cbranch_vccz L_INDOK")
        e(f"s_add_u32 s{sCnt}, s{sCnt}, 1")
        e(f"s_cmp_gt_u32 s{sCnt}, 100000")
        e("s_cbranch_scc0 L_IND")
        E.lab("L_INDOK")
        stamp("ind")
    e("s_branch L_POLL1")
    E.lab("L_POLL")
    e(f"s_sleep {sleep}")
    E.lab("L_POLL1")
    for k in range(8):
        e(f"buffer_load_dwordx4 {vr(vIN+4*k,4)}, v{vL16}, s[{sWS}:{sWS+3}], s{so[k]} offen offset:{offs[k]} sc1")
    e("s_waitcnt vmcnt(0)")
    E.vmq = []
    for k in range(32): e(f"v_xor_b32 v{vIN+k}, v{vIN+k}, v{vTag+(k%4)}")
    e(f"v_or3_b32 v{vM}, v{vIN}, v{vIN+1}, v{vIN+2}")
    e(f"v_or3_b32 v{vM+1}, v{vIN+3}, v{vIN+4}, v{vIN+5}")
    for k in range(6, 30, 4):
        e(f"v_or3_b32 v{vM}, v{vM}, v{vIN+k}, v{vIN+k+1}")
        e(f"v_or3_b32 v{vM+1}, v{vM+1}, v{vIN+k+2}, v{vIN+k+3}")
    e(f"v_or3_b32 v{vM}, v{vM}, v{vIN+30}, v{vIN+31}")
    e(f"v_or_b32 v{vM}, v{vM}, v{vM+1}")
    e(f"v_and_b32 v{vM}, 63, v{vM}")
    e(f"v_cmp_ne_u32 vcc, 0, v{vM}")
    e("s_cbranch_vccz L_POLLOK")
    e(f"s_add_u32 s{sCnt}, s{sCnt}, 1")
    e(f"s_cmp_gt_u32 s{sCnt}, 100000")
    e("s_cbranch_scc0 L_POLL")
    E.lab("L_POLLOK")
    stamp("poll")
    for off in (4, 8, 12):
        for nl in range(2):
            b = vIN + 16 * nl
            for h in range(2):
                a0 = vr(b + 2 * h, 2) if off == 4 else vr(vH + 4 * nl + 2 * h, 2)
                e(f"v_pk_add_f32 {vr(vH+4*nl+2*h,2)}, {a0}, {vr(b+off+2*h,2)}")
    hs = [vH + k for k in range(8)]
    for h in hs: e(f"v_cvt_pk_bf16_f32 v{h}, v{h}, v{h}")
    for h in hs: e(f"v_and_b32 v{h}, s{sT2}, v{h}")
    for k, h in enumerate(hs): e(f"v_add_f32 v{h}, v{h}, v{vB1a if k < 4 else vB1b}")
    for h in hs: e(f"v_cvt_pk_bf16_f32 v{h}, v{h}, v{h}")
    for h in hs: e(f"v_and_b32 v{h}, s{sT2}, v{h}")
    for half in range(2):
        for r in range(4):
            k = 4 * half + r
            e(f"v_cmp_lt_f32 s[{sSt+2*(r%2)}:{sSt+2*(r%2)+1}], 0, v{hs[k]}")
            if r % 2 == 1:
                e("s_nop 0")
                e(f"v_cndmask_b32 v{vY+k-1}, 0, 1.0, s[{sSt}:{sSt+1}]")
                e(f"v_cndmask_b32 v{vY+k}, 0, 1.0, s[{sSt+2}:{sSt+3}]")
    for k, h in enumerate(hs): e(f"v_mul_f32 v{h}, v{h}, v{vY+k}")
    for r in range(4): e(f"v_mul_f32 v{vD+r}, v{hs[r]}, v{vW2a}")
    for r in range(4): e(f"v_fmac_f32 v{vD+r}, v{hs[4+r]}, v{vW2b}")
    regs = [vD, vD + 1, vD + 2, vD + 3]
    for sh in (1, 2, 4, 8):
        for rg in regs: e(f"v_add_f32_dpp v{rg}, v{rg}, v{rg} row_shr:{sh} row_mask:0xf bank_mask:0xf")
    for rg in regs: e(f"v_add_f32_dpp v{rg}, v{rg}, v{rg} row_bcast:15 row_mask:0xa bank_mask:0xf")
    for rg in regs: e(f"v_add_f32_dpp v{rg}, v{rg}, v{rg} row_bcast:31 row_mask:0xc bank_mask:0xf")
    e(f"s_lshl_b32 s{sT0}, s{sW}, 4")
    e(f"s_add_u32 s{sT0}, s{sT0}, {FIN}")
    e(f"v_mov_b32 v{vX}, s{sT0}")
    e(f"s_mov_b64 s[{sIXF}:{sIXF+1}], exec")
    e("s_mov_b32 exec_lo, 0")
    e("s_mov_b32 exec_hi, 0x80000000")
    e(f"ds_write_b128 v{vX}, {vr(vD,4)}")
    e(f"s_mov_b64 exec, s[{sIXF}:{sIXF+1}]")
    e(f"v_lshlrev_b32 v{vX+1}, 2, v{vQ4}")
    e(f"v_add_u32 v{vX+1}, {FIN}, v{vX+1}")
    e("s_waitcnt lgkmcnt(0)")
    e("s_barrier")
    e(f"s_cmp_lg_u32 s{sW}, 0")
    e("s_cbranch_scc1 L_TS")
    for k in range(4): e(f"ds_read_b32 v{vD+k}, v{vX+1} offset:{16*k}")
    e("s_waitcnt lgkmcnt(0)")
    e(f"v_add_f32 v{vD}, v{vD}, v{vD+1}")
    e(f"v_add_f32 v{vD+2}, v{vD+2}, v{vD+3}")
    e(f"v_add_f32 v{vD}, v{vD}, v{vD+2}")
    rnd(vD)
    e(f"v_add_f32 v{vD}, v{vD}, v{vB2}")
    rnd(vD)
    e(f"v_add_f32 v{vD}, v{vD}, v{vXW}")
    rnd(vD)
    e(f"v_mul_f32 v{vD}, 0xbfb8aa3b, v{vD}")
    e(f"v_exp_f32 v{vD}, v{vD}")
    e("s_nop 0")
    e(f"v_add_f32 v{vD}, 1.0, v{vD}")
    e(f"v_rcp_f32 v{vD}, v{vD}")
    e("s_nop 0")
    e(f"v_cvt_pk_bf16_f32 v{vD}, v{vD}, v{vD}")
    e("s_mov_b32 exec_lo, 0x80008000")
    e("s_mov_b32 exec_hi, 0x80008000")
    e(f"buffer_store_short v{vD}, v{vOUTO}, s[{sOUT}:{sOUT+3}], 0 offen")
    e("s_mov_b64 exec, -1")
    E.lab("L_TS")
    if pro:
        e("s_branch L_END")
        E.lab("L_TS2")
        srd(sWS, P_WS, 32 << 20)
        srd(sDBG, P_DBG, 256)
    if TS:
        nostamp[0] = pro
        stamp("end")
        nostamp[0] = False
        if rt:
            e(f"v_mov_b32 v{vTmp}, 16")
            e(f"v_mov_b32 v{vTmp+1}, 1")
            e("s_mov_b64 exec, 1")
            e(f"buffer_atomic_add v{vTmp+1}, v{vTmp}, s[{sDBG}:{sDBG+3}], 0 offen sc1")
            e("s_waitcnt vmcnt(0)")
            e(f"s_mov_b32 s{sCnt}, 0")
            E.lab("L_CAL")
            e(f"buffer_load_dword v{vTmp+2}, v{vTmp}, s[{sDBG}:{sDBG+3}], 0 offen sc1")
            e("s_waitcnt vmcnt(0)")
            e(f"v_readfirstlane_b32 s{sT0}, v{vTmp+2}")
            e(f"s_add_u32 s{sCnt}, s{sCnt}, 1")
            e(f"s_cmp_gt_u32 s{sCnt}, 20000")
            e("s_cbranch_scc1 L_CALOK")
            e(f"s_cmp_lt_u32 s{sT0}, 1024")
            e("s_cbranch_scc1 L_CAL")
            E.lab("L_CALOK")
            stamp("cal")
            e("s_mov_b64 exec, -1")
        n = tsn[0]
        assert sTS + 2 * n <= 102, n
        e(f"s_lshl_b32 s{sT0}, s2, 2")
        e(f"s_add_u32 s{sT0}, s{sT0}, s{sW}")
        e(f"s_lshl_b32 s{sT0}, s{sT0}, 6")
        e(f"s_add_u32 s{sT0}, s{sT0}, {16<<20}")
        e(f"v_mov_b32 v{vTmp}, 0")
        e("s_mov_b64 exec, 1")
        for k in range(n):
            if rt: e(f"s_mov_b32 s{sT1}, s{sTS+2*k}")
            else: e(f"s_sub_u32 s{sT1}, s{sTS+2*k}, s{sTS}")
            e(f"v_mov_b32 v{vTmp+1}, s{sT1}")
            e(f"buffer_store_dword v{vTmp+1}, v{vTmp}, s[{sWS}:{sWS+3}], s{sT0} offen offset:{4*k}")
    e("s_branch L_END")
    E.lab("L_NONCE_SLOW")
    e(f"buffer_load_dword v{vFL}, v{vTmp+5}, s[{sDBG}:{sDBG+3}], 0 offen sc1")
    e("s_waitcnt vmcnt(0)")
    e(f"v_readfirstlane_b32 s{sT3}, v{vFL}")
    e(f"s_add_u32 s{sCnt}, s{sCnt}, 1")
    e("s_nop 3")
    e(f"s_cmp_gt_u32 s{sCnt}, 200000")
    e("s_cbranch_scc1 L_NONCE_FIX")
    e(f"s_cmp_lt_i32 s{sT3}, 0")
    e("s_cbranch_scc0 L_NONCE_SLOW")
    E.lab("L_NONCE_FIX")
    for r in range(4): e(f"v_bfe_u32 v{vTag+r}, v{vFL}, {6*r}, 6")
    e("s_branch L_NONCEOK")
    E.lab("L_END")
    e("s_endpgm")
    E.lab("L_CODE_END")

    out = [HDR + f"; @launch grid=(256,1,1) block=(256,1,1) lds={LDS_TOTAL}",
           '.amdgcn_target "amdgcn-amd-amdhsa--gfx950"', ".text", f".globl {NAME}", ".p2align 8",
           f".type {NAME},@function"]
    out += E.L
    out += ['.section .rodata,"a"', ".p2align 6", f".amdhsa_kernel {NAME}",
            "  .amdhsa_next_free_vgpr 384", "  .amdhsa_next_free_sgpr 102", "  .amdhsa_accum_offset 256",
            "  .amdhsa_group_segment_fixed_size 0", "  .amdhsa_kernarg_size 96", "  .amdhsa_user_sgpr_count 2",
            "  .amdhsa_user_sgpr_kernarg_segment_ptr 1", "  .amdhsa_system_sgpr_workgroup_id_x 1",
            ".end_amdhsa_kernel"]
    return "\n".join(out) + "\n", names

if __name__ == "__main__":
    ap = argparse.ArgumentParser()
    ap.add_argument("-o", default="k.s")
    ap.add_argument("-R", type=int, default=4)
    ap.add_argument("--ts", default=None)
    ap.add_argument("--notouch", action="store_true")
    ap.add_argument("--nocodetouch", action="store_true")
    ap.add_argument("--sleep", type=int, default=4)
    ap.add_argument("--steps", default="")
    ap.add_argument("--pro", action="store_true")
    ap.add_argument("--rt", action="store_true")
    ap.add_argument("--direct", action="store_true")
    ap.add_argument("--noearlyw", action="store_true")
    ap.add_argument("--tlag", type=int, default=6)
    ap.add_argument("--wsoff", type=int, default=0)
    a = ap.parse_args()
    st = tuple(a.ts.split(",")) if a.ts else ()
    steps = tuple(int(x) for x in a.steps.split(",") if x)
    st = st + tuple(f"s{x}" for x in steps)
    txt, names = gen(R=a.R, TS=a.ts is not None, touch=not a.notouch, stamps=st, sleep=a.sleep,
                     codetouch=not a.nocodetouch, stepstamps=steps, pro=a.pro, rt=a.rt, direct=a.direct, earlyw=not a.noearlyw, tlag=a.tlag, wsoff=a.wsoff << 20)
    open(a.o, "w").write(txt)
    if a.ts: open(a.o.replace(".s", ".names"), "w").write(" ".join(names))
```

```python
import sys, argparse
from gen import Em, vr, ar, HDR, NAME

def gen(R=4, TS=False, NSTEP=25, touch=True, stamps=(), sleep=4, codetouch=True, stepstamps=(), pro=False, rt=False,
        direct=False, earlyw=True, tlag=6, wsoff=0, b0first=True, ldf='sc1', drop=0, diag=False, warmws=None, smfirst=14, wpieces=0, wstart=12, prew=False, tlbw=0):
    E = Em()
    tlbw_late = False
    e = E.e
    OOB = 0x7ffffff0
    TBL = 0
    IDXL = 81920
    def IDXC(c): return 83968 + (5 - c) * 8192
    T1B = 51200
    FIN = T1B + 98304
    LDS_TOTAL = FIN + 64
    sW1, sTB, sIX, sWS, sMI = 4, 8, 12, 16, 20
    P_IDX, P_TBL, P_XW, P_WW, P_BW, P_W1, P_B1, P_W2, P_B2, P_OUT, P_DBG, P_WS = [24 + 2 * i for i in range(12)]
    sW = 3
    sNI, sS, sMIi, sP = 48, 49, 50, 51
    sT0, sT1, sT2, sT3 = 52, 53, 54, 55
    sBbase, sB24, sBoff = 56, 57, 58
    s80 = 59
    sX = 60
    sIn0 = 61
    sMask = 62
    sCnt = 63
    sDBG = 64
    sOUT = 68
    sSt = 72
    sIXF = 76
    sPC = 78
    sTS = 80
    vLane, vC, vQ4 = 1, 2, 3
    vB0, vB1, vQ = 4, 5, 6
    vL16 = 7
    vTmp = 8
    vB1a, vB1b, vW2a, vW2b = 14, 15, 16, 17
    vXW, vWW, vBW, vB2 = 18, 19, 20, 21
    vFL = 22
    vSel = 23
    vGA = 24
    vIA = 32
    vIA2 = 40
    vDT = 48
    vST = 52
    vW = 53
    vRD = 56
    vOUTO = 57
    vIND = 58
    vTag = 60
    vACC0 = 64
    vBF = 96
    vI = 128
    vRAW = 160
    assert vRAW + 16 * R <= 236
    vT1 = 96
    vTo48, vTo16, vTo4, vIXl, vIXo, vTBo, vTBw = 239, 240, 241, 242, 243, 244, 245
    vTouch = 250
    vDG = 232
    sDGc = 100
    aACC = 0
    aAF = 96
    aTB = 0

    def acc(tp, n):
        if tp < 2: return vr(vACC0 + (tp * 4 + n) * 4, 4)
        return ar(aACC + ((tp - 2) * 4 + n) * 4, 4)
    def afrag(tp): return ar(aAF + tp * 4, 4)
    def bfrag(i, n): return vr(vBF + (i % 2) * 16 + n * 4, 4)
    def raw(i, jj, cp=None):
        b = vRAW + 16 * (i % R) + 4 * jj
        return vr(b, 4) if cp is None else vr(b + cp)

    tsn = [0]; names = []; nostamp = [False]
    def stamp(name):
        if not TS or nostamp[0]: return
        if stamps and name not in stamps and name != "cal": return
        k = tsn[0]; tsn[0] += 1
        names.append(name)
        e(f"{'s_memrealtime' if rt else 's_memtime'} s[{sTS+2*k}:{sTS+2*k+1}]")
        E.wait_all(vm=False, lg=True)

    def emit_item(it):
        if it is None: return
        if it[0] in ("s", "v"): e(it[1])
        elif it[0] == "vm": E.vm(it[1], it[2])
        elif it[0] == "lg": E.lg(it[1], it[2])
        elif it[0] == "wvm": E.wait_vm(it[1])
        elif it[0] == "wlg": E.wait_lg(it[1])
        elif it[0] == "wboth": wait_both(it[1], it[2])
        else: raise ValueError(it)
    def wait_both(vtag, ltag):
        parts = []
        if vtag is not None and vtag in E.vmq:
            idx = len(E.vmq) - 1 - E.vmq[::-1].index(vtag)
            n = len(E.vmq) - 1 - idx
            E.vmq = E.vmq[idx + 1:]
            parts.append(f"vmcnt({min(n, 63)})")
        if ltag is not None and ltag in E.lgq:
            idx = len(E.lgq) - 1 - E.lgq[::-1].index(ltag)
            n = len(E.lgq) - 1 - idx
            assert n <= 15, n
            E.lgq = E.lgq[idx + 1:]
            parts.append(f"lgkmcnt({n})")
        if parts: e("s_waitcnt " + " ".join(parts))
    def emit_items(its):
        for it in its: emit_item(it)
    def srd_items(d, p, nbytes, addoff=None):
        out = []
        if addoff is None:
            out.append(("s", f"s_mov_b32 s{d}, s{p}"))
            out.append(("s", f"s_and_b32 s{d+1}, s{p+1}, 0xffff"))
        else:
            out.append(("s", f"s_add_u32 s{d}, s{p}, s{addoff}"))
            out.append(("s", f"s_addc_u32 s{d+1}, s{p+1}, 0"))
            out.append(("s", f"s_and_b32 s{d+1}, s{d+1}, 0xffff"))
        out.append(("s", f"s_mov_b32 s{d+2}, {nbytes}"))
        out.append(("s", f"s_mov_b32 s{d+3}, 0x00020000"))
        return out
    def srd(*a, **k): emit_items(srd_items(*a, **k))
    def fieldoff(i): return (16 * (i // 4) + i % 4) * 131072
    def bload(i):
        out = []
        if i < 24: out.append(("s", f"s_add_u32 s{sBoff}, s{sBbase}, {fieldoff(i)}"))
        else: out.append(("s", f"s_mov_b32 s{sBoff}, s{sB24}"))
        for jj in range(4):
            vo = vB0 if jj < 2 else vB1
            out.append(("vm", f"buffer_load_dwordx4 {raw(i,jj)}, v{vo}, s[{sW1}:{sW1+3}], s{sBoff} offen offset:{(jj%2)*2048}", f"raw{i}"))
        return out
    def idx_dma(c):
        out = []
        if c < 6:
            out.append(("s", f"s_lshl_b32 s{sT0}, s{sW}, 11"))
            out.append(("s", f"s_mul_i32 s{sT1}, s{sW}, 12800"))
            for h in range(2):
                out.append(("s", f"s_add_u32 m0, s{sT0}, {IDXC(c) + h*1024}"))
                out.append(("s", f"s_add_u32 s{sT2}, s{sT1}, {h*6400 + c*64}"))
                out.append(("vm", f"buffer_load_dwordx4 v{vIXo}, s[{sIX}:{sIX+3}], s{sT2} offen lds", f"idxd{c}"))
        else:
            out.append(("s", f"s_and_b32 s{sT0}, s{sW}, 1"))
            out.append(("s", f"s_mul_i32 s{sT1}, s{sT0}, 25600"))
            out.append(("s", f"s_lshl_b32 s{sT0}, s{sT0}, 10"))
            out.append(("s", f"s_add_u32 m0, s{sT0}, {IDXL}"))
            out.append(("s", "s_nop 0"))
            out.append(("vm", f"buffer_load_dwordx4 v{vIXl}, s[{sIX}:{sIX+3}], s{sT1} offen lds", f"idxd{c}"))
        return out
    def touch_grp(m, dst):
        out = [("s", f"s_lshl_b32 s{sT0}, s{sMIi}, 12")]
        if m < 6:
            out.append(("s", f"s_add_u32 s{sT0}, s{sT0}, s{sBbase}"))
            if m: out.append(("s", f"s_add_u32 s{sT0}, s{sT0}, {m<<21}"))
            out.append(("vm", f"buffer_load_dword v{dst}, v{vTo16}, s[{sW1}:{sW1+3}], s{sT0} offen", "touch"))
        else:
            out.append(("s", f"s_add_u32 s{sT0}, s{sT0}, s{sB24}"))
            out.append(("vm", f"buffer_load_dword v{dst}, v{vTo4}, s[{sW1}:{sW1+3}], s{sT0} offen", "touch"))
        return out
    def xp(i, k):
        cp, jj = k // 4, k % 4
        t = vDT + (k % 4)
        return (("v", f"v_mov_b32_dpp v{t}, {raw(i, jj, cp)} row_ror:8 row_mask:0xf bank_mask:0xf"),
                ("v", f"v_perm_b32 v{vBF + (i%2)*16 + cp*4 + jj}, v{t}, {raw(i, jj, cp)}, v{vSel}"))

    E.lab(NAME)
    e("s_cmp_ge_u32 s2, 256")
    e("s_cbranch_scc1 L_END")
    e("s_load_dwordx16 s[24:39], s[0:1], 0")
    e("s_load_dwordx8 s[40:47], s[0:1], 64")
    if TS:
        e(f"{'s_memrealtime' if rt else 's_memtime'} s[{sTS}:{sTS+1}]"); tsn[0] = 1
    e(f"s_getpc_b64 s[{sPC}:{sPC+1}]")
    E.lab("L_PCREF")
    e(f"v_and_b32 v{vLane}, 63, v0")
    e(f"v_lshrrev_b32 v{vTmp}, 6, v0")
    e(f"v_and_b32 v{vC}, 15, v0")
    e(f"v_readfirstlane_b32 s{sW}, v{vTmp}")
    e(f"s_lshr_b32 s{sT0}, s2, 3")
    e(f"s_lshl_b32 s{sX}, s{sT0}, 2")
    e(f"v_mov_b32 v{vTmp+5}, 0x{OOB:x}")
    e(f"s_add_u32 s{sX}, s{sX}, s{sW}")
    if codetouch:
        e(f"v_lshlrev_b32 v{vTmp}, 14, v{vLane}")
        e(f"s_lshl_b32 s{sT1}, s{sX}, 7")
        e(f"v_add_u32 v{vTmp}, s{sT1}, v{vTmp}")
        e(f"s_mov_b32 s{sT1}, L_CODE_END-L_PCREF")
        e(f"v_cmp_gt_u32 vcc, s{sT1}, v{vTmp}")
        e(f"s_and_saveexec_b64 s[{sIXF}:{sIXF+1}], vcc")
        e("s_cbranch_execz L_NOCT")
        E.vm(f"global_load_dword v{vTouch}, v{vTmp}, s[{sPC}:{sPC+1}]", "touchC")
        E.lab("L_NOCT")
        e(f"s_mov_b64 exec, s[{sIXF}:{sIXF+1}]")
    e(f"v_lshrrev_b32 v{vQ4}, 4, v{vLane}")
    e(f"s_and_b32 s{sNI}, s2, 7")
    e(f"s_and_b32 s{sS}, s{sT0}, 3")
    e(f"s_lshr_b32 s{sMIi}, s{sT0}, 2")
    e(f"s_lshl_b32 s{sP}, s{sNI}, 2")
    e(f"s_add_u32 s{sP}, s{sP}, s{sS}")
    e(f"s_movk_i32 s{s80}, 80")
    e(f"s_lshl_b32 s{sT0}, s{sS}, 15")
    e(f"s_lshl_b32 s{sT1}, s{sNI}, 7")
    e(f"s_add_u32 s{sT0}, s{sT0}, s{sT1}")
    e(f"s_lshl_b32 s{sT1}, s{sW}, 19")
    e(f"s_add_u32 s{sBbase}, s{sT0}, s{sT1}")
    e(f"s_add_u32 s{sT1}, s{sW}, 96")
    e(f"s_lshl_b32 s{sT1}, s{sT1}, 17")
    e(f"s_add_u32 s{sB24}, s{sT0}, s{sT1}")
    e(f"v_lshlrev_b32 v{vTmp}, 7, v{vLane}")
    e(f"v_cmp_gt_u32 vcc, 16, v{vLane}")
    e(f"v_lshrrev_b32 v{vTmp+3}, 1, v{vLane}")
    e(f"v_mul_u32_u24 v{vTmp+3}, 400, v{vTmp+3}")
    e(f"v_cndmask_b32 v{vTouch+3}, v{vTmp+5}, v{vTmp}, vcc")
    e(f"v_and_b32 v{vTmp+4}, 1, v{vLane}")
    e(f"v_mul_u32_u24 v{vTmp+4}, 60, v{vTmp+4}")
    e(f"v_add_u32 v{vTmp+3}, v{vTmp+3}, v{vTmp+4}")
    e(f"v_cndmask_b32 v{vTouch+4}, v{vTmp+5}, v{vTmp+3}, vcc")
    e(f"v_lshlrev_b32 v{vTmp}, 21, v{vQ4}")
    e(f"v_bfe_u32 v{vTmp+3}, v{vLane}, 2, 2")
    e(f"v_lshl_add_u32 v{vTmp}, v{vTmp+3}, 17, v{vTmp}")
    e(f"v_and_b32 v{vTmp+3}, 3, v{vLane}")
    e(f"v_lshl_add_u32 v{vTmp}, v{vTmp+3}, 10, v{vTmp}")
    e(f"v_bfe_u32 v{vTmp+2}, v0, 3, 1")
    e(f"v_cndmask_b32 v{vTo16}, v{vTmp+5}, v{vTmp}, vcc")
    e(f"v_cmp_gt_u32 vcc, 48, v{vLane}")
    e(f"v_lshlrev_b32 v{vB0}, 13, v{vQ4}")
    e(f"v_lshl_add_u32 v{vB0}, v{vTmp+2}, 10, v{vB0}")
    e(f"v_cndmask_b32 v{vTo48}, v{vTmp+5}, v{vTmp}, vcc")
    e(f"v_cmp_gt_u32 vcc, 4, v{vLane}")
    e(f"v_and_b32 v{vTmp+1}, 7, v0")
    e(f"v_lshl_add_u32 v{vB0}, v{vTmp+1}, 4, v{vB0}")
    e(f"v_cndmask_b32 v{vTo4}, v{vTmp+5}, v{vTmp}, vcc")
    e(f"v_add_u32 v{vB1}, 0x1000, v{vB0}")
    e(f"v_lshrrev_b32 v{vTmp}, 2, v{vLane}")
    e(f"v_and_b32 v{vTmp+1}, 3, v{vLane}")
    e(f"v_lshlrev_b32 v{vTmp+1}, 4, v{vTmp+1}")
    e(f"v_lshl_add_u32 v{vTBo}, v{vTmp}, 8, v{vTmp+1}")
    e(f"v_mad_u32_u24 v{vTBw}, v{vTmp}, s{s80}, v{vTmp+1}")
    e(f"s_mul_i32 s{sT0}, s{sW}, 20480")
    e(f"v_add_u32 v{vTBw}, s{sT0}, v{vTBw}")
    e(f"s_movk_i32 s{sT1}, 400")
    e(f"v_mul_u32_u24 v{vIXo}, s{sT1}, v{vTmp}")
    e(f"v_and_b32 v{vTmp+1}, 3, v{vLane}")
    e(f"v_xor_b32 v{vTmp}, v{vQ4}, v{vTmp+1}")
    e(f"v_lshl_add_u32 v{vIXo}, v{vTmp}, 4, v{vIXo}")
    e(f"v_mul_u32_u24 v{vIXl}, s{sT1}, v{vLane}")
    e(f"v_add_u32 v{vIXl}, 384, v{vIXl}")
    e("s_waitcnt lgkmcnt(0)")
    stamp("kernarg")
    srd(sTB, P_TBL, 256000)
    srd(sIXF, P_IDX, 409600)
    if touch:
        e(f"s_lshl_b32 s{sT0}, s{sX}, 11")
        E.vm(f"buffer_load_dword v{vTouch}, v{vTouch+3}, s[{sTB}:{sTB+3}], s{sT0} offen", "touchA")
        e(f"s_mul_i32 s{sT0}, s{sX}, 3200")
        E.vm(f"buffer_load_dword v{vTouch+1}, v{vTouch+4}, s[{sIXF}:{sIXF+3}], s{sT0} offen", "touchA")
    if tlbw:
        srd(sWS, P_WS, 8 << 20 if not TS else 32 << 20)
        e(f"v_mul_u32_u24 v{vTmp+3}, {65536 // tlbw}, v{vLane}")
        e(f"v_cmp_gt_u32 vcc, {tlbw}, v{vLane}")
        e(f"s_lshl_b32 s{sT0}, s{sX}, 16")
        e("s_nop 0")
        e(f"v_cndmask_b32 v{vTmp+3}, v{vTmp+5}, v{vTmp+3}, vcc")
        if tlbw_late:
            pass
        E.vm(f"buffer_load_dword v{vTouch+5}, v{vTmp+3}, s[{sWS}:{sWS+3}], s{sT0} offen", "tlbw")
    stamp("touchA")
    def early_loads():
        e(f"s_mul_i32 s{sT3}, s{sMIi}, 51200")
        srd(sIX, P_IDX, 51200, addoff=sT3)
        emit_items(idx_dma(0))
        srd(sW1, P_W1, 13107200)
        emit_items(bload(0))
    if b0first: early_loads()
    consts = []
    def C(x): consts.append(x)
    C(f"v_mov_b32 v{vSel}, 0x05040100")
    C(f"v_mov_b32 v{vTmp+3}, 0x03020706")
    C(f"v_cmp_eq_u32 vcc, 1, v{vTmp+2}")
    C(f"v_lshlrev_b32 v{vQ}, 4, v{vQ4}")
    C(f"v_lshlrev_b32 v{vL16}, 4, v{vLane}")
    C(f"v_cndmask_b32 v{vSel}, v{vSel}, v{vTmp+3}, vcc")
    C(f"v_bfe_u32 v{vTmp}, v{vC}, 2, 2")
    C(f"v_xor_b32 v{vTmp}, s{sW}, v{vTmp}")
    C(f"v_lshlrev_b32 v{vTmp}, 4, v{vTmp}")
    C(f"v_lshl_add_u32 v{vTmp}, v{vC}, 6, v{vTmp}")
    C(f"v_lshlrev_b32 v{vTmp+1}, 4, v{vC}")
    C(f"s_lshl_b32 s{sT0}, s{sW}, 1")
    C(f"s_lshl_b32 s{sT2}, s{sW}, 2")
    for tp in range(8):
        C(f"s_add_u32 s{sSt}, s{sT0}, {tp}")
        C(f"s_and_b32 s{sSt}, s{sSt}, 7")
        C(f"s_lshl_b32 s{sT3}, s{sSt}, 10")
        C(f"s_add_u32 s{sT3}, s{sT3}, {IDXC(5)}")
        C(f"v_add_u32 v{vIA+tp}, s{sT3}, v{vTmp}")
        C(f"s_lshl_b32 s{sT3}, s{sSt}, 8")
        C(f"s_add_u32 s{sT3}, s{sT3}, s{sT2}")
        C(f"s_add_u32 s{sT3}, s{sT3}, {IDXL}")
        C(f"v_add_u32 v{vIA2+tp}, s{sT3}, v{vTmp+1}")
    e(f"s_lshl_b32 s{sT1}, s{sW}, 16")
    e(f"s_lshl_b32 s{sSt+1}, s{sS}, 6")
    e(f"s_add_u32 s{sT1}, s{sT1}, s{sSt+1}")
    LAG = tlag
    per = -(-len(consts) // 12)
    for n in range(16):
        if n > 0: e(f"s_add_u32 s{sT1}, s{sT1}, 4096")
        E.vm(f"buffer_load_dwordx4 {ar(aTB+4*n,4)}, v{vTBo}, s[{sTB}:{sTB+3}], s{sT1} offen", f"tbl{n}")
        for _ in range(per):
            if consts: e(consts.pop(0))
        if n >= LAG:
            E.wait_vm(f"tbl{n-LAG}")
            E.lg(f"ds_write_b128 v{vTBw}, {ar(aTB+4*(n-LAG),4)} offset:{(n-LAG)*1280}", "tblw")
    while consts: e(consts.pop(0))
    if not b0first: early_loads()
    stamp("tbliss")
    if touch:
        e(f"s_lshl_b32 s{sT0}, s{sMIi}, 12")
        e(f"s_add_u32 s{sT0}, s{sT0}, s{sBbase}")
        E.vm(f"buffer_load_dword v{vTouch+2}, v{vTo48}, s[{sW1}:{sW1+3}], s{sT0} offen", "touchB")
    if not b0first:
        for n in range(16 - LAG, 16):
            E.wait_vm(f"tbl{n}")
            E.lg(f"ds_write_b128 v{vTBw}, {ar(aTB+4*n,4)} offset:{n*1280}", "tblw")
        emit_items(bload(1))
        emit_items(idx_dma(1))
    E.wait_vm("raw0")
    for k in range(16):
        d, p = xp(0, k)
        emit_item(d); emit_item(p)
        if b0first and k % 3 == 2 and (16 - LAG + k // 3) < 16:
            n = 16 - LAG + k // 3
            E.wait_vm(f"tbl{n}")
            E.lg(f"ds_write_b128 v{vTBw}, {ar(aTB+4*n,4)} offset:{n*1280}", "tblw")
    for n in range(16 - LAG, 16):
        if f"tbl{n}" in E.vmq:
            E.wait_vm(f"tbl{n}")
            E.lg(f"ds_write_b128 v{vTBw}, {ar(aTB+4*n,4)} offset:{n*1280}", "tblw")
    stamp("tbl15")
    if b0first:
        emit_items(bload(1))
        emit_items(idx_dma(1))
    e(f"s_or_b32 s{sT0}, s2, s{sW}")
    e(f"s_cmp_lg_u32 s{sT0}, 0")
    e("s_cbranch_scc1 L_NONONCE")
    e(f"s_memrealtime s[{sT2}:{sT3}]")
    srd(sDBG, P_DBG, 256)
    e("s_waitcnt lgkmcnt(0)")
    e(f"s_and_b32 s{sT2}, s{sT2}, 0xffffff")
    e(f"s_or_b32 s{sT2}, s{sT2}, 0x80000000")
    e(f"v_mov_b32 v{vTmp}, s{sT2}")
    e(f"v_mov_b32 v{vTmp+1}, 0")
    e(f"s_mov_b64 s[{sSt}:{sSt+1}], exec")
    e("s_mov_b64 exec, 1")
    e(f"buffer_store_dword v{vTmp}, v{vTmp+1}, s[{sDBG}:{sDBG+3}], 0 offen sc1")
    e(f"s_mov_b64 exec, s[{sSt}:{sSt+1}]")
    E.lab("L_NONONCE")
    stamp("tblw")
    E.wait_vm("idxd0")
    E.wait_all(vm=False, lg=True)
    e("s_barrier")
    stamp("barrier1")
    if pro:
        e("s_branch L_TS2")
        nostamp[0] = True

    def idx_read_items(group):
        out = []
        for tp in range(8):
            if group < 6:
                out.append(("lg", f"ds_read_b128 {vr(vI+4*tp,4)}, v{vIA+tp} offset:{(5-group)*8192}", f"idx{group}_{tp}"))
            else:
                out.append(("lg", f"ds_read_b32 v{vI+4*tp}, v{vIA2+tp}", f"idx{group}_{tp}"))
        return out
    def addr_item(i, tp):
        comp = i % 4 if i < 24 else 0
        return ("v", f"v_mad_u32_u24 v{vGA+tp}, v{vI+4*tp+comp}, s{s80}, v{vQ}")
    def gather_item(i, tp):
        return ("lg", f"ds_read_b128 {afrag(tp)}, v{vGA+tp} offset:{TBL}", f"g{i}_{tp}")

    emit_items(idx_read_items(0))
    emit_items(bload(2))
    for tp in range(8):
        E.wait_lg(f"idx0_{tp}")
        emit_item(addr_item(0, tp))
        if tp < 7: emit_item(gather_item(0, tp))
    wait_both("raw1", "g0_3")

    sA0, sA1, sA2 = 76, 77, 78
    vWm = 59
    if wpieces or prew:
        srd(sWS, P_WS, 8 << 20 if not TS else 32 << 20)
        e(f"s_lshl_b32 s{sA0}, s{sMIi}, 5")
        e(f"s_add_u32 s{sA1}, s{sA0}, s{sP}")
        e(f"s_lshl_b32 s{sA1}, s{sA1}, 15")
        e(f"s_lshl_b32 s{sA2}, s{sW}, 13")
        e(f"s_add_u32 s{sIn0}, s{sA1}, s{sA2}")
        n_l = 64 // max(wpieces, 1)
        e(f"v_lshlrev_b32 v{vWm}, 7, v{vLane}")
        e(f"v_mov_b32 v{vTmp}, 0x{OOB:x}")
        e(f"v_cmp_gt_u32 vcc, {n_l}, v{vLane}")
        e("s_nop 1")
        e(f"v_cndmask_b32 v{vWm}, v{vTmp}, v{vWm}, vcc")
        e(f"v_lshlrev_b32 v{vST}, 15, v{vQ4}")
        e(f"v_lshl_add_u32 v{vST}, v{vC}, 4, v{vST}")
        e(f"s_lshl_b32 s{sA1}, s{sW}, 3")
        e(f"s_add_u32 s{sA1}, s{sA0}, s{sA1}")
        e(f"s_lshl_b32 s{sA1}, s{sA1}, 15")
        e(f"s_lshl_b32 s{sA2}, s{sP}, 10")
        e(f"s_add_u32 s{sSt}, s{sA1}, s{sA2}")
        e(f"s_add_u32 s{sSt+1}, s{sSt}, {4*32768}")
    def small_items():
        out = []
        def S(x): out.append(("s", x))
        def V(x): out.append(("v", x))
        if wsoff:
            S(f"s_mov_b32 s{sA0}, {wsoff}")
            out += srd_items(sWS, P_WS, 8 << 20, addoff=sA0)
        else:
            out += srd_items(sWS, P_WS, 8 << 20 if not TS else 32 << 20)
        out += srd_items(sDBG, P_DBG, 256)
        V(f"v_mov_b32 v{vTmp+5}, 0")
        out.append(("vm", f"buffer_load_dword v{vFL}, v{vTmp+5}, s[{sDBG}:{sDBG+3}], 0 offen sc1", "nonce"))
        out += srd_items(sOUT, P_OUT, 2048)
        V(f"v_and_b32 v{vTmp}, 7, v{vLane}")
        V(f"v_lshlrev_b32 v{vTmp}, 3, v{vTmp}")
        V(f"v_lshl_add_u32 v{vTmp}, v{vQ4}, 1, v{vTmp}")
        V(f"v_bfe_u32 v{vTmp+1}, v{vLane}, 3, 1")
        V(f"v_add_u32 v{vTmp}, v{vTmp}, v{vTmp+1}")
        S(f"s_lshl_b32 s{sA0}, s{sW}, 7")
        V(f"v_add_u32 v{vTmp}, s{sA0}, v{vTmp}")
        V(f"v_lshlrev_b32 v{vTmp}, 1, v{vTmp}")
        out += srd_items(sMI, P_B1, 1024)
        out.append(("vm", f"buffer_load_ushort v{vB1a}, v{vTmp}, s[{sMI}:{sMI+3}], 0 offen", "small"))
        out.append(("vm", f"buffer_load_ushort v{vB1b}, v{vTmp}, s[{sMI}:{sMI+3}], 0 offen offset:128", "small"))
        out += srd_items(sMI, P_W2, 1024)
        out.append(("vm", f"buffer_load_ushort v{vW2a}, v{vTmp}, s[{sMI}:{sMI+3}], 0 offen", "small"))
        out.append(("vm", f"buffer_load_ushort v{vW2b}, v{vTmp}, s[{sMI}:{sMI+3}], 0 offen offset:128", "small"))
        S(f"s_lshl_b32 s{sA0}, s{sMIi}, 7")
        S(f"s_lshl_b32 s{sA1}, s{sP}, 2")
        S(f"s_add_u32 s{sA0}, s{sA0}, s{sA1}")
        V(f"v_add_u32 v{vTmp+1}, s{sA0}, v{vQ4}")
        V(f"v_lshlrev_b32 v{vOUTO}, 1, v{vTmp+1}")
        V(f"v_mul_u32_u24 v{vTmp+1}, 13, v{vTmp+1}")
        V(f"v_add_u32 v{vTmp+1}, v{vTmp+1}, v{vC}")
        V(f"v_lshlrev_b32 v{vTmp+1}, 1, v{vTmp+1}")
        V(f"v_mov_b32 v{vTmp+2}, 0x7fffff00")
        V(f"v_cmp_gt_u32 vcc, 13, v{vC}")
        S("s_nop 1")
        V(f"v_cndmask_b32 v{vTmp+1}, v{vTmp+2}, v{vTmp+1}, vcc")
        V(f"v_lshlrev_b32 v{vTmp+2}, 1, v{vC}")
        out += srd_items(sMI, P_XW, 26624)
        out.append(("vm", f"buffer_load_ushort v{vXW}, v{vTmp+1}, s[{sMI}:{sMI+3}], 0 offen", "small"))
        out += srd_items(sMI, P_WW, 26)
        out.append(("vm", f"buffer_load_ushort v{vWW}, v{vTmp+2}, s[{sMI}:{sMI+3}], 0 offen", "small"))
        out += srd_items(sMI, P_BW, 2)
        out.append(("vm", f"buffer_load_ushort v{vBW}, v{vTmp+5}, s[{sMI}:{sMI+3}], 0 offen", "small"))
        out += srd_items(sMI, P_B2, 2)
        out.append(("vm", f"buffer_load_ushort v{vB2}, v{vTmp+5}, s[{sMI}:{sMI+3}], 0 offen", "small"))
        for dd in range(1, 4):
            S(f"s_add_u32 s{sA0}, s{sW}, {dd}")
            S(f"s_and_b32 s{sA0}, s{sA0}, 3")
            S(f"s_mul_i32 s{sA0}, s{sA0}, 12288")
            S(f"s_add_u32 s{sA0}, s{sA0}, {T1B + (dd-1)*4096}")
            V(f"v_add_u32 v{vW+dd-1}, s{sA0}, v{vL16}")
        S(f"s_mul_i32 s{sA0}, s{sW}, 12288")
        S(f"s_add_u32 s{sA0}, s{sA0}, {T1B}")
        V(f"v_add_u32 v{vRD}, s{sA0}, v{vL16}")
        S(f"s_lshl_b32 s{sA0}, s{sMIi}, 5")
        V(f"v_lshlrev_b32 v{vST}, 15, v{vQ4}")
        V(f"v_lshl_add_u32 v{vST}, v{vC}, 4, v{vST}")
        S(f"s_lshl_b32 s{sA1}, s{sW}, 3")
        S(f"s_add_u32 s{sA1}, s{sA0}, s{sA1}")
        S(f"s_lshl_b32 s{sA1}, s{sA1}, 15")
        S(f"s_lshl_b32 s{sA2}, s{sP}, 10")
        S(f"s_add_u32 s{sSt}, s{sA1}, s{sA2}")
        S(f"s_add_u32 s{sSt+1}, s{sSt}, {4*32768}")
        S(f"s_add_u32 s{sA1}, s{sA0}, s{sP}")
        S(f"s_lshl_b32 s{sA1}, s{sA1}, 15")
        S(f"s_lshl_b32 s{sA2}, s{sW}, 13")
        S(f"s_add_u32 s{sIn0}, s{sA1}, s{sA2}")
        V(f"v_lshlrev_b32 v{vIND}, 7, v{vLane}")
        if warmws is not None and not wpieces:
            out.append(("vm", f"buffer_load_dword v{vTouch+5}, v{vIND}, s[{sWS}:{sWS+3}], s{sIn0} offen {warmws}", "warmws"))
        S(f"s_mov_b32 s{sMask}, 0xffffffc0")
        out.append(("wvm", "nonce"))
        for r in range(4): V(f"v_bfe_u32 v{vTag+r}, v{vFL}, {6*r}, 6")
        return out
    vPW = 224
    if prew:
        srd(sDBG, P_DBG, 256)
        e(f"v_mov_b32 v{vTmp+5}, 0")
        E.vm(f"buffer_load_dword v{vPW}, v{vTmp+5}, s[{sDBG}:{sDBG+3}], 0 offen sc1", "nonce0")
    smalls = small_items()
    SM_FIRST = smfirst
    SM_LAST = min(NSTEP - 1, smfirst + 10)

    OFF = {0: 49152, 1: 0}
    def t1_write(tp, n4):
        dd, sub = tp // 2, tp % 2
        a = aACC + ((tp - 2) * 4 + n4) * 4
        return f"ds_write_b128 v{vW+dd-1}, {ar(a,4)} offset:{OFF[sub] + n4*1024}"

    idx_dma_at = {1: 2, 3: 3, 7: 4, 9: 5, 11: 6}
    idx_bar_at = {1: "idxd1", 2: "idxd3", 4: "idxd6"}
    touch_at = {0: 3, 4: 4, 8: 5, 12: 6}
    for i in range(NSTEP):
        nxt = i + 1 < NSTEP
        last = not nxt
        E.c(f"---- step {i}")
        if i in stepstamps: stamp(f"s{i}")
        first = [[] for _ in range(32)]
        rest = [[] for _ in range(32)]
        order = list(range(8))
        if last and earlyw: order = [2, 4, 6, 0, 1, 3, 5, 7]
        first[0].append(gather_item(i, 7))
        idxstep = nxt and (i + 1) % 4 == 3 and i + 2 < NSTEP
        if nxt:
            for k in range(1, 8): first[4 * k].append(gather_item(i + 1, k - 1))
            for k in range(8): rest[4 * k].append(addr_item(i + 1, k))
            seq = []
            for k in range(16):
                d, p = xp(i + 1, k); seq.append((d, p))
            slots = [g for g in range(32) if g % 4 in (1, 2)]
            for x, g in enumerate(slots):
                rest[g].append(seq[x][0])
                if x > 0: rest[g].append(seq[x - 1][1])
            rest[31].append(seq[15][1])
            if idxstep:
                grp2 = (i + 2) // 4 if i + 2 < 24 else 6
                its = idx_read_items(grp2)
                if grp2 in idx_bar_at:
                    rest[2].append(("wvm", idx_bar_at[grp2]))
                    rest[2].append(("s", "s_barrier"))
                for tp, it in enumerate(its): first[4 * tp + 3].append(it)
        lds_ = [3, 4] if i == 0 else ([i + R] if i + R < NSTEP else [])
        for x, j in enumerate(lds_):
            ld = bload(j)
            if idxstep: gs = (6, 10, 14, 18)
            else: gs = (3, 7, 11, 15) if x == 0 else (19, 23, 27, 30)
            rest[gs[0] - 1 if gs[0] % 4 != 3 else gs[0] - 3].append(ld[0])
            for q_, g in enumerate(gs): first[g].append(ld[1 + q_])
        if i in idx_dma_at:
            its = idx_dma(idx_dma_at[i])
            if len(its) == 8:
                for it in its[:4]: rest[19].append(it)
                first[23].append(its[4])
                for it in its[5:7]: rest[23].append(it)
                first[27].append(its[7])
            else:
                for it in its[:5]: rest[19].append(it)
                first[23].append(its[5])
        if touch and i in touch_at:
            its = touch_grp(touch_at[i], vTouch + 4)
            for it in its[:-1]: rest[19].append(it)
            first[23 if i else 31].append(its[-1])
        if wpieces and wstart <= i < wstart + wpieces:
            k = i - wstart
            rest[19].append(("s", f"s_add_u32 s{sA2+1}, s{sIn0}, {k * (8192 // wpieces)}"))
            first[23].append(("vm", f"buffer_load_dword v{vTouch+5}, v{vWm}, s[{sWS}:{sWS+3}], s{sA2+1} offen {warmws}", "warmws"))
        if prew and wstart <= i < wstart + 8:
            k = i - wstart
            sub, n4 = k // 4, k % 4
            first[23].append(("vm", f"buffer_store_dwordx4 {vr(vPW,4)}, v{vST}, s[{sWS}:{sWS+3}], s{sSt+sub} offen offset:{n4*256} sc1", "prew"))
        if SM_FIRST <= i < SM_LAST:
            nleft = SM_LAST - i
            take = -(-len(smalls) // nleft)
            chunk = smalls[:take]; smalls = smalls[take:]
            gl = [g for g in range(32) if g % 4 == 3 and not idxstep] or [g for g in range(32) if g % 4 == 3]
            per = -(-len(chunk) // len(gl))
            k = 0
            for g in gl:
                for _ in range(per):
                    if k < len(chunk): rest[g].append(chunk[k]); k += 1
        if prew and i == wstart - 1:
            rest[27].append(("wvm", "nonce0"))
            for r in (3, 2, 1, 0):
                rest[27].append(("v", f"v_bfe_u32 v{vPW+r}, v{vPW}, {6*r}, 6"))
            for r in range(4):
                rest[31].append(("v", f"v_xor_b32 v{vPW+r}, 63, v{vPW+r}"))
        rest[15].append(("wboth", None, f"g{i}_7"))
        if nxt:
            rest[31].append(("wboth", f"raw{i+2}" if i + 2 < NSTEP else None, f"g{i+1}_3"))
        if last:
            rest[15] = []
            if earlyw:
                for pos, tp in enumerate([2, 4, 6]):
                    base = 4 * pos + 4 + 6
                    for n4 in range(4): first[base + n4].append(("lg", t1_write(tp, n4), "t1w"))
        for m in range(32):
            tp, n4 = order[m // 4], m % 4
            if last and m == 0: E.wait_lg(f"g{i}_6")
            if last and m == 16: E.wait_lg(f"g{i}_7")
            cin = "0" if i == 0 else acc(tp, n4)
            e(f"v_mfma_f32_16x16x32_bf16 {acc(tp,n4)}, {afrag(tp)}, {bfrag(i,n4)}, {cin}")
            for it in first[m]: emit_item(it)
            for it in rest[m]: emit_item(it)
    assert not smalls
    stamp("loop")
    E.c("---- T1: intra-CU reduce + publish")
    def t1_reads(sub):
        for n4 in range(4):
            for k in range(3):
                E.lg(f"ds_read_b128 {vr(vT1+32*k+16*sub+4*n4,4)}, v{vRD} offset:{OFF[sub] + k*4096+n4*1024}", f"t1r{sub}{n4}_{k}")
    def t1_sum_store(sub, n4):
        b = sub * 16 + 4 * n4
        for k in range(3):
            for h in range(2):
                e(f"v_pk_add_f32 {vr(vACC0+b+2*h,2)}, {vr(vACC0+b+2*h,2)}, {vr(vT1+32*k+b+2*h,2)}")
        for r in range(4):
            e(f"v_and_or_b32 v{vACC0+b+r}, v{vACC0+b+r}, s{sMask}, v{vTag+r}")
        E.vm(f"buffer_store_dwordx4 {vr(vACC0+b,4)}, v{vST}, s[{sWS}:{sWS+3}], s{sSt+sub} offen offset:{n4*256} sc1", "pub")
    e(f"v_readfirstlane_b32 s{sT3}, v{vFL}")
    e(f"s_mov_b32 s{sCnt}, 0")
    e("s_nop 3")
    e(f"s_cmp_lt_i32 s{sT3}, 0")
    e("s_cbranch_scc0 L_NONCE_SLOW")
    E.lab("L_NONCEOK")
    if not earlyw:
        e("s_nop 7")
        for tp in (2, 4, 6):
            for n4 in range(4): E.lg(t1_write(tp, n4), "t1w")
    E.wait_all(vm=False, lg=True)
    e("s_barrier")
    t1_reads(0)
    w1 = [t1_write(tp, n4) for tp in (3, 5, 7) for n4 in range(4)]
    for n4 in range(4):
        E.wait_lg(f"t1r0{n4}_2")
        for x in range(3): E.lg(w1.pop(0), "t1w")
        t1_sum_store(0, n4)
    E.wait_all(vm=False, lg=True)
    e("s_barrier")
    t1_reads(1)
    for n4 in range(4):
        E.wait_lg(f"t1r1{n4}_2")
        t1_sum_store(1, n4)
    stamp("T1pub")
    E.c("---- T3: poll + finish")
    vIN = vT1
    vH = vT1 + 40
    vD = vT1 + 48
    vX = vT1 + 52
    vM = vT1 + 56
    vY = vT1 + 60
    e(f"s_mov_b32 s{sT2}, 0xffff0000")
    e(f"s_add_u32 s{sT1}, s{sIn0}, 4096")
    E.wait_vm("small")
    e(f"v_lshlrev_b32 v{vB1a}, 16, v{vB1a}")
    e(f"v_lshlrev_b32 v{vB1b}, 16, v{vB1b}")
    e(f"v_lshlrev_b32 v{vW2a}, 16, v{vW2a}")
    e(f"v_lshlrev_b32 v{vW2b}, 16, v{vW2b}")
    e(f"v_lshlrev_b32 v{vXW}, 16, v{vXW}")
    e(f"v_lshlrev_b32 v{vWW}, 16, v{vWW}")
    e(f"v_mul_f32 v{vXW}, v{vXW}, v{vWW}")
    e(f"v_lshlrev_b32 v{vBW}, 16, v{vBW}")
    e(f"v_lshlrev_b32 v{vB2}, 16, v{vB2}")
    for sh in (1, 2, 4, 8):
        e(f"v_add_f32_dpp v{vXW}, v{vXW}, v{vXW} row_shr:{sh} row_mask:0xf bank_mask:0xf")
        e("s_nop 1")
    def rnd(r):
        e(f"v_cvt_pk_bf16_f32 v{r}, v{r}, v{r}")
        e(f"v_and_b32 v{r}, s{sT2}, v{r}")
    rnd(vXW)
    e(f"v_add_f32 v{vXW}, v{vXW}, v{vBW}")
    rnd(vXW)
    so = [sIn0] * 4 + [sT1] * 4
    offs = [(k % 4) * 1024 for k in range(8)]
    if "drain" in stamps:
        e("s_waitcnt vmcnt(0)")
        stamp("drain")
    if not direct:
        e(f"v_mov_b32 v{vM+4}, 0")
        e("s_branch L_IND1")
        E.lab("L_IND")
        if drop:
            e(f"s_cmp_lt_u32 s{sCnt}, {drop}")
            e("s_cbranch_scc1 L_IND_NODROP")
            e(f"s_and_saveexec_b64 s[{sIXF}:{sIXF+1}], vcc")
            e(f"buffer_atomic_or v{vM+4}, v{vIND}, s[{sWS}:{sWS+3}], s{sIn0} offen sc1")
            e(f"s_mov_b64 exec, s[{sIXF}:{sIXF+1}]")
            e("s_waitcnt vmcnt(0)")
            e("s_branch L_IND1")
            E.lab("L_IND_NODROP")
        e(f"s_sleep {sleep}")
        E.lab("L_IND1")
        e(f"buffer_load_dword v{vM+3}, v{vIND}, s[{sWS}:{sWS+3}], s{sIn0} offen {ldf}")
        e("s_waitcnt vmcnt(0)")
        e(f"v_xor_b32 v{vM+3}, v{vM+3}, v{vTag}")
        e(f"v_and_b32 v{vM+3}, 63, v{vM+3}")
        e(f"v_cmp_ne_u32 vcc, 0, v{vM+3}")
        e("s_cbranch_vccz L_INDOK")
        e(f"s_add_u32 s{sCnt}, s{sCnt}, 1")
        e(f"s_cmp_gt_u32 s{sCnt}, 100000")
        e("s_cbranch_scc0 L_IND")
        E.lab("L_INDOK")
        stamp("ind")
    if diag:
        e(f"v_mov_b32 v{vDG+1}, 0")
        e(f"s_mov_b32 s{sDGc}, 0")
        e(f"s_mov_b32 s{sDGc+1}, s{sCnt}")
    e("s_branch L_POLL1")
    E.lab("L_POLL")
    if drop:
        e(f"buffer_atomic_or v{vM+4}, v{vIND}, s[{sWS}:{sWS+3}], s{sIn0} offen sc1")
        e("s_waitcnt vmcnt(0)")
    else:
        e(f"s_sleep {sleep}")
    E.lab("L_POLL1")
    for k in range(8):
        e(f"buffer_load_dwordx4 {vr(vIN+4*k,4)}, v{vL16}, s[{sWS}:{sWS+3}], s{so[k]} offen offset:{offs[k]} {ldf}")
    e("s_waitcnt vmcnt(0)")
    E.vmq = []
    for k in range(32): e(f"v_xor_b32 v{vIN+k}, v{vIN+k}, v{vTag+(k%4)}")
    if diag:
        e(f"v_mov_b32 v{vDG}, 0")
        for k in range(8):
            e(f"v_or3_b32 v{vM}, v{vIN+4*k}, v{vIN+4*k+1}, v{vIN+4*k+2}")
            e(f"v_or_b32 v{vM}, v{vM}, v{vIN+4*k+3}")
            e(f"v_and_b32 v{vM}, 63, v{vM}")
            e(f"v_cmp_ne_u32 vcc, 0, v{vM}")
            e("s_nop 1")
            e(f"v_cndmask_b32 v{vM}, 0, 1, vcc")
            e(f"v_lshl_or_b32 v{vDG}, v{vM}, {k}, v{vDG}")
        e(f"v_cmp_ne_u32 vcc, 0, v{vDG}")
        e("s_cbranch_vccz L_DG0")
        e(f"v_mov_b32 v{vDG+1}, v{vDG}")
        e(f"v_mov_b32 v{vDG+2}, v{vIN+3}")
        e(f"s_add_u32 s{sDGc}, s{sDGc}, 1")
        E.lab("L_DG0")
    e(f"v_or3_b32 v{vM}, v{vIN}, v{vIN+1}, v{vIN+2}")
    e(f"v_or3_b32 v{vM+1}, v{vIN+3}, v{vIN+4}, v{vIN+5}")
    for k in range(6, 30, 4):
        e(f"v_or3_b32 v{vM}, v{vM}, v{vIN+k}, v{vIN+k+1}")
        e(f"v_or3_b32 v{vM+1}, v{vM+1}, v{vIN+k+2}, v{vIN+k+3}")
    e(f"v_or3_b32 v{vM}, v{vM}, v{vIN+30}, v{vIN+31}")
    e(f"v_or_b32 v{vM}, v{vM}, v{vM+1}")
    e(f"v_and_b32 v{vM}, 63, v{vM}")
    e(f"v_cmp_ne_u32 vcc, 0, v{vM}")
    e("s_cbranch_vccz L_POLLOK")
    e(f"s_add_u32 s{sCnt}, s{sCnt}, 1")
    e(f"s_cmp_gt_u32 s{sCnt}, 100000")
    e("s_cbranch_scc0 L_POLL")
    E.lab("L_POLLOK")
    stamp("poll")
    for off in (4, 8, 12):
        for nl in range(2):
            b = vIN + 16 * nl
            for h in range(2):
                a0 = vr(b + 2 * h, 2) if off == 4 else vr(vH + 4 * nl + 2 * h, 2)
                e(f"v_pk_add_f32 {vr(vH+4*nl+2*h,2)}, {a0}, {vr(b+off+2*h,2)}")
    hs = [vH + k for k in range(8)]
    for h in hs: e(f"v_cvt_pk_bf16_f32 v{h}, v{h}, v{h}")
    for h in hs: e(f"v_and_b32 v{h}, s{sT2}, v{h}")
    for k, h in enumerate(hs): e(f"v_add_f32 v{h}, v{h}, v{vB1a if k < 4 else vB1b}")
    for h in hs: e(f"v_cvt_pk_bf16_f32 v{h}, v{h}, v{h}")
    for h in hs: e(f"v_and_b32 v{h}, s{sT2}, v{h}")
    for half in range(2):
        for r in range(4):
            k = 4 * half + r
            e(f"v_cmp_lt_f32 s[{sSt+2*(r%2)}:{sSt+2*(r%2)+1}], 0, v{hs[k]}")
            if r % 2 == 1:
                e("s_nop 0")
                e(f"v_cndmask_b32 v{vY+k-1}, 0, 1.0, s[{sSt}:{sSt+1}]")
                e(f"v_cndmask_b32 v{vY+k}, 0, 1.0, s[{sSt+2}:{sSt+3}]")
    for k, h in enumerate(hs): e(f"v_mul_f32 v{h}, v{h}, v{vY+k}")
    for r in range(4): e(f"v_mul_f32 v{vD+r}, v{hs[r]}, v{vW2a}")
    for r in range(4): e(f"v_fmac_f32 v{vD+r}, v{hs[4+r]}, v{vW2b}")
    regs = [vD, vD + 1, vD + 2, vD + 3]
    for sh in (1, 2, 4, 8):
        for rg in regs: e(f"v_add_f32_dpp v{rg}, v{rg}, v{rg} row_shr:{sh} row_mask:0xf bank_mask:0xf")
    for rg in regs: e(f"v_add_f32_dpp v{rg}, v{rg}, v{rg} row_bcast:15 row_mask:0xa bank_mask:0xf")
    for rg in regs: e(f"v_add_f32_dpp v{rg}, v{rg}, v{rg} row_bcast:31 row_mask:0xc bank_mask:0xf")
    e(f"s_lshl_b32 s{sT0}, s{sW}, 4")
    e(f"s_add_u32 s{sT0}, s{sT0}, {FIN}")
    e(f"v_mov_b32 v{vX}, s{sT0}")
    e(f"s_mov_b64 s[{sIXF}:{sIXF+1}], exec")
    e("s_mov_b32 exec_lo, 0")
    e("s_mov_b32 exec_hi, 0x80000000")
    e(f"ds_write_b128 v{vX}, {vr(vD,4)}")
    e(f"s_mov_b64 exec, s[{sIXF}:{sIXF+1}]")
    e(f"v_lshlrev_b32 v{vX+1}, 2, v{vQ4}")
    e(f"v_add_u32 v{vX+1}, {FIN}, v{vX+1}")
    e("s_waitcnt lgkmcnt(0)")
    e("s_barrier")
    e(f"s_cmp_lg_u32 s{sW}, 0")
    e("s_cbranch_scc1 L_TS")
    for k in range(4): e(f"ds_read_b32 v{vD+k}, v{vX+1} offset:{16*k}")
    e("s_waitcnt lgkmcnt(0)")
    e(f"v_add_f32 v{vD}, v{vD}, v{vD+1}")
    e(f"v_add_f32 v{vD+2}, v{vD+2}, v{vD+3}")
    e(f"v_add_f32 v{vD}, v{vD}, v{vD+2}")
    rnd(vD)
    e(f"v_add_f32 v{vD}, v{vD}, v{vB2}")
    rnd(vD)
    e(f"v_add_f32 v{vD}, v{vD}, v{vXW}")
    rnd(vD)
    e(f"v_mul_f32 v{vD}, 0xbfb8aa3b, v{vD}")
    e(f"v_exp_f32 v{vD}, v{vD}")
    e("s_nop 0")
    e(f"v_add_f32 v{vD}, 1.0, v{vD}")
    e(f"v_rcp_f32 v{vD}, v{vD}")
    e("s_nop 0")
    e(f"v_cvt_pk_bf16_f32 v{vD}, v{vD}, v{vD}")
    e("s_mov_b32 exec_lo, 0x80008000")
    e("s_mov_b32 exec_hi, 0x80008000")
    e(f"buffer_store_short v{vD}, v{vOUTO}, s[{sOUT}:{sOUT+3}], 0 offen")
    e("s_mov_b64 exec, -1")
    E.lab("L_TS")
    if pro:
        e("s_branch L_END")
        E.lab("L_TS2")
        srd(sWS, P_WS, 32 << 20)
        srd(sDBG, P_DBG, 256)
    if TS:
        nostamp[0] = pro
        stamp("end")
        nostamp[0] = False
        if rt:
            e(f"v_mov_b32 v{vTmp}, 16")
            e(f"v_mov_b32 v{vTmp+1}, 1")
            e("s_mov_b64 exec, 1")
            e(f"buffer_atomic_add v{vTmp+1}, v{vTmp}, s[{sDBG}:{sDBG+3}], 0 offen sc1")
            e("s_waitcnt vmcnt(0)")
            e(f"s_mov_b32 s{sCnt}, 0")
            E.lab("L_CAL")
            e(f"buffer_load_dword v{vTmp+2}, v{vTmp}, s[{sDBG}:{sDBG+3}], 0 offen sc1")
            e("s_waitcnt vmcnt(0)")
            e(f"v_readfirstlane_b32 s{sT0}, v{vTmp+2}")
            e(f"s_add_u32 s{sCnt}, s{sCnt}, 1")
            e(f"s_cmp_gt_u32 s{sCnt}, 20000")
            e("s_cbranch_scc1 L_CALOK")
            e(f"s_cmp_lt_u32 s{sT0}, 1024")
            e("s_cbranch_scc1 L_CAL")
            E.lab("L_CALOK")
            stamp("cal")
            e("s_mov_b64 exec, -1")
        n = tsn[0]
        assert sTS + 2 * n <= (100 if diag else 102), n
        if diag:
            e(f"s_lshl_b32 s{sT0}, s2, 2")
            e(f"s_add_u32 s{sT0}, s{sT0}, s{sW}")
            e(f"s_lshl_b32 s{sT1}, s{sT0}, 8")
            e(f"s_add_u32 s{sT1}, s{sT1}, {20<<20}")
            e(f"v_lshlrev_b32 v{vTmp}, 2, v{vLane}")
            e(f"buffer_store_dword v{vDG+1}, v{vTmp}, s[{sWS}:{sWS+3}], s{sT1} offen")
            e(f"s_lshl_b32 s{sT0}, s{sT0}, 6")
            e(f"s_add_u32 s{sT0}, s{sT0}, {16<<20}")
            e(f"v_mov_b32 v{vTmp}, 0")
            e(f"v_mov_b32 v{vTmp+1}, s{sDGc}")
            e(f"buffer_store_dword v{vTmp+1}, v{vTmp}, s[{sWS}:{sWS+3}], s{sT0} offen offset:56")
            e(f"v_mov_b32 v{vTmp+1}, s{sDGc+1}")
            e(f"buffer_store_dword v{vTmp+1}, v{vTmp}, s[{sWS}:{sWS+3}], s{sT0} offen offset:60")
        e(f"s_lshl_b32 s{sT0}, s2, 2")
        e(f"s_add_u32 s{sT0}, s{sT0}, s{sW}")
        e(f"s_lshl_b32 s{sT0}, s{sT0}, 6")
        e(f"s_add_u32 s{sT0}, s{sT0}, {16<<20}")
        e(f"v_mov_b32 v{vTmp}, 0")
        e("s_mov_b64 exec, 1")
        for k in range(n):
            if rt: e(f"s_mov_b32 s{sT1}, s{sTS+2*k}")
            else: e(f"s_sub_u32 s{sT1}, s{sTS+2*k}, s{sTS}")
            e(f"v_mov_b32 v{vTmp+1}, s{sT1}")
            e(f"buffer_store_dword v{vTmp+1}, v{vTmp}, s[{sWS}:{sWS+3}], s{sT0} offen offset:{4*k}")
    e("s_branch L_END")
    E.lab("L_NONCE_SLOW")
    e(f"buffer_load_dword v{vFL}, v{vTmp+5}, s[{sDBG}:{sDBG+3}], 0 offen sc1")
    e("s_waitcnt vmcnt(0)")
    e(f"v_readfirstlane_b32 s{sT3}, v{vFL}")
    e(f"s_add_u32 s{sCnt}, s{sCnt}, 1")
    e("s_nop 3")
    e(f"s_cmp_gt_u32 s{sCnt}, 200000")
    e("s_cbranch_scc1 L_NONCE_FIX")
    e(f"s_cmp_lt_i32 s{sT3}, 0")
    e("s_cbranch_scc0 L_NONCE_SLOW")
    E.lab("L_NONCE_FIX")
    for r in range(4): e(f"v_bfe_u32 v{vTag+r}, v{vFL}, {6*r}, 6")
    e("s_branch L_NONCEOK")
    E.lab("L_END")
    e("s_endpgm")
    E.lab("L_CODE_END")

    out = [HDR + f"; @launch grid=(256,1,1) block=(256,1,1) lds={LDS_TOTAL}",
           '.amdgcn_target "amdgcn-amd-amdhsa--gfx950"', ".text", f".globl {NAME}", ".p2align 8",
           f".type {NAME},@function"]
    out += E.L
    out += ['.section .rodata,"a"', ".p2align 6", f".amdhsa_kernel {NAME}",
            "  .amdhsa_next_free_vgpr 384", "  .amdhsa_next_free_sgpr 102", "  .amdhsa_accum_offset 256",
            "  .amdhsa_group_segment_fixed_size 0", "  .amdhsa_kernarg_size 96", "  .amdhsa_user_sgpr_count 2",
            "  .amdhsa_user_sgpr_kernarg_segment_ptr 1", "  .amdhsa_system_sgpr_workgroup_id_x 1",
            ".end_amdhsa_kernel"]
    return "\n".join(out) + "\n", names

if __name__ == "__main__":
    ap = argparse.ArgumentParser()
    ap.add_argument("-o", default="k.s")
    ap.add_argument("-R", type=int, default=4)
    ap.add_argument("--ts", default=None)
    ap.add_argument("--notouch", action="store_true")
    ap.add_argument("--nocodetouch", action="store_true")
    ap.add_argument("--sleep", type=int, default=4)
    ap.add_argument("--steps", default="")
    ap.add_argument("--pro", action="store_true")
    ap.add_argument("--rt", action="store_true")
    ap.add_argument("--direct", action="store_true")
    ap.add_argument("--noearlyw", action="store_true")
    ap.add_argument("--tlag", type=int, default=6)
    ap.add_argument("--wsoff", type=int, default=0)
    ap.add_argument("--tblfirst", action="store_true")
    ap.add_argument("--ldf", default="sc1")
    ap.add_argument("--drop", type=int, default=0)
    ap.add_argument("--diag", action="store_true")
    ap.add_argument("--warmws", default=None)
    ap.add_argument("--smfirst", type=int, default=14)
    ap.add_argument("--wpieces", type=int, default=0)
    ap.add_argument("--wstart", type=int, default=12)
    ap.add_argument("--prew", action="store_true")
    ap.add_argument("--tlbw", type=int, default=0)
    a = ap.parse_args()
    st = tuple(a.ts.split(",")) if a.ts else ()
    steps = tuple(int(x) for x in a.steps.split(",") if x)
    st = st + tuple(f"s{x}" for x in steps)
    txt, names = gen(R=a.R, TS=a.ts is not None, touch=not a.notouch, stamps=st, sleep=a.sleep,
                     codetouch=not a.nocodetouch, stepstamps=steps, pro=a.pro, rt=a.rt, direct=a.direct, earlyw=not a.noearlyw, tlag=a.tlag, wsoff=a.wsoff << 20, b0first=not a.tblfirst, ldf=a.ldf.replace('_',' '), drop=a.drop, diag=a.diag, warmws=(None if a.warmws is None else a.warmws.replace('_',' ').replace('plain','')), smfirst=a.smfirst, wpieces=a.wpieces, wstart=a.wstart, prew=a.prew, tlbw=a.tlbw)
    open(a.o, "w").write(txt)
    if a.ts: open(a.o.replace(".s", ".names"), "w").write(" ".join(names))
```

```python
import sys, argparse
from gen import Em, vr, ar, HDR, NAME

def gen(R=4, TS=False, NSTEP=25, touch=True, stamps=(), sleep=4, codetouch=True, stepstamps=(), pro=False, rt=False,
        direct=False, earlyw=True, tlag=6, wsoff=0, b0first=True, ldf='sc1', drop=0, diag=False, warmws=None, smfirst=14, wpieces=0, wstart=12, prew=False, tlbw=0, flags='atomic', keeptags=True):
    E = Em()
    tlbw_late = False
    e = E.e
    OOB = 0x7ffffff0
    TBL = 0
    IDXL = 81920
    def IDXC(c): return 83968 + (5 - c) * 8192
    T1B = 51200
    FIN = T1B + 98304
    LDS_TOTAL = FIN + 64
    sW1, sTB, sIX, sWS, sMI = 4, 8, 12, 16, 20
    P_IDX, P_TBL, P_XW, P_WW, P_BW, P_W1, P_B1, P_W2, P_B2, P_OUT, P_DBG, P_WS = [24 + 2 * i for i in range(12)]
    sW = 3
    sNI, sS, sMIi, sP = 48, 49, 50, 51
    sT0, sT1, sT2, sT3 = 52, 53, 54, 55
    sBbase, sB24, sBoff = 56, 57, 58
    s80 = 59
    sX = 60
    sIn0 = 61
    sMask = 62
    sCnt = 63
    sDBG = 64
    sOUT = 68
    sSt = 72
    sIXF = 76
    sPC = 78
    sTS = 80
    vLane, vC, vQ4 = 1, 2, 3
    vB0, vB1, vQ = 4, 5, 6
    vL16 = 7
    vTmp = 8
    vB1a, vB1b, vW2a, vW2b = 14, 15, 16, 17
    vXW, vWW, vBW, vB2 = 18, 19, 20, 21
    vFL = 22
    vSel = 23
    vGA = 24
    vIA = 32
    vIA2 = 40
    vDT = 48
    vST = 52
    vW = 53
    vRD = 56
    vOUTO = 57
    vIND = 58
    vTag = 60
    vACC0 = 64
    vBF = 96
    vI = 128
    vRAW = 160
    assert vRAW + 16 * R <= 236
    vT1 = 96
    vTo48, vTo16, vTo4, vIXl, vIXo, vTBo, vTBw = 239, 240, 241, 242, 243, 244, 245
    vTouch = 250
    vFS = 59
    sFP, sFS = 98, 99
    vDG = 232
    sDGc = 100
    aACC = 0
    aAF = 96
    aTB = 0

    def acc(tp, n):
        if tp < 2: return vr(vACC0 + (tp * 4 + n) * 4, 4)
        return ar(aACC + ((tp - 2) * 4 + n) * 4, 4)
    def afrag(tp): return ar(aAF + tp * 4, 4)
    def bfrag(i, n): return vr(vBF + (i % 2) * 16 + n * 4, 4)
    def raw(i, jj, cp=None):
        b = vRAW + 16 * (i % R) + 4 * jj
        return vr(b, 4) if cp is None else vr(b + cp)

    tsn = [0]; names = []; nostamp = [False]
    def stamp(name):
        if not TS or nostamp[0]: return
        if stamps and name not in stamps and name != "cal": return
        k = tsn[0]; tsn[0] += 1
        names.append(name)
        e(f"{'s_memrealtime' if rt else 's_memtime'} s[{sTS+2*k}:{sTS+2*k+1}]")
        E.wait_all(vm=False, lg=True)

    def emit_item(it):
        if it is None: return
        if it[0] in ("s", "v"): e(it[1])
        elif it[0] == "vm": E.vm(it[1], it[2])
        elif it[0] == "lg": E.lg(it[1], it[2])
        elif it[0] == "wvm": E.wait_vm(it[1])
        elif it[0] == "wlg": E.wait_lg(it[1])
        elif it[0] == "wboth": wait_both(it[1], it[2])
        else: raise ValueError(it)
    def wait_both(vtag, ltag):
        parts = []
        if vtag is not None and vtag in E.vmq:
            idx = len(E.vmq) - 1 - E.vmq[::-1].index(vtag)
            n = len(E.vmq) - 1 - idx
            E.vmq = E.vmq[idx + 1:]
            parts.append(f"vmcnt({min(n, 63)})")
        if ltag is not None and ltag in E.lgq:
            idx = len(E.lgq) - 1 - E.lgq[::-1].index(ltag)
            n = len(E.lgq) - 1 - idx
            assert n <= 15, n
            E.lgq = E.lgq[idx + 1:]
            parts.append(f"lgkmcnt({n})")
        if parts: e("s_waitcnt " + " ".join(parts))
    def emit_items(its):
        for it in its: emit_item(it)
    def srd_items(d, p, nbytes, addoff=None):
        out = []
        if addoff is None:
            out.append(("s", f"s_mov_b32 s{d}, s{p}"))
            out.append(("s", f"s_and_b32 s{d+1}, s{p+1}, 0xffff"))
        else:
            out.append(("s", f"s_add_u32 s{d}, s{p}, s{addoff}\n    s_addc_u32 s{d+1}, s{p+1}, 0"))
            out.append(("s", f"s_and_b32 s{d+1}, s{d+1}, 0xffff"))
        out.append(("s", f"s_mov_b32 s{d+2}, {nbytes}"))
        out.append(("s", f"s_mov_b32 s{d+3}, 0x00020000"))
        return out
    def srd(*a, **k): emit_items(srd_items(*a, **k))
    def fieldoff(i): return (16 * (i // 4) + i % 4) * 131072
    def bload(i):
        out = []
        if i < 24: out.append(("s", f"s_add_u32 s{sBoff}, s{sBbase}, {fieldoff(i)}"))
        else: out.append(("s", f"s_mov_b32 s{sBoff}, s{sB24}"))
        for jj in range(4):
            vo = vB0 if jj < 2 else vB1
            out.append(("vm", f"buffer_load_dwordx4 {raw(i,jj)}, v{vo}, s[{sW1}:{sW1+3}], s{sBoff} offen offset:{(jj%2)*2048}", f"raw{i}"))
        return out
    def idx_dma(c):
        out = []
        if c < 6:
            out.append(("s", f"s_lshl_b32 s{sT0}, s{sW}, 11"))
            out.append(("s", f"s_mul_i32 s{sT1}, s{sW}, 12800"))
            for h in range(2):
                out.append(("s", f"s_add_u32 m0, s{sT0}, {IDXC(c) + h*1024}"))
                out.append(("s", f"s_add_u32 s{sT2}, s{sT1}, {h*6400 + c*64}"))
                out.append(("vm", f"buffer_load_dwordx4 v{vIXo}, s[{sIX}:{sIX+3}], s{sT2} offen lds", f"idxd{c}"))
        else:
            out.append(("s", f"s_and_b32 s{sT0}, s{sW}, 1"))
            out.append(("s", f"s_mul_i32 s{sT1}, s{sT0}, 25600"))
            out.append(("s", f"s_lshl_b32 s{sT0}, s{sT0}, 10"))
            out.append(("s", f"s_add_u32 m0, s{sT0}, {IDXL}"))
            out.append(("s", "s_nop 0"))
            out.append(("vm", f"buffer_load_dwordx4 v{vIXl}, s[{sIX}:{sIX+3}], s{sT1} offen lds", f"idxd{c}"))
        return out
    def touch_grp(m, dst):
        out = [("s", f"s_lshl_b32 s{sT0}, s{sMIi}, 12")]
        if m < 6:
            out.append(("s", f"s_add_u32 s{sT0}, s{sT0}, s{sBbase}"))
            if m: out.append(("s", f"s_add_u32 s{sT0}, s{sT0}, {m<<21}"))
            out.append(("vm", f"buffer_load_dword v{dst}, v{vTo16}, s[{sW1}:{sW1+3}], s{sT0} offen", "touch"))
        else:
            out.append(("s", f"s_add_u32 s{sT0}, s{sT0}, s{sB24}"))
            out.append(("vm", f"buffer_load_dword v{dst}, v{vTo4}, s[{sW1}:{sW1+3}], s{sT0} offen", "touch"))
        return out
    def xp(i, k):
        cp, jj = k // 4, k % 4
        t = vDT + (k % 4)
        return (("v", f"v_mov_b32_dpp v{t}, {raw(i, jj, cp)} row_ror:8 row_mask:0xf bank_mask:0xf"),
                ("v", f"v_perm_b32 v{vBF + (i%2)*16 + cp*4 + jj}, v{t}, {raw(i, jj, cp)}, v{vSel}"))

    E.lab(NAME)
    e("s_cmp_ge_u32 s2, 256")
    e("s_cbranch_scc1 L_END")
    e("s_load_dwordx16 s[24:39], s[0:1], 0")
    e("s_load_dwordx8 s[40:47], s[0:1], 64")
    if TS:
        e(f"{'s_memrealtime' if rt else 's_memtime'} s[{sTS}:{sTS+1}]"); tsn[0] = 1
    e(f"s_getpc_b64 s[{sPC}:{sPC+1}]")
    E.lab("L_PCREF")
    e(f"v_and_b32 v{vLane}, 63, v0")
    e(f"v_lshrrev_b32 v{vTmp}, 6, v0")
    e(f"v_and_b32 v{vC}, 15, v0")
    e(f"v_readfirstlane_b32 s{sW}, v{vTmp}")
    e(f"s_lshr_b32 s{sT0}, s2, 3")
    e(f"s_lshl_b32 s{sX}, s{sT0}, 2")
    e(f"v_mov_b32 v{vTmp+5}, 0x{OOB:x}")
    e(f"s_add_u32 s{sX}, s{sX}, s{sW}")
    if codetouch:
        e(f"v_lshlrev_b32 v{vTmp}, 14, v{vLane}")
        e(f"s_lshl_b32 s{sT1}, s{sX}, 7")
        e(f"v_add_u32 v{vTmp}, s{sT1}, v{vTmp}")
        e(f"s_mov_b32 s{sT1}, L_CODE_END-L_PCREF")
        e(f"v_cmp_gt_u32 vcc, s{sT1}, v{vTmp}")
        e(f"s_and_saveexec_b64 s[{sIXF}:{sIXF+1}], vcc")
        e("s_cbranch_execz L_NOCT")
        E.vm(f"global_load_dword v{vTouch}, v{vTmp}, s[{sPC}:{sPC+1}]", "touchC")
        E.lab("L_NOCT")
        e(f"s_mov_b64 exec, s[{sIXF}:{sIXF+1}]")
    e(f"v_lshrrev_b32 v{vQ4}, 4, v{vLane}")
    e(f"s_and_b32 s{sNI}, s2, 7")
    e(f"s_and_b32 s{sS}, s{sT0}, 3")
    e(f"s_lshr_b32 s{sMIi}, s{sT0}, 2")
    e(f"s_lshl_b32 s{sP}, s{sNI}, 2")
    e(f"s_add_u32 s{sP}, s{sP}, s{sS}")
    e(f"s_movk_i32 s{s80}, 80")
    e(f"s_lshl_b32 s{sT0}, s{sS}, 15")
    e(f"s_lshl_b32 s{sT1}, s{sNI}, 7")
    e(f"s_add_u32 s{sT0}, s{sT0}, s{sT1}")
    e(f"s_lshl_b32 s{sT1}, s{sW}, 19")
    e(f"s_add_u32 s{sBbase}, s{sT0}, s{sT1}")
    e(f"s_add_u32 s{sT1}, s{sW}, 96")
    e(f"s_lshl_b32 s{sT1}, s{sT1}, 17")
    e(f"s_add_u32 s{sB24}, s{sT0}, s{sT1}")
    e(f"v_lshlrev_b32 v{vTmp}, 7, v{vLane}")
    e(f"v_cmp_gt_u32 vcc, 16, v{vLane}")
    e(f"v_lshrrev_b32 v{vTmp+3}, 1, v{vLane}")
    e(f"v_mul_u32_u24 v{vTmp+3}, 400, v{vTmp+3}")
    e(f"v_cndmask_b32 v{vTouch+3}, v{vTmp+5}, v{vTmp}, vcc")
    e(f"v_and_b32 v{vTmp+4}, 1, v{vLane}")
    e(f"v_mul_u32_u24 v{vTmp+4}, 60, v{vTmp+4}")
    e(f"v_add_u32 v{vTmp+3}, v{vTmp+3}, v{vTmp+4}")
    e(f"v_cndmask_b32 v{vTouch+4}, v{vTmp+5}, v{vTmp+3}, vcc")
    e(f"v_lshlrev_b32 v{vTmp}, 21, v{vQ4}")
    e(f"v_bfe_u32 v{vTmp+3}, v{vLane}, 2, 2")
    e(f"v_lshl_add_u32 v{vTmp}, v{vTmp+3}, 17, v{vTmp}")
    e(f"v_and_b32 v{vTmp+3}, 3, v{vLane}")
    e(f"v_lshl_add_u32 v{vTmp}, v{vTmp+3}, 10, v{vTmp}")
    e(f"v_bfe_u32 v{vTmp+2}, v0, 3, 1")
    e(f"v_cndmask_b32 v{vTo16}, v{vTmp+5}, v{vTmp}, vcc")
    e(f"v_cmp_gt_u32 vcc, 48, v{vLane}")
    e(f"v_lshlrev_b32 v{vB0}, 13, v{vQ4}")
    e(f"v_lshl_add_u32 v{vB0}, v{vTmp+2}, 10, v{vB0}")
    e(f"v_cndmask_b32 v{vTo48}, v{vTmp+5}, v{vTmp}, vcc")
    e(f"v_cmp_gt_u32 vcc, 4, v{vLane}")
    e(f"v_and_b32 v{vTmp+1}, 7, v0")
    e(f"v_lshl_add_u32 v{vB0}, v{vTmp+1}, 4, v{vB0}")
    e(f"v_cndmask_b32 v{vTo4}, v{vTmp+5}, v{vTmp}, vcc")
    e(f"v_add_u32 v{vB1}, 0x1000, v{vB0}")
    e(f"v_lshrrev_b32 v{vTmp}, 2, v{vLane}")
    e(f"v_and_b32 v{vTmp+1}, 3, v{vLane}")
    e(f"v_lshlrev_b32 v{vTmp+1}, 4, v{vTmp+1}")
    e(f"v_lshl_add_u32 v{vTBo}, v{vTmp}, 8, v{vTmp+1}")
    e(f"v_mad_u32_u24 v{vTBw}, v{vTmp}, s{s80}, v{vTmp+1}")
    e(f"s_mul_i32 s{sT0}, s{sW}, 20480")
    e(f"v_add_u32 v{vTBw}, s{sT0}, v{vTBw}")
    e(f"s_movk_i32 s{sT1}, 400")
    e(f"v_mul_u32_u24 v{vIXo}, s{sT1}, v{vTmp}")
    e(f"v_and_b32 v{vTmp+1}, 3, v{vLane}")
    e(f"v_xor_b32 v{vTmp}, v{vQ4}, v{vTmp+1}")
    e(f"v_lshl_add_u32 v{vIXo}, v{vTmp}, 4, v{vIXo}")
    e(f"v_mul_u32_u24 v{vIXl}, s{sT1}, v{vLane}")
    e(f"v_add_u32 v{vIXl}, 384, v{vIXl}")
    e("s_waitcnt lgkmcnt(0)")
    stamp("kernarg")
    srd(sTB, P_TBL, 256000)
    srd(sIXF, P_IDX, 409600)
    if touch:
        e(f"s_lshl_b32 s{sT0}, s{sX}, 11")
        E.vm(f"buffer_load_dword v{vTouch}, v{vTouch+3}, s[{sTB}:{sTB+3}], s{sT0} offen", "touchA")
        e(f"s_mul_i32 s{sT0}, s{sX}, 3200")
        E.vm(f"buffer_load_dword v{vTouch+1}, v{vTouch+4}, s[{sIXF}:{sIXF+3}], s{sT0} offen", "touchA")
    if tlbw:
        srd(sWS, P_WS, (9 << 20) if not TS else (32 << 20))
        e(f"v_mul_u32_u24 v{vTmp+3}, {65536 // tlbw}, v{vLane}")
        e(f"v_cmp_gt_u32 vcc, {tlbw}, v{vLane}")
        e(f"s_lshl_b32 s{sT0}, s{sX}, 16")
        e("s_nop 0")
        e(f"v_cndmask_b32 v{vTmp+3}, v{vTmp+5}, v{vTmp+3}, vcc")
        if tlbw_late:
            pass
        E.vm(f"buffer_load_dword v{vTouch+5}, v{vTmp+3}, s[{sWS}:{sWS+3}], s{sT0} offen", "tlbw")
    stamp("touchA")
    def early_loads():
        e(f"s_mul_i32 s{sT3}, s{sMIi}, 51200")
        srd(sIX, P_IDX, 51200, addoff=sT3)
        emit_items(idx_dma(0))
        srd(sW1, P_W1, 13107200)
        emit_items(bload(0))
    if b0first: early_loads()
    consts = []
    def C(x): consts.append(x)
    C(f"v_mov_b32 v{vSel}, 0x05040100")
    C(f"v_mov_b32 v{vTmp+3}, 0x03020706")
    C(f"v_cmp_eq_u32 vcc, 1, v{vTmp+2}")
    C(f"v_lshlrev_b32 v{vQ}, 4, v{vQ4}")
    C(f"v_lshlrev_b32 v{vL16}, 4, v{vLane}")
    C(f"v_cndmask_b32 v{vSel}, v{vSel}, v{vTmp+3}, vcc")
    C(f"v_bfe_u32 v{vTmp}, v{vC}, 2, 2")
    C(f"v_xor_b32 v{vTmp}, s{sW}, v{vTmp}")
    C(f"v_lshlrev_b32 v{vTmp}, 4, v{vTmp}")
    C(f"v_lshl_add_u32 v{vTmp}, v{vC}, 6, v{vTmp}")
    C(f"v_lshlrev_b32 v{vTmp+1}, 4, v{vC}")
    C(f"s_lshl_b32 s{sT0}, s{sW}, 1")
    C(f"s_lshl_b32 s{sT2}, s{sW}, 2")
    for tp in range(8):
        C(f"s_add_u32 s{sSt}, s{sT0}, {tp}")
        C(f"s_and_b32 s{sSt}, s{sSt}, 7")
        C(f"s_lshl_b32 s{sT3}, s{sSt}, 10")
        C(f"s_add_u32 s{sT3}, s{sT3}, {IDXC(5)}")
        C(f"v_add_u32 v{vIA+tp}, s{sT3}, v{vTmp}")
        C(f"s_lshl_b32 s{sT3}, s{sSt}, 8")
        C(f"s_add_u32 s{sT3}, s{sT3}, s{sT2}")
        C(f"s_add_u32 s{sT3}, s{sT3}, {IDXL}")
        C(f"v_add_u32 v{vIA2+tp}, s{sT3}, v{vTmp+1}")
    e(f"s_lshl_b32 s{sT1}, s{sW}, 16")
    e(f"s_lshl_b32 s{sSt+1}, s{sS}, 6")
    e(f"s_add_u32 s{sT1}, s{sT1}, s{sSt+1}")
    LAG = tlag
    per = -(-len(consts) // 12)
    for n in range(16):
        if n > 0: e(f"s_add_u32 s{sT1}, s{sT1}, 4096")
        E.vm(f"buffer_load_dwordx4 {ar(aTB+4*n,4)}, v{vTBo}, s[{sTB}:{sTB+3}], s{sT1} offen", f"tbl{n}")
        for _ in range(per):
            if consts: e(consts.pop(0))
        if n >= LAG:
            E.wait_vm(f"tbl{n-LAG}")
            E.lg(f"ds_write_b128 v{vTBw}, {ar(aTB+4*(n-LAG),4)} offset:{(n-LAG)*1280}", "tblw")
    while consts: e(consts.pop(0))
    if not b0first: early_loads()
    stamp("tbliss")
    if touch:
        e(f"s_lshl_b32 s{sT0}, s{sMIi}, 12")
        e(f"s_add_u32 s{sT0}, s{sT0}, s{sBbase}")
        E.vm(f"buffer_load_dword v{vTouch+2}, v{vTo48}, s[{sW1}:{sW1+3}], s{sT0} offen", "touchB")
    if not b0first:
        for n in range(16 - LAG, 16):
            E.wait_vm(f"tbl{n}")
            E.lg(f"ds_write_b128 v{vTBw}, {ar(aTB+4*n,4)} offset:{n*1280}", "tblw")
        emit_items(bload(1))
        emit_items(idx_dma(1))
    E.wait_vm("raw0")
    for k in range(16):
        d, p = xp(0, k)
        emit_item(d); emit_item(p)
        if b0first and k % 3 == 2 and (16 - LAG + k // 3) < 16:
            n = 16 - LAG + k // 3
            E.wait_vm(f"tbl{n}")
            E.lg(f"ds_write_b128 v{vTBw}, {ar(aTB+4*n,4)} offset:{n*1280}", "tblw")
    for n in range(16 - LAG, 16):
        if f"tbl{n}" in E.vmq:
            E.wait_vm(f"tbl{n}")
            E.lg(f"ds_write_b128 v{vTBw}, {ar(aTB+4*n,4)} offset:{n*1280}", "tblw")
    stamp("tbl15")
    if b0first:
        emit_items(bload(1))
        emit_items(idx_dma(1))
    e(f"s_or_b32 s{sT0}, s2, s{sW}")
    e(f"s_cmp_lg_u32 s{sT0}, 0")
    e("s_cbranch_scc1 L_NONONCE")
    e(f"s_memrealtime s[{sT2}:{sT3}]")
    srd(sDBG, P_DBG, 256)
    e("s_waitcnt lgkmcnt(0)")
    e(f"s_and_b32 s{sT2}, s{sT2}, 0xffffff")
    e(f"s_or_b32 s{sT2}, s{sT2}, 0x80000000")
    e(f"v_mov_b32 v{vTmp}, s{sT2}")
    e(f"v_mov_b32 v{vTmp+1}, 0")
    e(f"s_mov_b64 s[{sSt}:{sSt+1}], exec")
    e("s_mov_b64 exec, 1")
    e(f"buffer_store_dword v{vTmp}, v{vTmp+1}, s[{sDBG}:{sDBG+3}], 0 offen sc1")
    e(f"s_mov_b64 exec, s[{sSt}:{sSt+1}]")
    E.lab("L_NONONCE")
    stamp("tblw")
    E.wait_vm("idxd0")
    E.wait_all(vm=False, lg=True)
    e("s_barrier")
    stamp("barrier1")
    if pro:
        e("s_branch L_TS2")
        nostamp[0] = True

    def idx_read_items(group):
        out = []
        for tp in range(8):
            if group < 6:
                out.append(("lg", f"ds_read_b128 {vr(vI+4*tp,4)}, v{vIA+tp} offset:{(5-group)*8192}", f"idx{group}_{tp}"))
            else:
                out.append(("lg", f"ds_read_b32 v{vI+4*tp}, v{vIA2+tp}", f"idx{group}_{tp}"))
        return out
    def addr_item(i, tp):
        comp = i % 4 if i < 24 else 0
        return ("v", f"v_mad_u32_u24 v{vGA+tp}, v{vI+4*tp+comp}, s{s80}, v{vQ}")
    def gather_item(i, tp):
        return ("lg", f"ds_read_b128 {afrag(tp)}, v{vGA+tp} offset:{TBL}", f"g{i}_{tp}")

    emit_items(idx_read_items(0))
    emit_items(bload(2))
    for tp in range(8):
        E.wait_lg(f"idx0_{tp}")
        emit_item(addr_item(0, tp))
        if tp < 7: emit_item(gather_item(0, tp))
    wait_both("raw1", "g0_3")

    sA0, sA1, sA2 = 76, 77, 78
    vWm = 231
    if wpieces or prew:
        srd(sWS, P_WS, (9 << 20) if not TS else (32 << 20))
        e(f"s_lshl_b32 s{sA0}, s{sMIi}, 5")
        e(f"s_add_u32 s{sA1}, s{sA0}, s{sP}")
        e(f"s_lshl_b32 s{sA1}, s{sA1}, 15")
        e(f"s_lshl_b32 s{sA2}, s{sW}, 13")
        e(f"s_add_u32 s{sIn0}, s{sA1}, s{sA2}")
        n_l = 64 // max(wpieces, 1)
        e(f"v_lshlrev_b32 v{vWm}, 7, v{vLane}")
        e(f"v_mov_b32 v{vTmp}, 0x{OOB:x}")
        e(f"v_cmp_gt_u32 vcc, {n_l}, v{vLane}")
        e("s_nop 1")
        e(f"v_cndmask_b32 v{vWm}, v{vTmp}, v{vWm}, vcc")
        e(f"v_lshlrev_b32 v{vST}, 15, v{vQ4}")
        e(f"v_lshl_add_u32 v{vST}, v{vC}, 4, v{vST}")
        e(f"s_lshl_b32 s{sA1}, s{sW}, 3")
        e(f"s_add_u32 s{sA1}, s{sA0}, s{sA1}")
        e(f"s_lshl_b32 s{sA1}, s{sA1}, 15")
        e(f"s_lshl_b32 s{sA2}, s{sP}, 10")
        e(f"s_add_u32 s{sSt}, s{sA1}, s{sA2}")
        e(f"s_add_u32 s{sSt+1}, s{sSt}, {4*32768}")
    def small_items():
        out = []
        def S(x): out.append(("s", x))
        def V(x): out.append(("v", x))
        if wsoff:
            S(f"s_mov_b32 s{sA0}, {wsoff}")
            out += srd_items(sWS, P_WS, 9 << 20, addoff=sA0)
        else:
            out += srd_items(sWS, P_WS, (9 << 20) if not TS else (32 << 20))
        out += srd_items(sDBG, P_DBG, 256)
        V(f"v_mov_b32 v{vTmp+5}, 0")
        out.append(("vm", f"buffer_load_dword v{vFL}, v{vTmp+5}, s[{sDBG}:{sDBG+3}], 0 offen sc1", "nonce"))
        out += srd_items(sOUT, P_OUT, 2048)
        V(f"v_and_b32 v{vTmp}, 7, v{vLane}")
        V(f"v_lshlrev_b32 v{vTmp}, 3, v{vTmp}")
        V(f"v_lshl_add_u32 v{vTmp}, v{vQ4}, 1, v{vTmp}")
        V(f"v_bfe_u32 v{vTmp+1}, v{vLane}, 3, 1")
        V(f"v_add_u32 v{vTmp}, v{vTmp}, v{vTmp+1}")
        S(f"s_lshl_b32 s{sA0}, s{sW}, 7")
        V(f"v_add_u32 v{vTmp}, s{sA0}, v{vTmp}")
        V(f"v_lshlrev_b32 v{vTmp}, 1, v{vTmp}")
        out += srd_items(sMI, P_B1, 1024)
        out.append(("vm", f"buffer_load_ushort v{vB1a}, v{vTmp}, s[{sMI}:{sMI+3}], 0 offen", "small"))
        out.append(("vm", f"buffer_load_ushort v{vB1b}, v{vTmp}, s[{sMI}:{sMI+3}], 0 offen offset:128", "small"))
        out += srd_items(sMI, P_W2, 1024)
        out.append(("vm", f"buffer_load_ushort v{vW2a}, v{vTmp}, s[{sMI}:{sMI+3}], 0 offen", "small"))
        out.append(("vm", f"buffer_load_ushort v{vW2b}, v{vTmp}, s[{sMI}:{sMI+3}], 0 offen offset:128", "small"))
        S(f"s_lshl_b32 s{sA0}, s{sMIi}, 7")
        S(f"s_lshl_b32 s{sA1}, s{sP}, 2")
        S(f"s_add_u32 s{sA0}, s{sA0}, s{sA1}")
        V(f"v_add_u32 v{vTmp+1}, s{sA0}, v{vQ4}")
        V(f"v_lshlrev_b32 v{vOUTO}, 1, v{vTmp+1}")
        V(f"v_mul_u32_u24 v{vTmp+1}, 13, v{vTmp+1}")
        V(f"v_add_u32 v{vTmp+1}, v{vTmp+1}, v{vC}")
        V(f"v_lshlrev_b32 v{vTmp+1}, 1, v{vTmp+1}")
        V(f"v_mov_b32 v{vTmp+2}, 0x7fffff00")
        V(f"v_cmp_gt_u32 vcc, 13, v{vC}")
        S("s_nop 1")
        V(f"v_cndmask_b32 v{vTmp+1}, v{vTmp+2}, v{vTmp+1}, vcc")
        V(f"v_lshlrev_b32 v{vTmp+2}, 1, v{vC}")
        out += srd_items(sMI, P_XW, 26624)
        out.append(("vm", f"buffer_load_ushort v{vXW}, v{vTmp+1}, s[{sMI}:{sMI+3}], 0 offen", "small"))
        out += srd_items(sMI, P_WW, 26)
        out.append(("vm", f"buffer_load_ushort v{vWW}, v{vTmp+2}, s[{sMI}:{sMI+3}], 0 offen", "small"))
        out += srd_items(sMI, P_BW, 2)
        out.append(("vm", f"buffer_load_ushort v{vBW}, v{vTmp+5}, s[{sMI}:{sMI+3}], 0 offen", "small"))
        out += srd_items(sMI, P_B2, 2)
        out.append(("vm", f"buffer_load_ushort v{vB2}, v{vTmp+5}, s[{sMI}:{sMI+3}], 0 offen", "small"))
        for dd in range(1, 4):
            S(f"s_add_u32 s{sA0}, s{sW}, {dd}")
            S(f"s_and_b32 s{sA0}, s{sA0}, 3")
            S(f"s_mul_i32 s{sA0}, s{sA0}, 12288")
            S(f"s_add_u32 s{sA0}, s{sA0}, {T1B + (dd-1)*4096}")
            V(f"v_add_u32 v{vW+dd-1}, s{sA0}, v{vL16}")
        S(f"s_mul_i32 s{sA0}, s{sW}, 12288")
        S(f"s_add_u32 s{sA0}, s{sA0}, {T1B}")
        V(f"v_add_u32 v{vRD}, s{sA0}, v{vL16}")
        S(f"s_lshl_b32 s{sA0}, s{sMIi}, 5")
        V(f"v_lshlrev_b32 v{vST}, 15, v{vQ4}")
        V(f"v_lshl_add_u32 v{vST}, v{vC}, 4, v{vST}")
        S(f"s_lshl_b32 s{sA1}, s{sW}, 3")
        S(f"s_add_u32 s{sA1}, s{sA0}, s{sA1}")
        S(f"s_lshl_b32 s{sA1}, s{sA1}, 15")
        S(f"s_lshl_b32 s{sA2}, s{sP}, 10")
        S(f"s_add_u32 s{sSt}, s{sA1}, s{sA2}")
        S(f"s_add_u32 s{sSt+1}, s{sSt}, {4*32768}")
        S(f"s_add_u32 s{sA1}, s{sA0}, s{sP}")
        S(f"s_lshl_b32 s{sA1}, s{sA1}, 15")
        S(f"s_lshl_b32 s{sA2}, s{sW}, 13")
        S(f"s_add_u32 s{sIn0}, s{sA1}, s{sA2}")
        S(f"s_add_u32 s{sA1}, s{sA0}, s{sP}")
        S(f"s_lshl_b32 s{sA1}, s{sA1}, 2")
        S(f"s_add_u32 s{sA1}, s{sA1}, s{sW}")
        S(f"s_lshl_b32 s{sA1}, s{sA1}, 7")
        S(f"s_add_u32 s{sFP}, s{sA1}, {8<<20}")
        V(f"v_lshlrev_b32 v{vIND}, 2, v{vLane}")
        V(f"v_mov_b32 v{vTmp+3}, 0x{OOB:x}")
        V(f"v_cmp_gt_u32 vcc, 8, v{vLane}")
        S("s_nop 1")
        V(f"v_cndmask_b32 v{vIND}, v{vTmp+3}, v{vIND}, vcc")
        V(f"v_lshlrev_b32 v{vFS}, 9, v{vLane}")
        V(f"v_cmp_gt_u32 vcc, 4, v{vLane}")
        S(f"s_lshl_b32 s{sA1}, s{sW}, 3")
        V(f"v_cndmask_b32 v{vFS}, v{vTmp+3}, v{vFS}, vcc")
        S(f"s_add_u32 s{sA1}, s{sA0}, s{sA1}")
        S(f"s_lshl_b32 s{sA1}, s{sA1}, 9")
        S(f"s_lshr_b32 s{sA2}, s{sP}, 3")
        S(f"s_lshl_b32 s{sA2}, s{sA2}, 7")
        S(f"s_add_u32 s{sA1}, s{sA1}, s{sA2}")
        S(f"s_and_b32 s{sA2}, s{sP}, 7")
        S(f"s_lshl_b32 s{sA2}, s{sA2}, 2")
        S(f"s_add_u32 s{sA1}, s{sA1}, s{sA2}")
        S(f"s_add_u32 s{sFS}, s{sA1}, {8<<20}")
        if warmws is not None and not wpieces:
            out.append(("vm", f"buffer_load_dword v{vTouch+5}, v{vIND}, s[{sWS}:{sWS+3}], s{sIn0} offen {warmws}", "warmws"))
        S(f"s_mov_b32 s{sMask}, 0xffffffc0")
        out.append(("wvm", "nonce"))
        for r in range(4): V(f"v_bfe_u32 v{vTag+r}, v{vFL}, {6*r}, 6")
        return out
    vPW = 224
    if prew:
        srd(sDBG, P_DBG, 256)
        e(f"v_mov_b32 v{vTmp+5}, 0")
        E.vm(f"buffer_load_dword v{vPW}, v{vTmp+5}, s[{sDBG}:{sDBG+3}], 0 offen sc1", "nonce0")
    smalls = small_items()
    SM_FIRST = smfirst
    SM_LAST = min(NSTEP - 1, smfirst + 10)

    OFF = {0: 49152, 1: 0}
    def t1_write(tp, n4):
        dd, sub = tp // 2, tp % 2
        a = aACC + ((tp - 2) * 4 + n4) * 4
        return f"ds_write_b128 v{vW+dd-1}, {ar(a,4)} offset:{OFF[sub] + n4*1024}"

    idx_dma_at = {1: 2, 3: 3, 7: 4, 9: 5, 11: 6}
    idx_bar_at = {1: "idxd1", 2: "idxd3", 4: "idxd6"}
    touch_at = {0: 3, 4: 4, 8: 5, 12: 6}
    for i in range(NSTEP):
        nxt = i + 1 < NSTEP
        last = not nxt
        E.c(f"---- step {i}")
        if i in stepstamps: stamp(f"s{i}")
        first = [[] for _ in range(32)]
        rest = [[] for _ in range(32)]
        order = list(range(8))
        if last and earlyw: order = [2, 4, 6, 0, 1, 3, 5, 7]
        first[0].append(gather_item(i, 7))
        idxstep = nxt and (i + 1) % 4 == 3 and i + 2 < NSTEP
        if nxt:
            for k in range(1, 8): first[4 * k].append(gather_item(i + 1, k - 1))
            for k in range(8): rest[4 * k].append(addr_item(i + 1, k))
            seq = []
            for k in range(16):
                d, p = xp(i + 1, k); seq.append((d, p))
            slots = [g for g in range(32) if g % 4 in (1, 2)]
            for x, g in enumerate(slots):
                rest[g].append(seq[x][0])
                if x > 0: rest[g].append(seq[x - 1][1])
            rest[31].append(seq[15][1])
            if idxstep:
                grp2 = (i + 2) // 4 if i + 2 < 24 else 6
                its = idx_read_items(grp2)
                if grp2 in idx_bar_at:
                    rest[2].append(("wvm", idx_bar_at[grp2]))
                    rest[2].append(("s", "s_barrier"))
                for tp, it in enumerate(its): first[4 * tp + 3].append(it)
        lds_ = [3, 4] if i == 0 else ([i + R] if i + R < NSTEP else [])
        for x, j in enumerate(lds_):
            ld = bload(j)
            if idxstep: gs = (6, 10, 14, 18)
            else: gs = (3, 7, 11, 15) if x == 0 else (19, 23, 27, 30)
            rest[gs[0] - 1 if gs[0] % 4 != 3 else gs[0] - 3].append(ld[0])
            for q_, g in enumerate(gs): first[g].append(ld[1 + q_])
        if i in idx_dma_at:
            its = idx_dma(idx_dma_at[i])
            if len(its) == 8:
                for it in its[:4]: rest[19].append(it)
                first[23].append(its[4])
                for it in its[5:7]: rest[23].append(it)
                first[27].append(its[7])
            else:
                for it in its[:5]: rest[19].append(it)
                first[23].append(its[5])
        if touch and i in touch_at:
            its = touch_grp(touch_at[i], vTouch + 4)
            for it in its[:-1]: rest[19].append(it)
            first[23 if i else 31].append(its[-1])
        if wpieces and wstart <= i < wstart + wpieces:
            k = i - wstart
            rest[19].append(("s", f"s_add_u32 s{sA2+1}, s{sIn0}, {k * (8192 // wpieces)}"))
            first[23].append(("vm", f"buffer_load_dword v{vTouch+5}, v{vWm}, s[{sWS}:{sWS+3}], s{sA2+1} offen {warmws}", "warmws"))
        if prew and wstart <= i < wstart + 8:
            k = i - wstart
            sub, n4 = k // 4, k % 4
            first[23].append(("vm", f"buffer_store_dwordx4 {vr(vPW,4)}, v{vST}, s[{sWS}:{sWS+3}], s{sSt+sub} offen offset:{n4*256} sc1", "prew"))
        if SM_FIRST <= i < SM_LAST:
            nleft = SM_LAST - i
            take = -(-len(smalls) // nleft)
            chunk = smalls[:take]; smalls = smalls[take:]
            gl = [g for g in range(32) if g % 4 == 3 and not idxstep] or [g for g in range(32) if g % 4 == 3]
            per = -(-len(chunk) // len(gl))
            k = 0
            for g in gl:
                for _ in range(per):
                    if k < len(chunk): rest[g].append(chunk[k]); k += 1
        if prew and i == wstart - 1:
            rest[27].append(("wvm", "nonce0"))
            for r in (3, 2, 1, 0):
                rest[27].append(("v", f"v_bfe_u32 v{vPW+r}, v{vPW}, {6*r}, 6"))
            for r in range(4):
                rest[31].append(("v", f"v_xor_b32 v{vPW+r}, 63, v{vPW+r}"))
        rest[15].append(("wboth", None, f"g{i}_7"))
        if nxt:
            rest[31].append(("wboth", f"raw{i+2}" if i + 2 < NSTEP else None, f"g{i+1}_3"))
        if last:
            rest[15] = []
            if earlyw:
                for pos, tp in enumerate([2, 4, 6]):
                    base = 4 * pos + 4 + 6
                    for n4 in range(4): first[base + n4].append(("lg", t1_write(tp, n4), "t1w"))
        for m in range(32):
            tp, n4 = order[m // 4], m % 4
            if last and m == 0: E.wait_lg(f"g{i}_6")
            if last and m == 16: E.wait_lg(f"g{i}_7")
            cin = "0" if i == 0 else acc(tp, n4)
            e(f"v_mfma_f32_16x16x32_bf16 {acc(tp,n4)}, {afrag(tp)}, {bfrag(i,n4)}, {cin}")
            for it in first[m]: emit_item(it)
            for it in rest[m]: emit_item(it)
    assert not smalls
    stamp("loop")
    E.c("---- T1: intra-CU reduce + publish")
    def t1_reads(sub):
        for n4 in range(4):
            for k in range(3):
                E.lg(f"ds_read_b128 {vr(vT1+32*k+16*sub+4*n4,4)}, v{vRD} offset:{OFF[sub] + k*4096+n4*1024}", f"t1r{sub}{n4}_{k}")
    def t1_sum_store(sub, n4):
        b = sub * 16 + 4 * n4
        for k in range(3):
            for h in range(2):
                e(f"v_pk_add_f32 {vr(vACC0+b+2*h,2)}, {vr(vACC0+b+2*h,2)}, {vr(vT1+32*k+b+2*h,2)}")
        if keeptags:
            for r in range(4):
                e(f"v_and_or_b32 v{vACC0+b+r}, v{vACC0+b+r}, s{sMask}, v{vTag+r}")
        E.vm(f"buffer_store_dwordx4 {vr(vACC0+b,4)}, v{vST}, s[{sWS}:{sWS+3}], s{sSt+sub} offen offset:{n4*256} sc1", f"pub{sub}")
    e(f"v_readfirstlane_b32 s{sT3}, v{vFL}")
    e(f"s_mov_b32 s{sCnt}, 0")
    e("s_nop 3")
    e(f"s_cmp_lt_i32 s{sT3}, 0")
    e("s_cbranch_scc0 L_NONCE_SLOW")
    E.lab("L_NONCEOK")
    if not earlyw:
        e("s_nop 7")
        for tp in (2, 4, 6):
            for n4 in range(4): E.lg(t1_write(tp, n4), "t1w")
    E.wait_all(vm=False, lg=True)
    e("s_barrier")
    t1_reads(0)
    w1 = [t1_write(tp, n4) for tp in (3, 5, 7) for n4 in range(4)]
    for n4 in range(4):
        E.wait_lg(f"t1r0{n4}_2")
        for x in range(3): E.lg(w1.pop(0), "t1w")
        t1_sum_store(0, n4)
    E.wait_all(vm=False, lg=True)
    e("s_barrier")
    t1_reads(1)
    for n4 in range(4):
        E.wait_lg(f"t1r1{n4}_2")
        t1_sum_store(1, n4)
    E.wait_vm("pub0")
    E.vm(f"buffer_store_dword v{vFL}, v{vFS}, s[{sWS}:{sWS+3}], s{sFS} offen sc1", "flag0")
    stamp("T1pub")
    E.c("---- T3: poll + finish")
    vIN = vT1
    vH = vT1 + 40
    vD = vT1 + 48
    vX = vT1 + 52
    vM = vT1 + 56
    vY = vT1 + 60
    e(f"s_mov_b32 s{sT2}, 0xffff0000")
    e(f"s_add_u32 s{sT1}, s{sIn0}, 4096")
    E.wait_vm("small")
    e(f"v_lshlrev_b32 v{vB1a}, 16, v{vB1a}")
    e(f"v_lshlrev_b32 v{vB1b}, 16, v{vB1b}")
    e(f"v_lshlrev_b32 v{vW2a}, 16, v{vW2a}")
    e(f"v_lshlrev_b32 v{vW2b}, 16, v{vW2b}")
    e(f"v_lshlrev_b32 v{vXW}, 16, v{vXW}")
    e(f"v_lshlrev_b32 v{vWW}, 16, v{vWW}")
    e(f"v_mul_f32 v{vXW}, v{vXW}, v{vWW}")
    e(f"v_lshlrev_b32 v{vBW}, 16, v{vBW}")
    e(f"v_lshlrev_b32 v{vB2}, 16, v{vB2}")
    for sh in (1, 2, 4, 8):
        e(f"v_add_f32_dpp v{vXW}, v{vXW}, v{vXW} row_shr:{sh} row_mask:0xf bank_mask:0xf")
        e("s_nop 1")
    def rnd(r):
        e(f"v_cvt_pk_bf16_f32 v{r}, v{r}, v{r}")
        e(f"v_and_b32 v{r}, s{sT2}, v{r}")
    rnd(vXW)
    e(f"v_add_f32 v{vXW}, v{vXW}, v{vBW}")
    rnd(vXW)
    so = [sIn0] * 4 + [sT1] * 4
    offs = [(k % 4) * 1024 for k in range(8)]
    E.wait_vm("pub1")
    E.vm(f"buffer_store_dword v{vFL}, v{vFS}, s[{sWS}:{sWS+3}], s{sFS} offen offset:2048 sc1", "flag1")
    stamp("drain")
    e(f"v_mov_b32 v{vM+4}, 0")
    e("s_branch L_IND1")
    E.lab("L_IND")
    e(f"s_sleep {sleep}")
    E.lab("L_IND1")
    if flags == "atomic":
        e(f"v_mov_b32 v{vM+3}, 0")
        e(f"buffer_atomic_or v{vM+3}, v{vIND}, s[{sWS}:{sWS+3}], s{sFP} offen sc0 sc1")
    else:
        e(f"buffer_load_dword v{vM+3}, v{vIND}, s[{sWS}:{sWS+3}], s{sFP} offen sc1")
    e("s_waitcnt vmcnt(0)")
    e(f"v_cmp_ne_u32 vcc, v{vM+3}, v{vFL}")
    e(f"s_and_b64 vcc, vcc, 0xff")
    e("s_cbranch_vccz L_INDOK")
    e(f"s_add_u32 s{sCnt}, s{sCnt}, 1")
    e(f"s_cmp_gt_u32 s{sCnt}, 100000")
    e("s_cbranch_scc0 L_IND")
    E.lab("L_INDOK")
    stamp("ind")
    if diag:
        e(f"v_mov_b32 v{vDG+1}, 0")
        e(f"s_mov_b32 s{sDGc}, 0")
        e(f"s_mov_b32 s{sDGc+1}, s{sCnt}")
    e("s_branch L_POLL1")
    E.lab("L_POLL")
    e(f"s_sleep {sleep}")
    E.lab("L_POLL1")
    for k in range(8):
        e(f"buffer_load_dwordx4 {vr(vIN+4*k,4)}, v{vL16}, s[{sWS}:{sWS+3}], s{so[k]} offen offset:{offs[k]} {ldf}")
    e("s_waitcnt vmcnt(0)")
    E.vmq = []
    if keeptags:
        for k in range(32): e(f"v_xor_b32 v{vIN+k}, v{vIN+k}, v{vTag+(k%4)}")
        e(f"v_or3_b32 v{vM}, v{vIN}, v{vIN+1}, v{vIN+2}")
        e(f"v_or3_b32 v{vM+1}, v{vIN+3}, v{vIN+4}, v{vIN+5}")
        for k in range(6, 30, 4):
            e(f"v_or3_b32 v{vM}, v{vM}, v{vIN+k}, v{vIN+k+1}")
            e(f"v_or3_b32 v{vM+1}, v{vM+1}, v{vIN+k+2}, v{vIN+k+3}")
        e(f"v_or3_b32 v{vM}, v{vM}, v{vIN+30}, v{vIN+31}")
        e(f"v_or_b32 v{vM}, v{vM}, v{vM+1}")
        e(f"v_and_b32 v{vM}, 63, v{vM}")
        e(f"v_cmp_ne_u32 vcc, 0, v{vM}")
        e("s_cbranch_vccz L_POLLOK")
        e(f"s_add_u32 s{sCnt}, s{sCnt}, 1")
        e(f"s_cmp_gt_u32 s{sCnt}, 100000")
        e("s_cbranch_scc0 L_POLL")
    E.lab("L_POLLOK")
    stamp("poll")
    for off in (4, 8, 12):
        for nl in range(2):
            b = vIN + 16 * nl
            for h in range(2):
                a0 = vr(b + 2 * h, 2) if off == 4 else vr(vH + 4 * nl + 2 * h, 2)
                e(f"v_pk_add_f32 {vr(vH+4*nl+2*h,2)}, {a0}, {vr(b+off+2*h,2)}")
    hs = [vH + k for k in range(8)]
    for h in hs: e(f"v_cvt_pk_bf16_f32 v{h}, v{h}, v{h}")
    for h in hs: e(f"v_and_b32 v{h}, s{sT2}, v{h}")
    for k, h in enumerate(hs): e(f"v_add_f32 v{h}, v{h}, v{vB1a if k < 4 else vB1b}")
    for h in hs: e(f"v_cvt_pk_bf16_f32 v{h}, v{h}, v{h}")
    for h in hs: e(f"v_and_b32 v{h}, s{sT2}, v{h}")
    for half in range(2):
        for r in range(4):
            k = 4 * half + r
            e(f"v_cmp_lt_f32 s[{sSt+2*(r%2)}:{sSt+2*(r%2)+1}], 0, v{hs[k]}")
            if r % 2 == 1:
                e("s_nop 0")
                e(f"v_cndmask_b32 v{vY+k-1}, 0, 1.0, s[{sSt}:{sSt+1}]")
                e(f"v_cndmask_b32 v{vY+k}, 0, 1.0, s[{sSt+2}:{sSt+3}]")
    for k, h in enumerate(hs): e(f"v_mul_f32 v{h}, v{h}, v{vY+k}")
    for r in range(4): e(f"v_mul_f32 v{vD+r}, v{hs[r]}, v{vW2a}")
    for r in range(4): e(f"v_fmac_f32 v{vD+r}, v{hs[4+r]}, v{vW2b}")
    regs = [vD, vD + 1, vD + 2, vD + 3]
    for sh in (1, 2, 4, 8):
        for rg in regs: e(f"v_add_f32_dpp v{rg}, v{rg}, v{rg} row_shr:{sh} row_mask:0xf bank_mask:0xf")
    for rg in regs: e(f"v_add_f32_dpp v{rg}, v{rg}, v{rg} row_bcast:15 row_mask:0xa bank_mask:0xf")
    for rg in regs: e(f"v_add_f32_dpp v{rg}, v{rg}, v{rg} row_bcast:31 row_mask:0xc bank_mask:0xf")
    e(f"s_lshl_b32 s{sT0}, s{sW}, 4")
    e(f"s_add_u32 s{sT0}, s{sT0}, {FIN}")
    e(f"v_mov_b32 v{vX}, s{sT0}")
    e(f"s_mov_b64 s[{sIXF}:{sIXF+1}], exec")
    e("s_mov_b32 exec_lo, 0")
    e("s_mov_b32 exec_hi, 0x80000000")
    e(f"ds_write_b128 v{vX}, {vr(vD,4)}")
    e(f"s_mov_b64 exec, s[{sIXF}:{sIXF+1}]")
    e(f"v_lshlrev_b32 v{vX+1}, 2, v{vQ4}")
    e(f"v_add_u32 v{vX+1}, {FIN}, v{vX+1}")
    e("s_waitcnt lgkmcnt(0)")
    e("s_barrier")
    e(f"s_cmp_lg_u32 s{sW}, 0")
    e("s_cbranch_scc1 L_TS")
    for k in range(4): e(f"ds_read_b32 v{vD+k}, v{vX+1} offset:{16*k}")
    e("s_waitcnt lgkmcnt(0)")
    e(f"v_add_f32 v{vD}, v{vD}, v{vD+1}")
    e(f"v_add_f32 v{vD+2}, v{vD+2}, v{vD+3}")
    e(f"v_add_f32 v{vD}, v{vD}, v{vD+2}")
    rnd(vD)
    e(f"v_add_f32 v{vD}, v{vD}, v{vB2}")
    rnd(vD)
    e(f"v_add_f32 v{vD}, v{vD}, v{vXW}")
    rnd(vD)
    e(f"v_mul_f32 v{vD}, 0xbfb8aa3b, v{vD}")
    e(f"v_exp_f32 v{vD}, v{vD}")
    e("s_nop 0")
    e(f"v_add_f32 v{vD}, 1.0, v{vD}")
    e(f"v_rcp_f32 v{vD}, v{vD}")
    e("s_nop 0")
    e(f"v_cvt_pk_bf16_f32 v{vD}, v{vD}, v{vD}")
    e("s_mov_b32 exec_lo, 0x80008000")
    e("s_mov_b32 exec_hi, 0x80008000")
    e(f"buffer_store_short v{vD}, v{vOUTO}, s[{sOUT}:{sOUT+3}], 0 offen")
    e("s_mov_b64 exec, -1")
    E.lab("L_TS")
    if pro:
        e("s_branch L_END")
        E.lab("L_TS2")
        srd(sWS, P_WS, 32 << 20)
        srd(sDBG, P_DBG, 256)
    if TS:
        nostamp[0] = pro
        stamp("end")
        nostamp[0] = False
        srd(sWS, P_WS, 32 << 20)
        if rt:
            e(f"v_mov_b32 v{vTmp}, 16")
            e(f"v_mov_b32 v{vTmp+1}, 1")
            e("s_mov_b64 exec, 1")
            e(f"buffer_atomic_add v{vTmp+1}, v{vTmp}, s[{sDBG}:{sDBG+3}], 0 offen sc1")
            e("s_waitcnt vmcnt(0)")
            e(f"s_mov_b32 s{sCnt}, 0")
            E.lab("L_CAL")
            e(f"buffer_load_dword v{vTmp+2}, v{vTmp}, s[{sDBG}:{sDBG+3}], 0 offen sc1")
            e("s_waitcnt vmcnt(0)")
            e(f"v_readfirstlane_b32 s{sT0}, v{vTmp+2}")
            e(f"s_add_u32 s{sCnt}, s{sCnt}, 1")
            e(f"s_cmp_gt_u32 s{sCnt}, 20000")
            e("s_cbranch_scc1 L_CALOK")
            e(f"s_cmp_lt_u32 s{sT0}, 1024")
            e("s_cbranch_scc1 L_CAL")
            E.lab("L_CALOK")
            stamp("cal")
            e("s_mov_b64 exec, -1")
        n = tsn[0]
        assert sTS + 2 * n <= 98, n
        if diag:
            e(f"s_lshl_b32 s{sT0}, s2, 2")
            e(f"s_add_u32 s{sT0}, s{sT0}, s{sW}")
            e(f"s_lshl_b32 s{sT1}, s{sT0}, 8")
            e(f"s_add_u32 s{sT1}, s{sT1}, {20<<20}")
            e(f"v_lshlrev_b32 v{vTmp}, 2, v{vLane}")
            e(f"buffer_store_dword v{vDG+1}, v{vTmp}, s[{sWS}:{sWS+3}], s{sT1} offen")
            e(f"s_lshl_b32 s{sT0}, s{sT0}, 6")
            e(f"s_add_u32 s{sT0}, s{sT0}, {16<<20}")
            e(f"v_mov_b32 v{vTmp}, 0")
            e(f"v_mov_b32 v{vTmp+1}, s{sDGc}")
            e(f"buffer_store_dword v{vTmp+1}, v{vTmp}, s[{sWS}:{sWS+3}], s{sT0} offen offset:56")
            e(f"v_mov_b32 v{vTmp+1}, s{sDGc+1}")
            e(f"buffer_store_dword v{vTmp+1}, v{vTmp}, s[{sWS}:{sWS+3}], s{sT0} offen offset:60")
        e(f"s_lshl_b32 s{sT0}, s2, 2")
        e(f"s_add_u32 s{sT0}, s{sT0}, s{sW}")
        e(f"s_lshl_b32 s{sT0}, s{sT0}, 6")
        e(f"s_add_u32 s{sT0}, s{sT0}, {16<<20}")
        e(f"v_mov_b32 v{vTmp}, 0")
        e("s_mov_b64 exec, 1")
        for k in range(n):
            if rt: e(f"s_mov_b32 s{sT1}, s{sTS+2*k}")
            else: e(f"s_sub_u32 s{sT1}, s{sTS+2*k}, s{sTS}")
            e(f"v_mov_b32 v{vTmp+1}, s{sT1}")
            e(f"buffer_store_dword v{vTmp+1}, v{vTmp}, s[{sWS}:{sWS+3}], s{sT0} offen offset:{4*k}")
    e("s_branch L_END")
    E.lab("L_NONCE_SLOW")
    e(f"buffer_load_dword v{vFL}, v{vTmp+5}, s[{sDBG}:{sDBG+3}], 0 offen sc1")
    e("s_waitcnt vmcnt(0)")
    e(f"v_readfirstlane_b32 s{sT3}, v{vFL}")
    e(f"s_add_u32 s{sCnt}, s{sCnt}, 1")
    e("s_nop 3")
    e(f"s_cmp_gt_u32 s{sCnt}, 200000")
    e("s_cbranch_scc1 L_NONCE_FIX")
    e(f"s_cmp_lt_i32 s{sT3}, 0")
    e("s_cbranch_scc0 L_NONCE_SLOW")
    E.lab("L_NONCE_FIX")
    for r in range(4): e(f"v_bfe_u32 v{vTag+r}, v{vFL}, {6*r}, 6")
    e("s_branch L_NONCEOK")
    E.lab("L_END")
    e("s_endpgm")
    E.lab("L_CODE_END")

    out = [HDR + f"; @launch grid=(256,1,1) block=(256,1,1) lds={LDS_TOTAL}",
           '.amdgcn_target "amdgcn-amd-amdhsa--gfx950"', ".text", f".globl {NAME}", ".p2align 8",
           f".type {NAME},@function"]
    out += E.L
    out += ['.section .rodata,"a"', ".p2align 6", f".amdhsa_kernel {NAME}",
            "  .amdhsa_next_free_vgpr 384", "  .amdhsa_next_free_sgpr 102", "  .amdhsa_accum_offset 256",
            "  .amdhsa_group_segment_fixed_size 0", "  .amdhsa_kernarg_size 96", "  .amdhsa_user_sgpr_count 2",
            "  .amdhsa_user_sgpr_kernarg_segment_ptr 1", "  .amdhsa_system_sgpr_workgroup_id_x 1",
            ".end_amdhsa_kernel"]
    return "\n".join(out) + "\n", names

if __name__ == "__main__":
    ap = argparse.ArgumentParser()
    ap.add_argument("-o", default="k.s")
    ap.add_argument("-R", type=int, default=4)
    ap.add_argument("--ts", default=None)
    ap.add_argument("--notouch", action="store_true")
    ap.add_argument("--nocodetouch", action="store_true")
    ap.add_argument("--sleep", type=int, default=4)
    ap.add_argument("--steps", default="")
    ap.add_argument("--pro", action="store_true")
    ap.add_argument("--rt", action="store_true")
    ap.add_argument("--direct", action="store_true")
    ap.add_argument("--noearlyw", action="store_true")
    ap.add_argument("--tlag", type=int, default=6)
    ap.add_argument("--wsoff", type=int, default=0)
    ap.add_argument("--tblfirst", action="store_true")
    ap.add_argument("--ldf", default="sc1")
    ap.add_argument("--drop", type=int, default=0)
    ap.add_argument("--diag", action="store_true")
    ap.add_argument("--warmws", default=None)
    ap.add_argument("--smfirst", type=int, default=14)
    ap.add_argument("--wpieces", type=int, default=0)
    ap.add_argument("--wstart", type=int, default=12)
    ap.add_argument("--prew", action="store_true")
    ap.add_argument("--tlbw", type=int, default=0)
    ap.add_argument("--flags", default="atomic")
    ap.add_argument("--notags", action="store_true")
    a = ap.parse_args()
    st = tuple(a.ts.split(",")) if a.ts else ()
    steps = tuple(int(x) for x in a.steps.split(",") if x)
    st = st + tuple(f"s{x}" for x in steps)
    txt, names = gen(R=a.R, TS=a.ts is not None, touch=not a.notouch, stamps=st, sleep=a.sleep,
                     codetouch=not a.nocodetouch, stepstamps=steps, pro=a.pro, rt=a.rt, direct=a.direct, earlyw=not a.noearlyw, tlag=a.tlag, wsoff=a.wsoff << 20, b0first=not a.tblfirst, ldf=a.ldf.replace('_',' '), drop=a.drop, diag=a.diag, warmws=(None if a.warmws is None else a.warmws.replace('_',' ').replace('plain','')), smfirst=a.smfirst, wpieces=a.wpieces, wstart=a.wstart, prew=a.prew, tlbw=a.tlbw, flags=a.flags, keeptags=not a.notags)
    open(a.o, "w").write(txt)
    if a.ts: open(a.o.replace(".s", ".names"), "w").write(" ".join(names))
```

```python
import sys, argparse
from gen import Em, vr, ar, HDR, NAME

def gen(TS=False, stamps=(), stepstamps=(), rt=True, sleep=1, tlag=6, pipe_poll=True, b1early=True, order="A"):
    NSTEP = 25
    R = 4
    E = Em()
    e = E.e
    OOB = 0x7ffffff0
    IDXL = 81920
    def IDXC(c): return 83968 + (5 - c) * 8192
    T1B = 51200
    FIN = T1B + 98304
    LDS_TOTAL = FIN + 64
    FLAGS = 8 << 20
    sW1, sTB, sIX, sWS = 4, 8, 12, 16
    sDBG = 20
    P_IDX, P_TBL, P_XW, P_WW, P_BW, P_W1, P_B1, P_W2, P_B2, P_OUT, P_DBG, P_WS = [24 + 2 * i for i in range(12)]
    sW = 3
    sNI, sS, sMIi, sP = 48, 49, 50, 51
    sT0, sT1, sT2, sT3 = 52, 53, 54, 55
    sBbase, sB24, sBoff = 56, 57, 58
    s80 = 59
    sX = 60
    sIn0 = 61
    sIn1 = 62
    sCnt = 63
    sOUT = 64
    sIXF = 68
    sSt = 72
    sEX = 76
    sPC = 78
    sFP, sFS = 98, 99
    sTS = 80
    vLane, vC, vQ4 = 1, 2, 3
    vB0, vB1, vQ = 4, 5, 6
    vL16 = 7
    vTmp = 8
    vB1a, vB1b, vW2a, vW2b = 14, 15, 16, 17
    vXW, vWW, vBW, vB2 = 18, 19, 20, 21
    vFL = 22
    vSel = 23
    vGA = 24
    vIA = 32
    vIA2 = 40
    vDT = 48
    vST = 52
    vW = 53
    vRD = 56
    vOUTO = 57
    vIND = 58
    vFS = 59
    vCO, vXO, vZ, vWO = 60, 61, 62, 63
    vACC0 = 64
    vBF = 96
    vI = 128
    vRAW = 160
    vT1 = 96
    vTo48, vTo16, vTo4, vIXl, vIXo, vTBo, vTBw = 239, 240, 241, 242, 243, 244, 245
    vTouch = 250
    aACC, aAF, aTB = 0, 96, 0

    def acc(tp, n):
        if tp < 2: return vr(vACC0 + (tp * 4 + n) * 4, 4)
        return ar(aACC + ((tp - 2) * 4 + n) * 4, 4)
    def afrag(tp): return ar(aAF + tp * 4, 4)
    def bfrag(i, n): return vr(vBF + (i % 2) * 16 + n * 4, 4)
    def raw(i, jj, cp=None):
        b = vRAW + 16 * (i % R) + 4 * jj
        return vr(b, 4) if cp is None else vr(b + cp)

    tsn = [0]; names = []
    def stamp(name):
        if not TS: return
        if stamps and name not in stamps and name != "cal": return
        k = tsn[0]; tsn[0] += 1
        names.append(name)
        e(f"{'s_memrealtime' if rt else 's_memtime'} s[{sTS+2*k}:{sTS+2*k+1}]")
        E.wait_all(vm=False, lg=True)
    def wait_both(vtag, ltag):
        parts = []
        if vtag is not None and vtag in E.vmq:
            idx = len(E.vmq) - 1 - E.vmq[::-1].index(vtag)
            n = len(E.vmq) - 1 - idx
            E.vmq = E.vmq[idx + 1:]
            parts.append(f"vmcnt({min(n, 63)})")
        if ltag is not None and ltag in E.lgq:
            idx = len(E.lgq) - 1 - E.lgq[::-1].index(ltag)
            n = len(E.lgq) - 1 - idx
            assert n <= 15, n
            E.lgq = E.lgq[idx + 1:]
            parts.append(f"lgkmcnt({n})")
        if parts: e("s_waitcnt " + " ".join(parts))
    def emit_item(it):
        if it is None: return
        if it[0] in ("s", "v"): e(it[1])
        elif it[0] == "vm": E.vm(it[1], it[2])
        elif it[0] == "lg": E.lg(it[1], it[2])
        elif it[0] == "wvm": E.wait_vm(it[1])
        elif it[0] == "wlg": E.wait_lg(it[1])
        elif it[0] == "wboth": wait_both(it[1], it[2])
        else: raise ValueError(it)
    def emit_items(its):
        for it in its: emit_item(it)
    def srd(d, p, nbytes, addoff=None):
        if addoff is None:
            e(f"s_mov_b32 s{d}, s{p}")
            e(f"s_and_b32 s{d+1}, s{p+1}, 0xffff")
        else:
            e(f"s_add_u32 s{d}, s{p}, s{addoff}")
            e(f"s_addc_u32 s{d+1}, s{p+1}, 0")
            e(f"s_and_b32 s{d+1}, s{d+1}, 0xffff")
        e(f"s_mov_b32 s{d+2}, {nbytes}")
        e(f"s_mov_b32 s{d+3}, 0x00020000")
    def fieldoff(i): return (16 * (i // 4) + i % 4) * 131072
    def bload(i):
        out = []
        if i < 24: out.append(("s", f"s_add_u32 s{sBoff}, s{sBbase}, {fieldoff(i)}"))
        else: out.append(("s", f"s_mov_b32 s{sBoff}, s{sB24}"))
        for jj in range(4):
            vo = vB0 if jj < 2 else vB1
            out.append(("vm", f"buffer_load_dwordx4 {raw(i,jj)}, v{vo}, s[{sW1}:{sW1+3}], s{sBoff} offen offset:{(jj%2)*2048}", f"raw{i}"))
        return out
    def idx_dma(c):
        out = []
        if c < 6:
            out.append(("s", f"s_lshl_b32 s{sT0}, s{sW}, 11"))
            out.append(("s", f"s_mul_i32 s{sT1}, s{sW}, 12800"))
            for h in range(2):
                out.append(("s", f"s_add_u32 m0, s{sT0}, {IDXC(c) + h*1024}"))
                out.append(("s", f"s_add_u32 s{sT2}, s{sT1}, {h*6400 + c*64}"))
                out.append(("vm", f"buffer_load_dwordx4 v{vIXo}, s[{sIX}:{sIX+3}], s{sT2} offen lds", f"idxd{c}"))
        else:
            out.append(("s", f"s_and_b32 s{sT0}, s{sW}, 1"))
            out.append(("s", f"s_mul_i32 s{sT1}, s{sT0}, 25600"))
            out.append(("s", f"s_lshl_b32 s{sT0}, s{sT0}, 10"))
            out.append(("s", f"s_add_u32 m0, s{sT0}, {IDXL}"))
            out.append(("s", "s_nop 0"))
            out.append(("vm", f"buffer_load_dwordx4 v{vIXl}, s[{sIX}:{sIX+3}], s{sT1} offen lds", f"idxd{c}"))
        return out
    def touch_grp(m, dst):
        out = [("s", f"s_lshl_b32 s{sT0}, s{sMIi}, 12")]
        if m < 6:
            out.append(("s", f"s_add_u32 s{sT0}, s{sT0}, s{sBbase}"))
            out.append(("s", f"s_add_u32 s{sT0}, s{sT0}, {m<<21}"))
            out.append(("vm", f"buffer_load_dword v{dst}, v{vTo16}, s[{sW1}:{sW1+3}], s{sT0} offen", "touch"))
        else:
            out.append(("s", f"s_add_u32 s{sT0}, s{sT0}, s{sB24}"))
            out.append(("vm", f"buffer_load_dword v{dst}, v{vTo4}, s[{sW1}:{sW1+3}], s{sT0} offen", "touch"))
        return out
    def xp(i, k):
        cp, jj = k // 4, k % 4
        t = vDT + (k % 4)
        return (("v", f"v_mov_b32_dpp v{t}, {raw(i, jj, cp)} row_ror:8 row_mask:0xf bank_mask:0xf"),
                ("v", f"v_perm_b32 v{vBF + (i%2)*16 + cp*4 + jj}, v{t}, {raw(i, jj, cp)}, v{vSel}"))

    E.lab(NAME)
    e("s_cmp_ge_u32 s2, 256")
    e("s_cbranch_scc1 L_END")
    e("s_load_dwordx16 s[24:39], s[0:1], 0")
    e("s_load_dwordx8 s[40:47], s[0:1], 64")
    if TS:
        e(f"{'s_memrealtime' if rt else 's_memtime'} s[{sTS}:{sTS+1}]"); tsn[0] = 1
    e(f"s_getpc_b64 s[{sPC}:{sPC+1}]")
    E.lab("L_PCREF")
    e(f"v_and_b32 v{vLane}, 63, v0")
    e(f"v_lshrrev_b32 v{vTmp}, 6, v0")
    e(f"v_and_b32 v{vC}, 15, v0")
    e(f"v_readfirstlane_b32 s{sW}, v{vTmp}")
    e(f"s_lshr_b32 s{sT0}, s2, 3")
    e(f"s_lshl_b32 s{sX}, s{sT0}, 2")
    e(f"v_mov_b32 v{vTmp+5}, 0x{OOB:x}")
    e(f"s_add_u32 s{sX}, s{sX}, s{sW}")
    e(f"v_lshlrev_b32 v{vTmp}, 14, v{vLane}")
    e(f"s_lshl_b32 s{sT1}, s{sX}, 7")
    e(f"v_add_u32 v{vTmp}, s{sT1}, v{vTmp}")
    e(f"s_mov_b32 s{sT1}, L_CODE_END-L_PCREF")
    e(f"v_cmp_gt_u32 vcc, s{sT1}, v{vTmp}")
    e(f"s_and_saveexec_b64 s[{sEX}:{sEX+1}], vcc")
    e("s_cbranch_execz L_NOCT")
    E.vm(f"global_load_dword v{vTouch}, v{vTmp}, s[{sPC}:{sPC+1}]", "touchC")
    E.lab("L_NOCT")
    e(f"s_mov_b64 exec, s[{sEX}:{sEX+1}]")
    e(f"v_lshrrev_b32 v{vQ4}, 4, v{vLane}")
    e(f"s_and_b32 s{sNI}, s2, 7")
    e(f"s_and_b32 s{sS}, s{sT0}, 3")
    e(f"s_lshr_b32 s{sMIi}, s{sT0}, 2")
    e(f"s_lshl_b32 s{sP}, s{sNI}, 2")
    e(f"s_add_u32 s{sP}, s{sP}, s{sS}")
    e(f"s_movk_i32 s{s80}, 80")
    e(f"s_lshl_b32 s{sT0}, s{sS}, 15")
    e(f"s_lshl_b32 s{sT1}, s{sNI}, 7")
    e(f"s_add_u32 s{sT0}, s{sT0}, s{sT1}")
    e(f"s_lshl_b32 s{sT1}, s{sW}, 19")
    e(f"s_add_u32 s{sBbase}, s{sT0}, s{sT1}")
    e(f"s_add_u32 s{sT1}, s{sW}, 96")
    e(f"s_lshl_b32 s{sT1}, s{sT1}, 17")
    e(f"s_add_u32 s{sB24}, s{sT0}, s{sT1}")
    e(f"v_lshlrev_b32 v{vTmp}, 7, v{vLane}")
    e(f"v_cmp_gt_u32 vcc, 16, v{vLane}")
    e(f"v_lshrrev_b32 v{vTmp+3}, 1, v{vLane}")
    e(f"v_mul_u32_u24 v{vTmp+3}, 400, v{vTmp+3}")
    e(f"v_cndmask_b32 v{vTouch+3}, v{vTmp+5}, v{vTmp}, vcc")
    e(f"v_and_b32 v{vTmp+4}, 1, v{vLane}")
    e(f"v_mul_u32_u24 v{vTmp+4}, 60, v{vTmp+4}")
    e(f"v_add_u32 v{vTmp+3}, v{vTmp+3}, v{vTmp+4}")
    e(f"v_cndmask_b32 v{vTouch+4}, v{vTmp+5}, v{vTmp+3}, vcc")
    e(f"v_lshlrev_b32 v{vTmp}, 21, v{vQ4}")
    e(f"v_bfe_u32 v{vTmp+3}, v{vLane}, 2, 2")
    e(f"v_lshl_add_u32 v{vTmp}, v{vTmp+3}, 17, v{vTmp}")
    e(f"v_and_b32 v{vTmp+3}, 3, v{vLane}")
    e(f"v_lshl_add_u32 v{vTmp}, v{vTmp+3}, 10, v{vTmp}")
    e(f"v_bfe_u32 v{vTmp+2}, v0, 3, 1")
    e(f"v_cndmask_b32 v{vTo16}, v{vTmp+5}, v{vTmp}, vcc")
    e(f"v_cmp_gt_u32 vcc, 48, v{vLane}")
    e(f"v_lshlrev_b32 v{vB0}, 13, v{vQ4}")
    e(f"v_lshl_add_u32 v{vB0}, v{vTmp+2}, 10, v{vB0}")
    e(f"v_cndmask_b32 v{vTo48}, v{vTmp+5}, v{vTmp}, vcc")
    e(f"v_cmp_gt_u32 vcc, 4, v{vLane}")
    e(f"v_and_b32 v{vTmp+1}, 7, v0")
    e(f"v_lshl_add_u32 v{vB0}, v{vTmp+1}, 4, v{vB0}")
    e(f"v_cndmask_b32 v{vTo4}, v{vTmp+5}, v{vTmp}, vcc")
    e(f"v_add_u32 v{vB1}, 0x1000, v{vB0}")
    e(f"v_lshrrev_b32 v{vTmp}, 2, v{vLane}")
    e(f"v_and_b32 v{vTmp+1}, 3, v{vLane}")
    e(f"v_lshlrev_b32 v{vTmp+1}, 4, v{vTmp+1}")
    e(f"v_lshl_add_u32 v{vTBo}, v{vTmp}, 8, v{vTmp+1}")
    e(f"v_mad_u32_u24 v{vTBw}, v{vTmp}, s{s80}, v{vTmp+1}")
    e(f"s_mul_i32 s{sT0}, s{sW}, 20480")
    e(f"v_add_u32 v{vTBw}, s{sT0}, v{vTBw}")
    e(f"s_movk_i32 s{sT1}, 400")
    e(f"v_mul_u32_u24 v{vIXo}, s{sT1}, v{vTmp}")
    e(f"v_and_b32 v{vTmp+1}, 3, v{vLane}")
    e(f"v_xor_b32 v{vTmp}, v{vQ4}, v{vTmp+1}")
    e(f"v_lshl_add_u32 v{vIXo}, v{vTmp}, 4, v{vIXo}")
    e(f"v_mul_u32_u24 v{vIXl}, s{sT1}, v{vLane}")
    e(f"v_add_u32 v{vIXl}, 384, v{vIXl}")
    e("s_waitcnt lgkmcnt(0)")
    stamp("kernarg")
    srd(sTB, P_TBL, 256000)
    srd(sIXF, P_IDX, 409600)
    e(f"s_lshl_b32 s{sT0}, s{sX}, 11")
    E.vm(f"buffer_load_dword v{vTouch}, v{vTouch+3}, s[{sTB}:{sTB+3}], s{sT0} offen", "touchA")
    e(f"s_mul_i32 s{sT0}, s{sX}, 3200")
    E.vm(f"buffer_load_dword v{vTouch+1}, v{vTouch+4}, s[{sIXF}:{sIXF+3}], s{sT0} offen", "touchA")
    srd(sW1, P_W1, 13107200)
    emit_items(bload(0))
    e(f"s_mul_i32 s{sT3}, s{sMIi}, 51200")
    srd(sIX, P_IDX, 51200, addoff=sT3)
    emit_items(idx_dma(0))
    consts = []
    C = consts.append
    C(f"v_mov_b32 v{vSel}, 0x05040100")
    C(f"v_mov_b32 v{vTmp+3}, 0x03020706")
    C(f"v_cmp_eq_u32 vcc, 1, v{vTmp+2}")
    C(f"v_lshlrev_b32 v{vQ}, 4, v{vQ4}")
    C(f"v_lshlrev_b32 v{vL16}, 4, v{vLane}")
    C(f"v_cndmask_b32 v{vSel}, v{vSel}, v{vTmp+3}, vcc")
    C(f"v_bfe_u32 v{vTmp}, v{vC}, 2, 2")
    C(f"v_xor_b32 v{vTmp}, s{sW}, v{vTmp}")
    C(f"v_lshlrev_b32 v{vTmp}, 4, v{vTmp}")
    C(f"v_lshl_add_u32 v{vTmp}, v{vC}, 6, v{vTmp}")
    C(f"v_lshlrev_b32 v{vTmp+1}, 4, v{vC}")
    C(f"s_lshl_b32 s{sT0}, s{sW}, 1")
    C(f"s_lshl_b32 s{sT2}, s{sW}, 2")
    for tp in range(8):
        C(f"s_add_u32 s{sSt}, s{sT0}, {tp}")
        C(f"s_and_b32 s{sSt}, s{sSt}, 7")
        C(f"s_lshl_b32 s{sT3}, s{sSt}, 10")
        C(f"s_add_u32 s{sT3}, s{sT3}, {IDXC(5)}")
        C(f"v_add_u32 v{vIA+tp}, s{sT3}, v{vTmp}")
        C(f"s_lshl_b32 s{sT3}, s{sSt}, 8")
        C(f"s_add_u32 s{sT3}, s{sT3}, s{sT2}")
        C(f"s_add_u32 s{sT3}, s{sT3}, {IDXL}")
        C(f"v_add_u32 v{vIA2+tp}, s{sT3}, v{vTmp+1}")
    for dd in range(1, 4):
        C(f"s_add_u32 s{sT0}, s{sW}, {dd}")
        C(f"s_and_b32 s{sT0}, s{sT0}, 3")
        C(f"s_mul_i32 s{sT0}, s{sT0}, 12288")
        C(f"s_add_u32 s{sT0}, s{sT0}, {T1B + (dd-1)*4096}")
        C(f"v_add_u32 v{vW+dd-1}, s{sT0}, v{vL16}")
    C(f"s_mul_i32 s{sT0}, s{sW}, 12288")
    C(f"s_add_u32 s{sT0}, s{sT0}, {T1B}")
    C(f"v_add_u32 v{vRD}, s{sT0}, v{vL16}")
    C(f"s_lshl_b32 s{sT0}, s{sMIi}, 5")
    C(f"v_lshlrev_b32 v{vST}, 15, v{vQ4}")
    C(f"v_lshl_add_u32 v{vST}, v{vC}, 4, v{vST}")
    C(f"s_lshl_b32 s{sT2}, s{sW}, 3")
    C(f"s_add_u32 s{sT2}, s{sT0}, s{sT2}")
    C(f"s_lshl_b32 s{sT3}, s{sT2}, 15")
    C(f"s_lshl_b32 s{sSt}, s{sP}, 10")
    C(f"s_add_u32 s{sSt}, s{sSt}, s{sT3}")
    C(f"s_add_u32 s{sSt+1}, s{sSt}, {4*32768}")
    C(f"s_lshl_b32 s{sT2}, s{sT2}, 9")
    C(f"s_lshr_b32 s{sT3}, s{sP}, 3")
    C(f"s_lshl_b32 s{sT3}, s{sT3}, 7")
    C(f"s_add_u32 s{sT2}, s{sT2}, s{sT3}")
    C(f"s_and_b32 s{sT3}, s{sP}, 7")
    C(f"s_lshl_b32 s{sT3}, s{sT3}, 2")
    C(f"s_add_u32 s{sT2}, s{sT2}, s{sT3}")
    C(f"s_add_u32 s{sFS}, s{sT2}, {FLAGS}")
    C(f"s_add_u32 s{sT2}, s{sT0}, s{sP}")
    C(f"s_lshl_b32 s{sT3}, s{sT2}, 15")
    C(f"s_lshl_b32 s{sIn0}, s{sW}, 13")
    C(f"s_add_u32 s{sIn0}, s{sIn0}, s{sT3}")
    C(f"s_add_u32 s{sIn1}, s{sIn0}, 4096")
    C(f"s_lshl_b32 s{sT3}, s{sT2}, 2")
    C(f"s_add_u32 s{sT3}, s{sT3}, s{sW}")
    C(f"s_lshl_b32 s{sT3}, s{sT3}, 7")
    C(f"s_add_u32 s{sFP}, s{sT3}, {FLAGS}")
    C(f"v_cmp_gt_u32 vcc, 8, v{vLane}")
    C(f"v_lshlrev_b32 v{vIND}, 2, v{vLane}")
    C(f"v_lshlrev_b32 v{vFS}, 9, v{vLane}")
    C(f"v_cndmask_b32 v{vIND}, v{vTmp+5}, v{vIND}, vcc")
    C(f"v_cmp_gt_u32 vcc, 4, v{vLane}")
    C(f"v_and_b32 v{vCO}, 7, v{vLane}")
    C(f"v_lshlrev_b32 v{vCO}, 3, v{vCO}")
    C(f"v_cndmask_b32 v{vFS}, v{vTmp+5}, v{vFS}, vcc")
    C(f"v_lshl_add_u32 v{vCO}, v{vQ4}, 1, v{vCO}")
    C(f"v_add_u32 v{vCO}, v{vCO}, v{vTmp+2}")
    C(f"s_lshl_b32 s{sT3}, s{sW}, 7")
    C(f"v_add_u32 v{vCO}, s{sT3}, v{vCO}")
    C(f"v_lshlrev_b32 v{vCO}, 1, v{vCO}")
    C(f"s_lshl_b32 s{sT0}, s{sMIi}, 7")
    C(f"s_lshl_b32 s{sT3}, s{sP}, 2")
    C(f"s_add_u32 s{sT0}, s{sT0}, s{sT3}")
    C(f"v_add_u32 v{vXO}, s{sT0}, v{vQ4}")
    C(f"v_lshlrev_b32 v{vOUTO}, 1, v{vXO}")
    C(f"v_mul_u32_u24 v{vXO}, 13, v{vXO}")
    C(f"v_min_u32 v{vWO}, 12, v{vC}")
    C(f"v_add_u32 v{vXO}, v{vXO}, v{vWO}")
    C(f"v_lshlrev_b32 v{vXO}, 1, v{vXO}")
    C(f"v_lshlrev_b32 v{vWO}, 1, v{vWO}")
    C(f"v_mov_b32 v{vZ}, 0")
    e(f"s_lshl_b32 s{sT1}, s{sW}, 16")
    e(f"s_lshl_b32 s{sSt+1}, s{sS}, 6")
    e(f"s_add_u32 s{sT1}, s{sT1}, s{sSt+1}")
    LAG = tlag
    per = -(-len(consts) // 14)
    for n in range(16):
        if n > 0: e(f"s_add_u32 s{sT1}, s{sT1}, 4096")
        E.vm(f"buffer_load_dwordx4 {ar(aTB+4*n,4)}, v{vTBo}, s[{sTB}:{sTB+3}], s{sT1} offen", f"tbl{n}")
        for _ in range(per):
            if consts: e(consts.pop(0))
        if n >= LAG:
            E.wait_vm(f"tbl{n-LAG}")
            E.lg(f"ds_write_b128 v{vTBw}, {ar(aTB+4*(n-LAG),4)} offset:{(n-LAG)*1280}", "tblw")
    while consts: e(consts.pop(0))
    stamp("tbliss")
    if b1early:
        emit_items(bload(1))
    e(f"s_lshl_b32 s{sT0}, s{sMIi}, 12")
    e(f"s_add_u32 s{sT0}, s{sT0}, s{sBbase}")
    E.vm(f"buffer_load_dword v{vTouch+2}, v{vTo48}, s[{sW1}:{sW1+3}], s{sT0} offen", "touchB")
    E.wait_vm("raw0")
    for k in range(16):
        d, p = xp(0, k)
        emit_item(d); emit_item(p)
        if k % 3 == 2 and (16 - LAG + k // 3) < 16:
            n = 16 - LAG + k // 3
            E.wait_vm(f"tbl{n}")
            E.lg(f"ds_write_b128 v{vTBw}, {ar(aTB+4*n,4)} offset:{n*1280}", "tblw")
    for n in range(16 - LAG, 16):
        if f"tbl{n}" in E.vmq:
            E.wait_vm(f"tbl{n}")
            E.lg(f"ds_write_b128 v{vTBw}, {ar(aTB+4*n,4)} offset:{n*1280}", "tblw")
    srd(sWS, P_WS, (9 << 20))
    srd(sDBG, P_DBG, 256)
    srd(sOUT, P_OUT, 2048)
    E.wait_vm("idxd0")
    E.wait_all(vm=False, lg=True)
    e("s_barrier")
    stamp("barrier1")

    def idx_read_items(group):
        out = []
        for tp in range(8):
            if group < 6:
                out.append(("lg", f"ds_read_b128 {vr(vI+4*tp,4)}, v{vIA+tp} offset:{(5-group)*8192}", f"idx{group}_{tp}"))
            else:
                out.append(("lg", f"ds_read_b32 v{vI+4*tp}, v{vIA2+tp}", f"idx{group}_{tp}"))
        return out
    def addr_item(i, tp):
        comp = i % 4 if i < 24 else 0
        return ("v", f"v_mad_u32_u24 v{vGA+tp}, v{vI+4*tp+comp}, s{s80}, v{vQ}")
    def gather_item(i, tp):
        return ("lg", f"ds_read_b128 {afrag(tp)}, v{vGA+tp}", f"g{i}_{tp}")

    emit_items(idx_read_items(0))
    if not b1early: emit_items(bload(1))
    emit_items(idx_dma(1))
    for tp in range(8):
        E.wait_lg(f"idx0_{tp}")
        emit_item(addr_item(0, tp))
        if tp < 7: emit_item(gather_item(0, tp))
    emit_items(bload(2))
    e(f"s_or_b32 s{sT0}, s2, s{sW}")
    e(f"s_cmp_lg_u32 s{sT0}, 0")
    e("s_cbranch_scc1 L_NONONCE")
    e(f"s_memrealtime s[{sT2}:{sT3}]")
    e("s_waitcnt lgkmcnt(0)")
    e(f"s_or_b32 s{sT2}, s{sT2}, 0x80000000")
    e(f"v_mov_b32 v{vTmp}, s{sT2}")
    e(f"s_mov_b64 s[{sEX}:{sEX+1}], exec")
    e("s_mov_b64 exec, 1")
    e(f"buffer_store_dword v{vTmp}, v{vZ}, s[{sDBG}:{sDBG+3}], 0 offen sc1")
    e(f"s_mov_b64 exec, s[{sEX}:{sEX+1}]")
    E.lab("L_NONONCE")
    wait_both("raw1", "g0_1")

    OFF = {0: 49152, 1: 0}
    def t1_write(tp, n4):
        dd, sub = tp // 2, tp % 2
        a = aACC + ((tp - 2) * 4 + n4) * 4
        return f"ds_write_b128 v{vW+dd-1}, {ar(a,4)} offset:{OFF[sub] + n4*1024}"
    smalls = [
        ("vm", f"global_load_ushort v{vB1a}, v{vCO}, s[{P_B1}:{P_B1+1}]", "small"),
        ("vm", f"global_load_ushort v{vB1b}, v{vCO}, s[{P_B1}:{P_B1+1}] offset:128", "small"),
        ("vm", f"global_load_ushort v{vW2a}, v{vCO}, s[{P_W2}:{P_W2+1}]", "small"),
        ("vm", f"global_load_ushort v{vW2b}, v{vCO}, s[{P_W2}:{P_W2+1}] offset:128", "small"),
        ("vm", f"global_load_ushort v{vXW}, v{vXO}, s[{P_XW}:{P_XW+1}]", "small"),
        ("vm", f"global_load_ushort v{vWW}, v{vWO}, s[{P_WW}:{P_WW+1}]", "small"),
        ("vm", f"global_load_ushort v{vBW}, v{vZ}, s[{P_BW}:{P_BW+1}]", "small"),
        ("vm", f"global_load_ushort v{vB2}, v{vZ}, s[{P_B2}:{P_B2+1}]", "small"),
        ("vm", f"buffer_load_dword v{vFL}, v{vZ}, s[{sDBG}:{sDBG+3}], 0 offen sc1", "nonce"),
    ]
    small_at = {13: smalls[0:3], 15: smalls[3:6], 16: smalls[6:9]}

    idx_dma_at = {1: 2, 3: 3, 7: 4, 9: 5, 11: 6}
    idx_bar_at = {1: "idxd1", 2: "idxd3", 4: "idxd6"}
    touch_at = {0: 3, 4: 4, 8: 5, 12: 6}
    for i in range(NSTEP):
        nxt = i + 1 < NSTEP
        last = not nxt
        E.c(f"---- step {i}")
        if i in stepstamps: stamp(f"s{i}")
        first = [[] for _ in range(32)]
        rest = [[] for _ in range(32)]
        order_ = list(range(8))
        if last: order_ = [2, 4, 6, 0, 1, 3, 5, 7]
        first[0].append(gather_item(i, 7))
        idxstep = nxt and (i + 1) % 4 == 3 and i + 2 < NSTEP
        if nxt:
            for k in range(1, 8): first[4 * k].append(gather_item(i + 1, k - 1))
            for k in range(8): rest[4 * k].append(addr_item(i + 1, k))
            seq = [xp(i + 1, k) for k in range(16)]
            slots = [g for g in range(32) if g % 4 in (1, 2)]
            for x, g in enumerate(slots):
                rest[g].append(seq[x][0])
                if x > 0: rest[g].append(seq[x - 1][1])
            rest[31].append(seq[15][1])
            if idxstep:
                grp2 = (i + 2) // 4 if i + 2 < 24 else 6
                its = idx_read_items(grp2)
                if grp2 in idx_bar_at:
                    rest[2].append(("wvm", idx_bar_at[grp2]))
                    rest[2].append(("s", "s_barrier"))
                for tp, it in enumerate(its): first[4 * tp + 3].append(it)
        lds_ = [3, 4] if i == 0 else ([i + R] if i + R < NSTEP else [])
        for x, j in enumerate(lds_):
            ld = bload(j)
            if idxstep: gs = (1, 9, 17, 25)
            else: gs = (3, 7, 11, 15) if x == 0 else (19, 23, 27, 30)
            if idxstep: rest[0].append(ld[0])
            elif x == 0: rest[1].append(ld[0])
            else: rest[15].append(ld[0])
            for q_, g in enumerate(gs): first[g].append(ld[1 + q_])
        if i in idx_dma_at:
            its = idx_dma(idx_dma_at[i])
            if len(its) == 8:
                rest[19] += its[0:2]; rest[23] += its[2:4]
                first[27].append(its[4]); rest[27] += its[5:7]
                first[31].append(its[7])
            else:
                rest[19] += its[0:2]; rest[23] += its[2:5]
                first[27].append(its[5])
        if i in touch_at:
            its = touch_grp(touch_at[i], vTouch + 4)
            rest[19] += its[:2]; rest[23] += its[2:-1]
            first[27 if i else 31].append(its[-1])
        if i in small_at:
            for it, g in zip(small_at[i], (19, 23, 27)): first[g].append(it)
        if not last:
            rest[15].append(("wboth", None, f"g{i}_7"))
            rest[31].append(("wboth", f"raw{i+2}" if i + 2 < NSTEP else None, f"g{i+1}_3"))
        else:
            for pos, tp in enumerate([2, 4, 6]):
                base = 4 * pos + 4 + 6
                for n4 in range(4): first[base + n4].append(("lg", t1_write(tp, n4), "t1w"))
        for m in range(32):
            tp, n4 = order_[m // 4], m % 4
            if last and m == 0: E.wait_lg(f"g{i}_6")
            if last and m == 28: E.wait_lg(f"g{i}_7")
            if i == 0 and m in (8, 12): E.wait_lg(f"g0_{m//4+1}")
            cin = "0" if i == 0 else acc(tp, n4)
            e(f"v_mfma_f32_16x16x32_bf16 {acc(tp,n4)}, {afrag(tp)}, {bfrag(i,n4)}, {cin}")
            for it in first[m]: emit_item(it)
            for it in rest[m]: emit_item(it)
    stamp("loop")
    E.c("---- T1: intra-CU reduce + publish")
    def t1_reads(sub):
        for n4 in range(4):
            for k in range(3):
                E.lg(f"ds_read_b128 {vr(vT1+32*k+16*sub+4*n4,4)}, v{vRD} offset:{OFF[sub] + k*4096+n4*1024}", f"t1r{sub}{n4}_{k}")
    def t1_sum_store(sub, n4):
        b = sub * 16 + 4 * n4
        for k in range(3):
            for h in range(2):
                e(f"v_pk_add_f32 {vr(vACC0+b+2*h,2)}, {vr(vACC0+b+2*h,2)}, {vr(vT1+32*k+b+2*h,2)}")
        E.vm(f"buffer_store_dwordx4 {vr(vACC0+b,4)}, v{vST}, s[{sWS}:{sWS+3}], s{sSt+sub} offen offset:{n4*256} sc1", f"pub{sub}")
    E.wait_all(vm=False, lg=True)
    e("s_barrier")
    t1_reads(0)
    w1 = [t1_write(tp, n4) for tp in (3, 5, 7) for n4 in range(4)]
    for n4 in range(4):
        E.wait_lg(f"t1r0{n4}_2")
        for x in range(3): E.lg(w1.pop(0), "t1w")
        t1_sum_store(0, n4)
    E.wait_all(vm=False, lg=True)
    e("s_barrier")
    t1_reads(1)
    assert "nonce" not in E.vmq and "small" not in E.vmq
    e(f"v_readfirstlane_b32 s{sT3}, v{vFL}")
    e(f"s_mov_b32 s{sCnt}, 0")
    e(f"s_mov_b32 s{sT2}, 0xffff0000")
    e("s_nop 1")
    e(f"s_cmp_lt_i32 s{sT3}, 0")
    e("s_cbranch_scc0 L_NONCE_SLOW")
    E.lab("L_NONCEOK")
    for n4 in range(4):
        E.wait_lg(f"t1r1{n4}_2")
        t1_sum_store(1, n4)
    E.wait_vm("pub0")
    E.vm(f"buffer_store_dword v{vFL}, v{vFS}, s[{sWS}:{sWS+3}], s{sFS} offen sc1", "flag0")
    stamp("T1pub")
    E.c("---- T3: poll + finish")
    vIN = vT1
    vH = vT1 + 40
    vD = vT1 + 48
    vX = vT1 + 52
    vM = vT1 + 56
    vY = vT1 + 60
    e(f"v_lshlrev_b32 v{vB1a}, 16, v{vB1a}")
    e(f"v_lshlrev_b32 v{vB1b}, 16, v{vB1b}")
    e(f"v_lshlrev_b32 v{vW2a}, 16, v{vW2a}")
    e(f"v_lshlrev_b32 v{vW2b}, 16, v{vW2b}")
    e(f"v_lshlrev_b32 v{vXW}, 16, v{vXW}")
    e(f"v_lshlrev_b32 v{vWW}, 16, v{vWW}")
    e(f"v_cmp_gt_u32 vcc, 13, v{vC}")
    e(f"v_mul_f32 v{vXW}, v{vXW}, v{vWW}")
    e(f"v_lshlrev_b32 v{vBW}, 16, v{vBW}")
    e(f"v_lshlrev_b32 v{vB2}, 16, v{vB2}")
    e(f"v_cndmask_b32 v{vXW}, 0, v{vXW}, vcc")
    e("s_nop 1")
    for sh in (1, 2, 4, 8):
        e(f"v_add_f32_dpp v{vXW}, v{vXW}, v{vXW} row_shr:{sh} row_mask:0xf bank_mask:0xf")
        e("s_nop 1")
    def rnd(r):
        e(f"v_cvt_pk_bf16_f32 v{r}, v{r}, v{r}")
        e(f"v_and_b32 v{r}, s{sT2}, v{r}")
    rnd(vXW)
    e(f"v_add_f32 v{vXW}, v{vXW}, v{vBW}")
    rnd(vXW)
    E.wait_vm("pub1")
    E.vm(f"buffer_store_dword v{vFL}, v{vFS}, s[{sWS}:{sWS+3}], s{sFS} offen offset:2048 sc1", "flag1")
    stamp("drain")
    def poll_issue(r):
        e(f"v_mov_b32 v{r}, 0")
        e(f"buffer_atomic_or v{r}, v{vIND}, s[{sWS}:{sWS+3}], s{sFP} offen sc0 sc1")
    if pipe_poll:
        poll_issue(vM + 3)
        e(f"s_sleep 4")
        E.lab("L_IND")
        poll_issue(vM + 4)
        e("s_waitcnt vmcnt(1)")
        e(f"v_cmp_ne_u32 vcc, v{vM+3}, v{vFL}")
        e("s_and_b64 vcc, vcc, 0xff")
        e("s_cbranch_vccz L_INDOK")
        poll_issue(vM + 3)
        e("s_waitcnt vmcnt(1)")
        e(f"v_cmp_ne_u32 vcc, v{vM+4}, v{vFL}")
        e("s_and_b64 vcc, vcc, 0xff")
        e("s_cbranch_vccz L_INDOK")
        e(f"s_add_u32 s{sCnt}, s{sCnt}, 1")
        e(f"s_cmp_gt_u32 s{sCnt}, 100000")
        e("s_cbranch_scc0 L_IND")
    else:
        e("s_branch L_IND1")
        E.lab("L_IND")
        e(f"s_sleep {sleep}")
        E.lab("L_IND1")
        poll_issue(vM + 3)
        e("s_waitcnt vmcnt(0)")
        e(f"v_cmp_ne_u32 vcc, v{vM+3}, v{vFL}")
        e("s_and_b64 vcc, vcc, 0xff")
        e("s_cbranch_vccz L_INDOK")
        e(f"s_add_u32 s{sCnt}, s{sCnt}, 1")
        e(f"s_cmp_gt_u32 s{sCnt}, 100000")
        e("s_cbranch_scc0 L_IND")
    E.lab("L_INDOK")
    stamp("ind")
    for k in range(8):
        so = sIn0 if k < 4 else sIn1
        e(f"buffer_load_dwordx4 {vr(vIN+4*k,4)}, v{vL16}, s[{sWS}:{sWS+3}], s{so} offen offset:{(k%4)*1024} sc1")
    E.vmq = []
    e("s_waitcnt vmcnt(4)")
    for off in (4, 8, 12):
        for h in range(2):
            a0 = vr(vIN + 2 * h, 2) if off == 4 else vr(vH + 2 * h, 2)
            e(f"v_pk_add_f32 {vr(vH+2*h,2)}, {a0}, {vr(vIN+off+2*h,2)}")
    def finish_half(nl):
        hs = [vH + 4 * nl + k for k in range(4)]
        b1 = vB1a if nl == 0 else vB1b
        for h in hs: e(f"v_cvt_pk_bf16_f32 v{h}, v{h}, v{h}")
        for h in hs: e(f"v_and_b32 v{h}, s{sT2}, v{h}")
        for h in hs: e(f"v_add_f32 v{h}, v{h}, v{b1}")
        for h in hs: e(f"v_cvt_pk_bf16_f32 v{h}, v{h}, v{h}")
        for h in hs: e(f"v_and_b32 v{h}, s{sT2}, v{h}")
        for r in range(4):
            e(f"v_cmp_lt_f32 s[{sSt+2*(r%2)}:{sSt+2*(r%2)+1}], 0, v{hs[r]}")
            if r % 2 == 1:
                e("s_nop 0")
                e(f"v_cndmask_b32 v{vY+r-1}, 0, 1.0, s[{sSt}:{sSt+1}]")
                e(f"v_cndmask_b32 v{vY+r}, 0, 1.0, s[{sSt+2}:{sSt+3}]")
        for r, h in enumerate(hs): e(f"v_mul_f32 v{h}, v{h}, v{vY+r}")
        for r, h in enumerate(hs):
            if nl == 0: e(f"v_mul_f32 v{vD+r}, v{h}, v{vW2a}")
            else: e(f"v_fmac_f32 v{vD+r}, v{h}, v{vW2b}")
    finish_half(0)
    e("s_waitcnt vmcnt(0)")
    stamp("poll")
    for off in (4, 8, 12):
        for h in range(2):
            a0 = vr(vIN + 16 + 2 * h, 2) if off == 4 else vr(vH + 4 + 2 * h, 2)
            e(f"v_pk_add_f32 {vr(vH+4+2*h,2)}, {a0}, {vr(vIN+16+off+2*h,2)}")
    finish_half(1)
    regs = [vD, vD + 1, vD + 2, vD + 3]
    for sh in (1, 2, 4, 8):
        for rg in regs: e(f"v_add_f32_dpp v{rg}, v{rg}, v{rg} row_shr:{sh} row_mask:0xf bank_mask:0xf")
    for rg in regs: e(f"v_add_f32_dpp v{rg}, v{rg}, v{rg} row_bcast:15 row_mask:0xa bank_mask:0xf")
    for rg in regs: e(f"v_add_f32_dpp v{rg}, v{rg}, v{rg} row_bcast:31 row_mask:0xc bank_mask:0xf")
    e(f"s_lshl_b32 s{sT0}, s{sW}, 4")
    e(f"s_add_u32 s{sT0}, s{sT0}, {FIN}")
    e(f"v_mov_b32 v{vX}, s{sT0}")
    e(f"s_mov_b64 s[{sEX}:{sEX+1}], exec")
    e("s_mov_b32 exec_lo, 0")
    e("s_mov_b32 exec_hi, 0x80000000")
    e(f"ds_write_b128 v{vX}, {vr(vD,4)}")
    e(f"s_mov_b64 exec, s[{sEX}:{sEX+1}]")
    e(f"v_lshlrev_b32 v{vX+1}, 2, v{vQ4}")
    e(f"v_add_u32 v{vX+1}, {FIN}, v{vX+1}")
    e("s_waitcnt lgkmcnt(0)")
    e("s_barrier")
    e(f"s_cmp_lg_u32 s{sW}, 0")
    e("s_cbranch_scc1 L_TS")
    for k in range(4): e(f"ds_read_b32 v{vD+k}, v{vX+1} offset:{16*k}")
    e("s_waitcnt lgkmcnt(0)")
    e(f"v_add_f32 v{vD}, v{vD}, v{vD+1}")
    e(f"v_add_f32 v{vD+2}, v{vD+2}, v{vD+3}")
    e(f"v_add_f32 v{vD}, v{vD}, v{vD+2}")
    rnd(vD)
    e(f"v_add_f32 v{vD}, v{vD}, v{vB2}")
    rnd(vD)
    e(f"v_add_f32 v{vD}, v{vD}, v{vXW}")
    rnd(vD)
    e(f"v_mul_f32 v{vD}, 0xbfb8aa3b, v{vD}")
    e(f"v_exp_f32 v{vD}, v{vD}")
    e("s_nop 0")
    e(f"v_add_f32 v{vD}, 1.0, v{vD}")
    e(f"v_rcp_f32 v{vD}, v{vD}")
    e("s_nop 0")
    e(f"v_cvt_pk_bf16_f32 v{vD}, v{vD}, v{vD}")
    e("s_mov_b32 exec_lo, 0x80008000")
    e("s_mov_b32 exec_hi, 0x80008000")
    e(f"buffer_store_short v{vD}, v{vOUTO}, s[{sOUT}:{sOUT+3}], 0 offen")
    e("s_mov_b64 exec, -1")
    E.lab("L_TS")
    if TS:
        stamp("end")
        srd(sWS, P_WS, 32 << 20)
        if rt:
            e(f"v_mov_b32 v{vTmp}, 16")
            e(f"v_mov_b32 v{vTmp+1}, 1")
            e("s_mov_b64 exec, 1")
            e(f"buffer_atomic_add v{vTmp+1}, v{vTmp}, s[{sDBG}:{sDBG+3}], 0 offen sc1")
            e("s_waitcnt vmcnt(0)")
            e(f"s_mov_b32 s{sCnt}, 0")
            E.lab("L_CAL")
            e(f"buffer_load_dword v{vTmp+2}, v{vTmp}, s[{sDBG}:{sDBG+3}], 0 offen sc1")
            e("s_waitcnt vmcnt(0)")
            e(f"v_readfirstlane_b32 s{sT0}, v{vTmp+2}")
            e(f"s_add_u32 s{sCnt}, s{sCnt}, 1")
            e(f"s_cmp_gt_u32 s{sCnt}, 20000")
            e("s_cbranch_scc1 L_CALOK")
            e(f"s_cmp_lt_u32 s{sT0}, 1024")
            e("s_cbranch_scc1 L_CAL")
            E.lab("L_CALOK")
            stamp("cal")
            e("s_mov_b64 exec, -1")
        n = tsn[0]
        assert sTS + 2 * n <= 98, n
        e(f"s_lshl_b32 s{sT0}, s2, 2")
        e(f"s_add_u32 s{sT0}, s{sT0}, s{sW}")
        e(f"s_lshl_b32 s{sT0}, s{sT0}, 6")
        e(f"s_add_u32 s{sT0}, s{sT0}, {16<<20}")
        e(f"v_mov_b32 v{vTmp}, 0")
        e("s_mov_b64 exec, 1")
        for k in range(n):
            if rt: e(f"s_mov_b32 s{sT1}, s{sTS+2*k}")
            else: e(f"s_sub_u32 s{sT1}, s{sTS+2*k}, s{sTS}")
            e(f"v_mov_b32 v{vTmp+1}, s{sT1}")
            e(f"buffer_store_dword v{vTmp+1}, v{vTmp}, s[{sWS}:{sWS+3}], s{sT0} offen offset:{4*k}")
    e("s_branch L_END")
    E.lab("L_NONCE_SLOW")
    e(f"buffer_load_dword v{vFL}, v{vZ}, s[{sDBG}:{sDBG+3}], 0 offen sc1")
    e("s_waitcnt vmcnt(0)")
    e(f"v_readfirstlane_b32 s{sT3}, v{vFL}")
    e(f"s_add_u32 s{sCnt}, s{sCnt}, 1")
    e("s_nop 3")
    e(f"s_cmp_gt_u32 s{sCnt}, 200000")
    e("s_cbranch_scc1 L_NONCEOK")
    e(f"s_cmp_lt_i32 s{sT3}, 0")
    e("s_cbranch_scc0 L_NONCE_SLOW")
    e("s_branch L_NONCEOK")
    E.lab("L_END")
    e("s_endpgm")
    E.lab("L_CODE_END")

    out = [HDR + f"; @launch grid=(256,1,1) block=(256,1,1) lds={LDS_TOTAL}",
           '.amdgcn_target "amdgcn-amd-amdhsa--gfx950"', ".text", f".globl {NAME}", ".p2align 8",
           f".type {NAME},@function"]
    out += E.L
    out += ['.section .rodata,"a"', ".p2align 6", f".amdhsa_kernel {NAME}",
            "  .amdhsa_next_free_vgpr 384", "  .amdhsa_next_free_sgpr 102", "  .amdhsa_accum_offset 256",
            "  .amdhsa_group_segment_fixed_size 0", "  .amdhsa_kernarg_size 96", "  .amdhsa_user_sgpr_count 2",
            "  .amdhsa_user_sgpr_kernarg_segment_ptr 1", "  .amdhsa_system_sgpr_workgroup_id_x 1",
            ".end_amdhsa_kernel"]
    return "\n".join(out) + "\n", names

if __name__ == "__main__":
    ap = argparse.ArgumentParser()
    ap.add_argument("-o", default="k.s")
    ap.add_argument("--ts", default=None)
    ap.add_argument("--steps", default="")
    ap.add_argument("--clk", action="store_true")
    ap.add_argument("--sleep", type=int, default=1)
    ap.add_argument("--tlag", type=int, default=6)
    ap.add_argument("--nopipe", action="store_true")
    ap.add_argument("--b1late", action="store_true")
    a = ap.parse_args()
    st = tuple(a.ts.split(",")) if a.ts else ()
    steps = tuple(int(x) for x in a.steps.split(",") if x)
    st = st + tuple(f"s{x}" for x in steps)
    txt, names = gen(TS=a.ts is not None, stamps=st, stepstamps=steps, rt=not a.clk, sleep=a.sleep, tlag=a.tlag,
                     pipe_poll=not a.nopipe, b1early=not a.b1late)
    open(a.o, "w").write(txt)
    if a.ts: open(a.o.replace(".s", ".names"), "w").write(" ".join(names))
```

```python
import sys, argparse
from gen import Em, vr, ar, HDR, NAME

def gen(TS=False, stamps=(), stepstamps=(), rt=True, sleep=1, tlag=6, pipe_poll=True, b1early=True, order="A", ta2=False, tbpos="after", prew=None):
    NSTEP = 25
    R = 4
    E = Em()
    e = E.e
    OOB = 0x7ffffff0
    IDXL = 81920
    def IDXC(c): return 83968 + (5 - c) * 8192
    T1B = 51200
    FIN = T1B + 98304
    LDS_TOTAL = FIN + 64
    FLAGS = 8 << 20
    sW1, sTB, sIX, sWS = 4, 8, 12, 16
    sDBG = 20
    P_IDX, P_TBL, P_XW, P_WW, P_BW, P_W1, P_B1, P_W2, P_B2, P_OUT, P_DBG, P_WS = [24 + 2 * i for i in range(12)]
    sW = 3
    sNI, sS, sMIi, sP = 48, 49, 50, 51
    sT0, sT1, sT2, sT3 = 52, 53, 54, 55
    sBbase, sB24, sBoff = 56, 57, 58
    s80 = 59
    sX = 60
    sIn0 = 61
    sIn1 = 62
    sCnt = 63
    sOUT = 64
    sIXF = 68
    sSt = 72
    sEX = 76
    sPC = 78
    sFP, sFS = 98, 99
    sTS = 80
    vLane, vC, vQ4 = 1, 2, 3
    vB0, vB1, vQ = 4, 5, 6
    vL16 = 7
    vTmp = 8
    vB1a, vB1b, vW2a, vW2b = 14, 15, 16, 17
    vXW, vWW, vBW, vB2 = 18, 19, 20, 21
    vFL = 22
    vSel = 23
    vGA = 24
    vIA = 32
    vIA2 = 40
    vDT = 48
    vST = 52
    vW = 53
    vRD = 56
    vOUTO = 57
    vIND = 58
    vFS = 59
    vCO, vXO, vZ, vWO = 60, 61, 62, 63
    vACC0 = 64
    vBF = 96
    vI = 128
    vRAW = 160
    vT1 = 96
    vTo48, vTo16, vTo4, vIXl, vIXo, vTBo, vTBw = 239, 240, 241, 242, 243, 244, 245
    vTouch = 250
    aACC, aAF, aTB = 0, 96, 0

    def acc(tp, n):
        if tp < 2: return vr(vACC0 + (tp * 4 + n) * 4, 4)
        return ar(aACC + ((tp - 2) * 4 + n) * 4, 4)
    def afrag(tp): return ar(aAF + tp * 4, 4)
    def bfrag(i, n): return vr(vBF + (i % 2) * 16 + n * 4, 4)
    def raw(i, jj, cp=None):
        b = vRAW + 16 * (i % R) + 4 * jj
        return vr(b, 4) if cp is None else vr(b + cp)

    tsn = [0]; names = []
    def stamp(name):
        if not TS: return
        if stamps and name not in stamps and name != "cal": return
        k = tsn[0]; tsn[0] += 1
        names.append(name)
        e(f"{'s_memrealtime' if rt else 's_memtime'} s[{sTS+2*k}:{sTS+2*k+1}]")
        E.wait_all(vm=False, lg=True)
    def wait_both(vtag, ltag):
        parts = []
        if vtag is not None and vtag in E.vmq:
            idx = len(E.vmq) - 1 - E.vmq[::-1].index(vtag)
            n = len(E.vmq) - 1 - idx
            E.vmq = E.vmq[idx + 1:]
            parts.append(f"vmcnt({min(n, 63)})")
        if ltag is not None and ltag in E.lgq:
            idx = len(E.lgq) - 1 - E.lgq[::-1].index(ltag)
            n = len(E.lgq) - 1 - idx
            assert n <= 15, n
            E.lgq = E.lgq[idx + 1:]
            parts.append(f"lgkmcnt({n})")
        if parts: e("s_waitcnt " + " ".join(parts))
    def emit_item(it):
        if it is None: return
        if it[0] in ("s", "v"): e(it[1])
        elif it[0] == "vm": E.vm(it[1], it[2])
        elif it[0] == "lg": E.lg(it[1], it[2])
        elif it[0] == "wvm": E.wait_vm(it[1])
        elif it[0] == "wlg": E.wait_lg(it[1])
        elif it[0] == "wboth": wait_both(it[1], it[2])
        else: raise ValueError(it)
    def emit_items(its):
        for it in its: emit_item(it)
    def srd(d, p, nbytes, addoff=None):
        if addoff is None:
            e(f"s_mov_b32 s{d}, s{p}")
            e(f"s_and_b32 s{d+1}, s{p+1}, 0xffff")
        else:
            e(f"s_add_u32 s{d}, s{p}, s{addoff}")
            e(f"s_addc_u32 s{d+1}, s{p+1}, 0")
            e(f"s_and_b32 s{d+1}, s{d+1}, 0xffff")
        e(f"s_mov_b32 s{d+2}, {nbytes}")
        e(f"s_mov_b32 s{d+3}, 0x00020000")
    def fieldoff(i): return (16 * (i // 4) + i % 4) * 131072
    def bload(i):
        out = []
        if i < 24: out.append(("s", f"s_add_u32 s{sBoff}, s{sBbase}, {fieldoff(i)}"))
        else: out.append(("s", f"s_mov_b32 s{sBoff}, s{sB24}"))
        for jj in range(4):
            vo = vB0 if jj < 2 else vB1
            out.append(("vm", f"buffer_load_dwordx4 {raw(i,jj)}, v{vo}, s[{sW1}:{sW1+3}], s{sBoff} offen offset:{(jj%2)*2048}", f"raw{i}"))
        return out
    def idx_dma(c):
        out = []
        if c < 6:
            out.append(("s", f"s_lshl_b32 s{sT0}, s{sW}, 11"))
            out.append(("s", f"s_mul_i32 s{sT1}, s{sW}, 12800"))
            for h in range(2):
                out.append(("s", f"s_add_u32 m0, s{sT0}, {IDXC(c) + h*1024}"))
                out.append(("s", f"s_add_u32 s{sT2}, s{sT1}, {h*6400 + c*64}"))
                out.append(("vm", f"buffer_load_dwordx4 v{vIXo}, s[{sIX}:{sIX+3}], s{sT2} offen lds", f"idxd{c}"))
        else:
            out.append(("s", f"s_and_b32 s{sT0}, s{sW}, 1"))
            out.append(("s", f"s_mul_i32 s{sT1}, s{sT0}, 25600"))
            out.append(("s", f"s_lshl_b32 s{sT0}, s{sT0}, 10"))
            out.append(("s", f"s_add_u32 m0, s{sT0}, {IDXL}"))
            out.append(("s", "s_nop 0"))
            out.append(("vm", f"buffer_load_dwordx4 v{vIXl}, s[{sIX}:{sIX+3}], s{sT1} offen lds", f"idxd{c}"))
        return out
    def touch_grp(m, dst):
        out = [("s", f"s_lshl_b32 s{sT0}, s{sMIi}, 12")]
        if m < 6:
            out.append(("s", f"s_add_u32 s{sT0}, s{sT0}, s{sBbase}"))
            out.append(("s", f"s_add_u32 s{sT0}, s{sT0}, {m<<21}"))
            out.append(("vm", f"buffer_load_dword v{dst}, v{vTo16}, s[{sW1}:{sW1+3}], s{sT0} offen", "touch"))
        else:
            out.append(("s", f"s_add_u32 s{sT0}, s{sT0}, s{sB24}"))
            out.append(("vm", f"buffer_load_dword v{dst}, v{vTo4}, s[{sW1}:{sW1+3}], s{sT0} offen", "touch"))
        return out
    def xp(i, k):
        cp, jj = k // 4, k % 4
        t = vDT + (k % 4)
        return (("v", f"v_mov_b32_dpp v{t}, {raw(i, jj, cp)} row_ror:8 row_mask:0xf bank_mask:0xf"),
                ("v", f"v_perm_b32 v{vBF + (i%2)*16 + cp*4 + jj}, v{t}, {raw(i, jj, cp)}, v{vSel}"))

    E.lab(NAME)
    e("s_cmp_ge_u32 s2, 256")
    e("s_cbranch_scc1 L_END")
    e("s_load_dwordx16 s[24:39], s[0:1], 0")
    e("s_load_dwordx8 s[40:47], s[0:1], 64")
    if TS:
        e(f"{'s_memrealtime' if rt else 's_memtime'} s[{sTS}:{sTS+1}]"); tsn[0] = 1
    e(f"s_getpc_b64 s[{sPC}:{sPC+1}]")
    E.lab("L_PCREF")
    e(f"v_and_b32 v{vLane}, 63, v0")
    e(f"v_lshrrev_b32 v{vTmp}, 6, v0")
    e(f"v_and_b32 v{vC}, 15, v0")
    e(f"v_readfirstlane_b32 s{sW}, v{vTmp}")
    e(f"s_lshr_b32 s{sT0}, s2, 3")
    e(f"s_lshl_b32 s{sX}, s{sT0}, 2")
    e(f"v_mov_b32 v{vTmp+5}, 0x{OOB:x}")
    e(f"s_add_u32 s{sX}, s{sX}, s{sW}")
    e(f"v_lshlrev_b32 v{vTmp}, 14, v{vLane}")
    e(f"s_lshl_b32 s{sT1}, s{sX}, 7")
    e(f"v_add_u32 v{vTmp}, s{sT1}, v{vTmp}")
    e(f"s_mov_b32 s{sT1}, L_CODE_END-L_PCREF")
    e(f"v_cmp_gt_u32 vcc, s{sT1}, v{vTmp}")
    e(f"s_and_saveexec_b64 s[{sEX}:{sEX+1}], vcc")
    e("s_cbranch_execz L_NOCT")
    E.vm(f"global_load_dword v{vTouch}, v{vTmp}, s[{sPC}:{sPC+1}]", "touchC")
    E.lab("L_NOCT")
    e(f"s_mov_b64 exec, s[{sEX}:{sEX+1}]")
    e(f"v_lshrrev_b32 v{vQ4}, 4, v{vLane}")
    e(f"s_and_b32 s{sNI}, s2, 7")
    e(f"s_and_b32 s{sS}, s{sT0}, 3")
    e(f"s_lshr_b32 s{sMIi}, s{sT0}, 2")
    e(f"s_lshl_b32 s{sP}, s{sNI}, 2")
    e(f"s_add_u32 s{sP}, s{sP}, s{sS}")
    e(f"s_movk_i32 s{s80}, 80")
    e(f"s_lshl_b32 s{sT0}, s{sS}, 15")
    e(f"s_lshl_b32 s{sT1}, s{sNI}, 7")
    e(f"s_add_u32 s{sT0}, s{sT0}, s{sT1}")
    e(f"s_lshl_b32 s{sT1}, s{sW}, 19")
    e(f"s_add_u32 s{sBbase}, s{sT0}, s{sT1}")
    e(f"s_add_u32 s{sT1}, s{sW}, 96")
    e(f"s_lshl_b32 s{sT1}, s{sT1}, 17")
    e(f"s_add_u32 s{sB24}, s{sT0}, s{sT1}")
    e(f"v_lshlrev_b32 v{vTmp}, 7, v{vLane}")
    e(f"v_cmp_gt_u32 vcc, 16, v{vLane}")
    e(f"v_lshrrev_b32 v{vTmp+3}, 1, v{vLane}")
    e(f"v_mul_u32_u24 v{vTmp+3}, 400, v{vTmp+3}")
    e(f"v_cndmask_b32 v{vTouch+3}, v{vTmp+5}, v{vTmp}, vcc")
    e(f"v_and_b32 v{vTmp+4}, 1, v{vLane}")
    e(f"v_mul_u32_u24 v{vTmp+4}, 60, v{vTmp+4}")
    e(f"v_add_u32 v{vTmp+3}, v{vTmp+3}, v{vTmp+4}")
    e(f"v_cndmask_b32 v{vTouch+4}, v{vTmp+5}, v{vTmp+3}, vcc")
    e(f"v_lshlrev_b32 v{vTmp}, 21, v{vQ4}")
    e(f"v_bfe_u32 v{vTmp+3}, v{vLane}, 2, 2")
    e(f"v_lshl_add_u32 v{vTmp}, v{vTmp+3}, 17, v{vTmp}")
    e(f"v_and_b32 v{vTmp+3}, 3, v{vLane}")
    e(f"v_lshl_add_u32 v{vTmp}, v{vTmp+3}, 10, v{vTmp}")
    e(f"v_bfe_u32 v{vTmp+2}, v0, 3, 1")
    e(f"v_cndmask_b32 v{vTo16}, v{vTmp+5}, v{vTmp}, vcc")
    e(f"v_cmp_gt_u32 vcc, 48, v{vLane}")
    e(f"v_lshlrev_b32 v{vB0}, 13, v{vQ4}")
    e(f"v_lshl_add_u32 v{vB0}, v{vTmp+2}, 10, v{vB0}")
    e(f"v_cndmask_b32 v{vTo48}, v{vTmp+5}, v{vTmp}, vcc")
    e(f"v_cmp_gt_u32 vcc, 4, v{vLane}")
    e(f"v_and_b32 v{vTmp+1}, 7, v0")
    e(f"v_lshl_add_u32 v{vB0}, v{vTmp+1}, 4, v{vB0}")
    e(f"v_cndmask_b32 v{vTo4}, v{vTmp+5}, v{vTmp}, vcc")
    e(f"v_add_u32 v{vB1}, 0x1000, v{vB0}")
    e(f"v_lshrrev_b32 v{vTmp}, 2, v{vLane}")
    e(f"v_and_b32 v{vTmp+1}, 3, v{vLane}")
    e(f"v_lshlrev_b32 v{vTmp+1}, 4, v{vTmp+1}")
    e(f"v_lshl_add_u32 v{vTBo}, v{vTmp}, 8, v{vTmp+1}")
    e(f"v_mad_u32_u24 v{vTBw}, v{vTmp}, s{s80}, v{vTmp+1}")
    e(f"s_mul_i32 s{sT0}, s{sW}, 20480")
    e(f"v_add_u32 v{vTBw}, s{sT0}, v{vTBw}")
    e(f"s_movk_i32 s{sT1}, 400")
    e(f"v_mul_u32_u24 v{vIXo}, s{sT1}, v{vTmp}")
    e(f"v_and_b32 v{vTmp+1}, 3, v{vLane}")
    e(f"v_xor_b32 v{vTmp}, v{vQ4}, v{vTmp+1}")
    e(f"v_lshl_add_u32 v{vIXo}, v{vTmp}, 4, v{vIXo}")
    e(f"v_mul_u32_u24 v{vIXl}, s{sT1}, v{vLane}")
    e(f"v_add_u32 v{vIXl}, 384, v{vIXl}")
    e("s_waitcnt lgkmcnt(0)")
    stamp("kernarg")
    srd(sTB, P_TBL, 256000)
    srd(sIXF, P_IDX, 409600)
    e(f"s_lshl_b32 s{sT0}, s{sX}, 11")
    E.vm(f"buffer_load_dword v{vTouch}, v{vTouch+3}, s[{sTB}:{sTB+3}], s{sT0} offen", "touchA")
    e(f"s_mul_i32 s{sT0}, s{sX}, 3200")
    E.vm(f"buffer_load_dword v{vTouch+1}, v{vTouch+4}, s[{sIXF}:{sIXF+3}], s{sT0} offen", "touchA")
    srd(sW1, P_W1, 13107200)
    if ta2:
        e(f"s_lshl_b32 s{sT0}, s{sMIi}, 12")
        e(f"s_add_u32 s{sT0}, s{sT0}, s{sBbase}")
        E.vm(f"buffer_load_dword v{vTouch+2}, v{vTo16}, s[{sW1}:{sW1+3}], s{sT0} offen", "touchA")
    emit_items(bload(0))
    e(f"s_mul_i32 s{sT3}, s{sMIi}, 51200")
    srd(sIX, P_IDX, 51200, addoff=sT3)
    emit_items(idx_dma(0))
    consts = []
    C = consts.append
    C(f"v_mov_b32 v{vSel}, 0x05040100")
    C(f"v_mov_b32 v{vTmp+3}, 0x03020706")
    C(f"v_cmp_eq_u32 vcc, 1, v{vTmp+2}")
    C(f"v_lshlrev_b32 v{vQ}, 4, v{vQ4}")
    C(f"v_lshlrev_b32 v{vL16}, 4, v{vLane}")
    C(f"v_cndmask_b32 v{vSel}, v{vSel}, v{vTmp+3}, vcc")
    C(f"v_bfe_u32 v{vTmp}, v{vC}, 2, 2")
    C(f"v_xor_b32 v{vTmp}, s{sW}, v{vTmp}")
    C(f"v_lshlrev_b32 v{vTmp}, 4, v{vTmp}")
    C(f"v_lshl_add_u32 v{vTmp}, v{vC}, 6, v{vTmp}")
    C(f"v_lshlrev_b32 v{vTmp+1}, 4, v{vC}")
    C(f"s_lshl_b32 s{sT0}, s{sW}, 1")
    C(f"s_lshl_b32 s{sT2}, s{sW}, 2")
    for tp in range(8):
        C(f"s_add_u32 s{sSt}, s{sT0}, {tp}")
        C(f"s_and_b32 s{sSt}, s{sSt}, 7")
        C(f"s_lshl_b32 s{sT3}, s{sSt}, 10")
        C(f"s_add_u32 s{sT3}, s{sT3}, {IDXC(5)}")
        C(f"v_add_u32 v{vIA+tp}, s{sT3}, v{vTmp}")
        C(f"s_lshl_b32 s{sT3}, s{sSt}, 8")
        C(f"s_add_u32 s{sT3}, s{sT3}, s{sT2}")
        C(f"s_add_u32 s{sT3}, s{sT3}, {IDXL}")
        C(f"v_add_u32 v{vIA2+tp}, s{sT3}, v{vTmp+1}")
    for dd in range(1, 4):
        C(f"s_add_u32 s{sT0}, s{sW}, {dd}")
        C(f"s_and_b32 s{sT0}, s{sT0}, 3")
        C(f"s_mul_i32 s{sT0}, s{sT0}, 12288")
        C(f"s_add_u32 s{sT0}, s{sT0}, {T1B + (dd-1)*4096}")
        C(f"v_add_u32 v{vW+dd-1}, s{sT0}, v{vL16}")
    C(f"s_mul_i32 s{sT0}, s{sW}, 12288")
    C(f"s_add_u32 s{sT0}, s{sT0}, {T1B}")
    C(f"v_add_u32 v{vRD}, s{sT0}, v{vL16}")
    C(f"s_lshl_b32 s{sT0}, s{sMIi}, 5")
    C(f"v_lshlrev_b32 v{vST}, 15, v{vQ4}")
    C(f"v_lshl_add_u32 v{vST}, v{vC}, 4, v{vST}")
    C(f"s_lshl_b32 s{sT2}, s{sW}, 3")
    C(f"s_add_u32 s{sT2}, s{sT0}, s{sT2}")
    C(f"s_lshl_b32 s{sT3}, s{sT2}, 15")
    C(f"s_lshl_b32 s{sSt}, s{sP}, 10")
    C(f"s_add_u32 s{sSt}, s{sSt}, s{sT3}")
    C(f"s_add_u32 s{sSt+1}, s{sSt}, {4*32768}")
    C(f"s_lshl_b32 s{sT2}, s{sT2}, 9")
    C(f"s_lshr_b32 s{sT3}, s{sP}, 3")
    C(f"s_lshl_b32 s{sT3}, s{sT3}, 7")
    C(f"s_add_u32 s{sT2}, s{sT2}, s{sT3}")
    C(f"s_and_b32 s{sT3}, s{sP}, 7")
    C(f"s_lshl_b32 s{sT3}, s{sT3}, 2")
    C(f"s_add_u32 s{sT2}, s{sT2}, s{sT3}")
    C(f"s_add_u32 s{sFS}, s{sT2}, {FLAGS}")
    C(f"s_add_u32 s{sT2}, s{sT0}, s{sP}")
    C(f"s_lshl_b32 s{sT3}, s{sT2}, 15")
    C(f"s_lshl_b32 s{sIn0}, s{sW}, 13")
    C(f"s_add_u32 s{sIn0}, s{sIn0}, s{sT3}")
    C(f"s_add_u32 s{sIn1}, s{sIn0}, 4096")
    C(f"s_lshl_b32 s{sT3}, s{sT2}, 2")
    C(f"s_add_u32 s{sT3}, s{sT3}, s{sW}")
    C(f"s_lshl_b32 s{sT3}, s{sT3}, 7")
    C(f"s_add_u32 s{sFP}, s{sT3}, {FLAGS}")
    C(f"v_cmp_gt_u32 vcc, 8, v{vLane}")
    C(f"v_lshlrev_b32 v{vIND}, 2, v{vLane}")
    C(f"v_lshlrev_b32 v{vFS}, 9, v{vLane}")
    C(f"v_cndmask_b32 v{vIND}, v{vTmp+5}, v{vIND}, vcc")
    C(f"v_cmp_gt_u32 vcc, 4, v{vLane}")
    C(f"v_and_b32 v{vCO}, 7, v{vLane}")
    C(f"v_lshlrev_b32 v{vCO}, 3, v{vCO}")
    C(f"v_cndmask_b32 v{vFS}, v{vTmp+5}, v{vFS}, vcc")
    C(f"v_lshl_add_u32 v{vCO}, v{vQ4}, 1, v{vCO}")
    C(f"v_add_u32 v{vCO}, v{vCO}, v{vTmp+2}")
    C(f"s_lshl_b32 s{sT3}, s{sW}, 7")
    C(f"v_add_u32 v{vCO}, s{sT3}, v{vCO}")
    C(f"v_lshlrev_b32 v{vCO}, 1, v{vCO}")
    C(f"s_lshl_b32 s{sT0}, s{sMIi}, 7")
    C(f"s_lshl_b32 s{sT3}, s{sP}, 2")
    C(f"s_add_u32 s{sT0}, s{sT0}, s{sT3}")
    C(f"v_add_u32 v{vXO}, s{sT0}, v{vQ4}")
    C(f"v_lshlrev_b32 v{vOUTO}, 1, v{vXO}")
    C(f"v_mul_u32_u24 v{vXO}, 13, v{vXO}")
    C(f"v_min_u32 v{vWO}, 12, v{vC}")
    C(f"v_add_u32 v{vXO}, v{vXO}, v{vWO}")
    C(f"v_lshlrev_b32 v{vXO}, 1, v{vXO}")
    C(f"v_lshlrev_b32 v{vWO}, 1, v{vWO}")
    C(f"v_mov_b32 v{vZ}, 0")
    e(f"s_lshl_b32 s{sT1}, s{sW}, 16")
    e(f"s_lshl_b32 s{sSt+1}, s{sS}, 6")
    e(f"s_add_u32 s{sT1}, s{sT1}, s{sSt+1}")
    LAG = tlag
    per = -(-len(consts) // 14)
    for n in range(16):
        if n > 0: e(f"s_add_u32 s{sT1}, s{sT1}, 4096")
        E.vm(f"buffer_load_dwordx4 {ar(aTB+4*n,4)}, v{vTBo}, s[{sTB}:{sTB+3}], s{sT1} offen", f"tbl{n}")
        for _ in range(per):
            if consts: e(consts.pop(0))
        if tbpos == "mid" and n == 7:
            e(f"s_lshl_b32 s{sCnt}, s{sMIi}, 12")
            e(f"s_add_u32 s{sCnt}, s{sCnt}, s{sBbase}")
            E.vm(f"buffer_load_dword v{vTouch+2}, v{vTo48}, s[{sW1}:{sW1+3}], s{sCnt} offen", "touchB")
        if n >= LAG:
            E.wait_vm(f"tbl{n-LAG}")
            E.lg(f"ds_write_b128 v{vTBw}, {ar(aTB+4*(n-LAG),4)} offset:{(n-LAG)*1280}", "tblw")
    while consts: e(consts.pop(0))
    stamp("tbliss")
    if b1early:
        emit_items(bload(1))
    if tbpos == "after":
        e(f"s_lshl_b32 s{sT0}, s{sMIi}, 12")
        e(f"s_add_u32 s{sT0}, s{sT0}, s{sBbase}")
        E.vm(f"buffer_load_dword v{vTouch+2}, v{vTo48}, s[{sW1}:{sW1+3}], s{sT0} offen", "touchB")
    E.wait_vm("raw0")
    for k in range(16):
        d, p = xp(0, k)
        emit_item(d); emit_item(p)
        if k % 3 == 2 and (16 - LAG + k // 3) < 16:
            n = 16 - LAG + k // 3
            E.wait_vm(f"tbl{n}")
            E.lg(f"ds_write_b128 v{vTBw}, {ar(aTB+4*n,4)} offset:{n*1280}", "tblw")
    for n in range(16 - LAG, 16):
        if f"tbl{n}" in E.vmq:
            E.wait_vm(f"tbl{n}")
            E.lg(f"ds_write_b128 v{vTBw}, {ar(aTB+4*n,4)} offset:{n*1280}", "tblw")
    srd(sWS, P_WS, (9 << 20))
    srd(sDBG, P_DBG, 256)
    srd(sOUT, P_OUT, 2048)
    E.wait_vm("idxd0")
    E.wait_all(vm=False, lg=True)
    e("s_barrier")
    stamp("barrier1")

    def idx_read_items(group):
        out = []
        for tp in range(8):
            if group < 6:
                out.append(("lg", f"ds_read_b128 {vr(vI+4*tp,4)}, v{vIA+tp} offset:{(5-group)*8192}", f"idx{group}_{tp}"))
            else:
                out.append(("lg", f"ds_read_b32 v{vI+4*tp}, v{vIA2+tp}", f"idx{group}_{tp}"))
        return out
    def addr_item(i, tp):
        comp = i % 4 if i < 24 else 0
        return ("v", f"v_mad_u32_u24 v{vGA+tp}, v{vI+4*tp+comp}, s{s80}, v{vQ}")
    def gather_item(i, tp):
        return ("lg", f"ds_read_b128 {afrag(tp)}, v{vGA+tp}", f"g{i}_{tp}")

    emit_items(idx_read_items(0))
    if not b1early: emit_items(bload(1))
    emit_items(idx_dma(1))
    for tp in range(8):
        E.wait_lg(f"idx0_{tp}")
        emit_item(addr_item(0, tp))
        if tp < 7: emit_item(gather_item(0, tp))
    emit_items(bload(2))
    e(f"s_or_b32 s{sT0}, s2, s{sW}")
    e(f"s_cmp_lg_u32 s{sT0}, 0")
    e("s_cbranch_scc1 L_NONONCE")
    e(f"s_memrealtime s[{sT2}:{sT3}]")
    e("s_waitcnt lgkmcnt(0)")
    e(f"s_or_b32 s{sT2}, s{sT2}, 0x80000000")
    e(f"v_mov_b32 v{vTmp}, s{sT2}")
    e(f"s_mov_b64 s[{sEX}:{sEX+1}], exec")
    e("s_mov_b64 exec, 1")
    e(f"buffer_store_dword v{vTmp}, v{vZ}, s[{sDBG}:{sDBG+3}], 0 offen sc1")
    e(f"s_mov_b64 exec, s[{sEX}:{sEX+1}]")
    E.lab("L_NONONCE")
    wait_both("raw1", "g0_1")

    OFF = {0: 49152, 1: 0}
    def t1_write(tp, n4):
        dd, sub = tp // 2, tp % 2
        a = aACC + ((tp - 2) * 4 + n4) * 4
        return f"ds_write_b128 v{vW+dd-1}, {ar(a,4)} offset:{OFF[sub] + n4*1024}"
    smalls = [
        ("vm", f"global_load_ushort v{vB1a}, v{vCO}, s[{P_B1}:{P_B1+1}]", "small"),
        ("vm", f"global_load_ushort v{vB1b}, v{vCO}, s[{P_B1}:{P_B1+1}] offset:128", "small"),
        ("vm", f"global_load_ushort v{vW2a}, v{vCO}, s[{P_W2}:{P_W2+1}]", "small"),
        ("vm", f"global_load_ushort v{vW2b}, v{vCO}, s[{P_W2}:{P_W2+1}] offset:128", "small"),
        ("vm", f"global_load_ushort v{vXW}, v{vXO}, s[{P_XW}:{P_XW+1}]", "small"),
        ("vm", f"global_load_ushort v{vWW}, v{vWO}, s[{P_WW}:{P_WW+1}]", "small"),
        ("vm", f"global_load_ushort v{vBW}, v{vZ}, s[{P_BW}:{P_BW+1}]", "small"),
        ("vm", f"global_load_ushort v{vB2}, v{vZ}, s[{P_B2}:{P_B2+1}]", "small"),
        ("vm", f"buffer_load_dword v{vFL}, v{vZ}, s[{sDBG}:{sDBG+3}], 0 offen sc1", "nonce"),
    ]
    small_at = {13: smalls[0:3], 15: smalls[3:6], 16: smalls[6:9]}

    idx_dma_at = {1: 2, 3: 3, 7: 4, 9: 5, 11: 6}
    idx_bar_at = {1: "idxd1", 2: "idxd3", 4: "idxd6"}
    touch_at = {0: 3, 4: 4, 8: 5, 12: 6}
    prew_steps = [4, 5, 8, 12, 13, 15, 16, 17] if prew is None else [prew + k for k in range(8)]
    def used19(i): return [19] if False else []
    for i in range(NSTEP):
        nxt = i + 1 < NSTEP
        last = not nxt
        E.c(f"---- step {i}")
        if i in stepstamps: stamp(f"s{i}")
        first = [[] for _ in range(32)]
        rest = [[] for _ in range(32)]
        order_ = list(range(8))
        if last: order_ = [2, 4, 6, 0, 1, 3, 5, 7]
        first[0].append(gather_item(i, 7))
        idxstep = nxt and (i + 1) % 4 == 3 and i + 2 < NSTEP
        if nxt:
            for k in range(1, 8): first[4 * k].append(gather_item(i + 1, k - 1))
            for k in range(8): rest[4 * k].append(addr_item(i + 1, k))
            seq = [xp(i + 1, k) for k in range(16)]
            slots = [g for g in range(32) if g % 4 in (1, 2)]
            for x, g in enumerate(slots):
                rest[g].append(seq[x][0])
                if x > 0: rest[g].append(seq[x - 1][1])
            rest[31].append(seq[15][1])
            if idxstep:
                grp2 = (i + 2) // 4 if i + 2 < 24 else 6
                its = idx_read_items(grp2)
                if grp2 in idx_bar_at:
                    rest[2].append(("wvm", idx_bar_at[grp2]))
                    rest[2].append(("s", "s_barrier"))
                for tp, it in enumerate(its): first[4 * tp + 3].append(it)
        lds_ = [3, 4] if i == 0 else ([i + R] if i + R < NSTEP else [])
        for x, j in enumerate(lds_):
            ld = bload(j)
            if idxstep: gs = (1, 9, 17, 25)
            else: gs = (3, 7, 11, 15) if x == 0 else (19, 23, 27, 30)
            if idxstep: rest[0].append(ld[0])
            elif x == 0: rest[1].append(ld[0])
            else: rest[15].append(ld[0])
            for q_, g in enumerate(gs): first[g].append(ld[1 + q_])
        if i in idx_dma_at:
            its = idx_dma(idx_dma_at[i])
            if len(its) == 8:
                rest[19] += its[0:2]; rest[23] += its[2:4]
                first[27].append(its[4]); rest[27] += its[5:7]
                first[31].append(its[7])
            else:
                rest[19] += its[0:2]; rest[23] += its[2:5]
                first[27].append(its[5])
        if i in touch_at:
            its = touch_grp(touch_at[i], vTouch + 4)
            rest[19] += its[:2]; rest[23] += its[2:-1]
            first[27 if i else 31].append(its[-1])
        if prew is not None and i in prew_steps:
            k = prew_steps.index(i)
            sub, n4 = k // 4, k % 4
            first[7 if idxstep and False else 19 if 19 not in used19(i) else 23].append(("vm", f"buffer_store_dwordx4 {vr(vGA,4)}, v{vST}, s[{sWS}:{sWS+3}], s{sSt+sub} offen offset:{n4*256} sc1", "prew"))
        if i in small_at:
            for it, g in zip(small_at[i], (19, 23, 27)): first[g].append(it)
        if not last:
            rest[15].append(("wboth", None, f"g{i}_7"))
            rest[31].append(("wboth", f"raw{i+2}" if i + 2 < NSTEP else None, f"g{i+1}_3"))
        else:
            for pos, tp in enumerate([2, 4, 6]):
                base = 4 * pos + 4 + 6
                for n4 in range(4): first[base + n4].append(("lg", t1_write(tp, n4), "t1w"))
        for m in range(32):
            tp, n4 = order_[m // 4], m % 4
            if last and m == 0: E.wait_lg(f"g{i}_6")
            if last and m == 28: E.wait_lg(f"g{i}_7")
            if i == 0 and m in (8, 12): E.wait_lg(f"g0_{m//4+1}")
            cin = "0" if i == 0 else acc(tp, n4)
            e(f"v_mfma_f32_16x16x32_bf16 {acc(tp,n4)}, {afrag(tp)}, {bfrag(i,n4)}, {cin}")
            for it in first[m]: emit_item(it)
            for it in rest[m]: emit_item(it)
    stamp("loop")
    E.c("---- T1: intra-CU reduce + publish")
    def t1_reads(sub):
        for n4 in range(4):
            for k in range(3):
                E.lg(f"ds_read_b128 {vr(vT1+32*k+16*sub+4*n4,4)}, v{vRD} offset:{OFF[sub] + k*4096+n4*1024}", f"t1r{sub}{n4}_{k}")
    def t1_sum_store(sub, n4):
        b = sub * 16 + 4 * n4
        for k in range(3):
            for h in range(2):
                e(f"v_pk_add_f32 {vr(vACC0+b+2*h,2)}, {vr(vACC0+b+2*h,2)}, {vr(vT1+32*k+b+2*h,2)}")
        E.vm(f"buffer_store_dwordx4 {vr(vACC0+b,4)}, v{vST}, s[{sWS}:{sWS+3}], s{sSt+sub} offen offset:{n4*256} sc1", f"pub{sub}")
    E.wait_all(vm=False, lg=True)
    e("s_barrier")
    t1_reads(0)
    w1 = [t1_write(tp, n4) for tp in (3, 5, 7) for n4 in range(4)]
    for n4 in range(4):
        E.wait_lg(f"t1r0{n4}_2")
        for x in range(3): E.lg(w1.pop(0), "t1w")
        t1_sum_store(0, n4)
    E.wait_all(vm=False, lg=True)
    e("s_barrier")
    t1_reads(1)
    assert "nonce" not in E.vmq and "small" not in E.vmq
    e(f"v_readfirstlane_b32 s{sT3}, v{vFL}")
    e(f"s_mov_b32 s{sCnt}, 0")
    e(f"s_mov_b32 s{sT2}, 0xffff0000")
    e("s_nop 1")
    e(f"s_cmp_lt_i32 s{sT3}, 0")
    e("s_cbranch_scc0 L_NONCE_SLOW")
    E.lab("L_NONCEOK")
    for n4 in range(4):
        E.wait_lg(f"t1r1{n4}_2")
        t1_sum_store(1, n4)
    E.wait_vm("pub0")
    E.vm(f"buffer_store_dword v{vFL}, v{vFS}, s[{sWS}:{sWS+3}], s{sFS} offen sc1", "flag0")
    stamp("T1pub")
    E.c("---- T3: poll + finish")
    vIN = vT1
    vH = vT1 + 40
    vD = vT1 + 48
    vX = vT1 + 52
    vM = vT1 + 56
    vY = vT1 + 60
    e(f"v_lshlrev_b32 v{vB1a}, 16, v{vB1a}")
    e(f"v_lshlrev_b32 v{vB1b}, 16, v{vB1b}")
    e(f"v_lshlrev_b32 v{vW2a}, 16, v{vW2a}")
    e(f"v_lshlrev_b32 v{vW2b}, 16, v{vW2b}")
    e(f"v_lshlrev_b32 v{vXW}, 16, v{vXW}")
    e(f"v_lshlrev_b32 v{vWW}, 16, v{vWW}")
    e(f"v_cmp_gt_u32 vcc, 13, v{vC}")
    e(f"v_mul_f32 v{vXW}, v{vXW}, v{vWW}")
    e(f"v_lshlrev_b32 v{vBW}, 16, v{vBW}")
    e(f"v_lshlrev_b32 v{vB2}, 16, v{vB2}")
    e(f"v_cndmask_b32 v{vXW}, 0, v{vXW}, vcc")
    e("s_nop 1")
    for sh in (1, 2, 4, 8):
        e(f"v_add_f32_dpp v{vXW}, v{vXW}, v{vXW} row_shr:{sh} row_mask:0xf bank_mask:0xf")
        e("s_nop 1")
    def rnd(r):
        e(f"v_cvt_pk_bf16_f32 v{r}, v{r}, v{r}")
        e(f"v_and_b32 v{r}, s{sT2}, v{r}")
    rnd(vXW)
    e(f"v_add_f32 v{vXW}, v{vXW}, v{vBW}")
    rnd(vXW)
    E.wait_vm("pub1")
    E.vm(f"buffer_store_dword v{vFL}, v{vFS}, s[{sWS}:{sWS+3}], s{sFS} offen offset:2048 sc1", "flag1")
    stamp("drain")
    def poll_issue(r):
        e(f"v_mov_b32 v{r}, 0")
        e(f"buffer_atomic_or v{r}, v{vIND}, s[{sWS}:{sWS+3}], s{sFP} offen sc0 sc1")
    if pipe_poll:
        poll_issue(vM + 3)
        e(f"s_sleep 4")
        E.lab("L_IND")
        poll_issue(vM + 4)
        e("s_waitcnt vmcnt(1)")
        e(f"v_cmp_ne_u32 vcc, v{vM+3}, v{vFL}")
        e("s_and_b64 vcc, vcc, 0xff")
        e("s_cbranch_vccz L_INDOK")
        poll_issue(vM + 3)
        e("s_waitcnt vmcnt(1)")
        e(f"v_cmp_ne_u32 vcc, v{vM+4}, v{vFL}")
        e("s_and_b64 vcc, vcc, 0xff")
        e("s_cbranch_vccz L_INDOK")
        e(f"s_add_u32 s{sCnt}, s{sCnt}, 1")
        e(f"s_cmp_gt_u32 s{sCnt}, 100000")
        e("s_cbranch_scc0 L_IND")
    else:
        e("s_branch L_IND1")
        E.lab("L_IND")
        e(f"s_sleep {sleep}")
        E.lab("L_IND1")
        poll_issue(vM + 3)
        e("s_waitcnt vmcnt(0)")
        e(f"v_cmp_ne_u32 vcc, v{vM+3}, v{vFL}")
        e("s_and_b64 vcc, vcc, 0xff")
        e("s_cbranch_vccz L_INDOK")
        e(f"s_add_u32 s{sCnt}, s{sCnt}, 1")
        e(f"s_cmp_gt_u32 s{sCnt}, 100000")
        e("s_cbranch_scc0 L_IND")
    E.lab("L_INDOK")
    stamp("ind")
    for k in range(8):
        so = sIn0 if k < 4 else sIn1
        e(f"buffer_load_dwordx4 {vr(vIN+4*k,4)}, v{vL16}, s[{sWS}:{sWS+3}], s{so} offen offset:{(k%4)*1024} sc1")
    E.vmq = []
    e("s_waitcnt vmcnt(4)")
    for off in (4, 8, 12):
        for h in range(2):
            a0 = vr(vIN + 2 * h, 2) if off == 4 else vr(vH + 2 * h, 2)
            e(f"v_pk_add_f32 {vr(vH+2*h,2)}, {a0}, {vr(vIN+off+2*h,2)}")
    def finish_half(nl):
        hs = [vH + 4 * nl + k for k in range(4)]
        b1 = vB1a if nl == 0 else vB1b
        for h in hs: e(f"v_cvt_pk_bf16_f32 v{h}, v{h}, v{h}")
        for h in hs: e(f"v_and_b32 v{h}, s{sT2}, v{h}")
        for h in hs: e(f"v_add_f32 v{h}, v{h}, v{b1}")
        for h in hs: e(f"v_cvt_pk_bf16_f32 v{h}, v{h}, v{h}")
        for h in hs: e(f"v_and_b32 v{h}, s{sT2}, v{h}")
        for r in range(4):
            e(f"v_cmp_lt_f32 s[{sSt+2*(r%2)}:{sSt+2*(r%2)+1}], 0, v{hs[r]}")
            if r % 2 == 1:
                e("s_nop 0")
                e(f"v_cndmask_b32 v{vY+r-1}, 0, 1.0, s[{sSt}:{sSt+1}]")
                e(f"v_cndmask_b32 v{vY+r}, 0, 1.0, s[{sSt+2}:{sSt+3}]")
        for r, h in enumerate(hs): e(f"v_mul_f32 v{h}, v{h}, v{vY+r}")
        for r, h in enumerate(hs):
            if nl == 0: e(f"v_mul_f32 v{vD+r}, v{h}, v{vW2a}")
            else: e(f"v_fmac_f32 v{vD+r}, v{h}, v{vW2b}")
    finish_half(0)
    e("s_waitcnt vmcnt(0)")
    stamp("poll")
    for off in (4, 8, 12):
        for h in range(2):
            a0 = vr(vIN + 16 + 2 * h, 2) if off == 4 else vr(vH + 4 + 2 * h, 2)
            e(f"v_pk_add_f32 {vr(vH+4+2*h,2)}, {a0}, {vr(vIN+16+off+2*h,2)}")
    finish_half(1)
    regs = [vD, vD + 1, vD + 2, vD + 3]
    for sh in (1, 2, 4, 8):
        for rg in regs: e(f"v_add_f32_dpp v{rg}, v{rg}, v{rg} row_shr:{sh} row_mask:0xf bank_mask:0xf")
    for rg in regs: e(f"v_add_f32_dpp v{rg}, v{rg}, v{rg} row_bcast:15 row_mask:0xa bank_mask:0xf")
    for rg in regs: e(f"v_add_f32_dpp v{rg}, v{rg}, v{rg} row_bcast:31 row_mask:0xc bank_mask:0xf")
    e(f"s_lshl_b32 s{sT0}, s{sW}, 4")
    e(f"s_add_u32 s{sT0}, s{sT0}, {FIN}")
    e(f"v_mov_b32 v{vX}, s{sT0}")
    e(f"s_mov_b64 s[{sEX}:{sEX+1}], exec")
    e("s_mov_b32 exec_lo, 0")
    e("s_mov_b32 exec_hi, 0x80000000")
    e(f"ds_write_b128 v{vX}, {vr(vD,4)}")
    e(f"s_mov_b64 exec, s[{sEX}:{sEX+1}]")
    e(f"v_lshlrev_b32 v{vX+1}, 2, v{vQ4}")
    e(f"v_add_u32 v{vX+1}, {FIN}, v{vX+1}")
    e("s_waitcnt lgkmcnt(0)")
    e("s_barrier")
    e(f"s_cmp_lg_u32 s{sW}, 0")
    e("s_cbranch_scc1 L_TS")
    for k in range(4): e(f"ds_read_b32 v{vD+k}, v{vX+1} offset:{16*k}")
    e("s_waitcnt lgkmcnt(0)")
    e(f"v_add_f32 v{vD}, v{vD}, v{vD+1}")
    e(f"v_add_f32 v{vD+2}, v{vD+2}, v{vD+3}")
    e(f"v_add_f32 v{vD}, v{vD}, v{vD+2}")
    rnd(vD)
    e(f"v_add_f32 v{vD}, v{vD}, v{vB2}")
    rnd(vD)
    e(f"v_add_f32 v{vD}, v{vD}, v{vXW}")
    rnd(vD)
    e(f"v_mul_f32 v{vD}, 0xbfb8aa3b, v{vD}")
    e(f"v_exp_f32 v{vD}, v{vD}")
    e("s_nop 0")
    e(f"v_add_f32 v{vD}, 1.0, v{vD}")
    e(f"v_rcp_f32 v{vD}, v{vD}")
    e("s_nop 0")
    e(f"v_cvt_pk_bf16_f32 v{vD}, v{vD}, v{vD}")
    e("s_mov_b32 exec_lo, 0x80008000")
    e("s_mov_b32 exec_hi, 0x80008000")
    e(f"buffer_store_short v{vD}, v{vOUTO}, s[{sOUT}:{sOUT+3}], 0 offen")
    e("s_mov_b64 exec, -1")
    E.lab("L_TS")
    if TS:
        stamp("end")
        srd(sWS, P_WS, 32 << 20)
        if rt:
            e(f"v_mov_b32 v{vTmp}, 16")
            e(f"v_mov_b32 v{vTmp+1}, 1")
            e("s_mov_b64 exec, 1")
            e(f"buffer_atomic_add v{vTmp+1}, v{vTmp}, s[{sDBG}:{sDBG+3}], 0 offen sc1")
            e("s_waitcnt vmcnt(0)")
            e(f"s_mov_b32 s{sCnt}, 0")
            E.lab("L_CAL")
            e(f"buffer_load_dword v{vTmp+2}, v{vTmp}, s[{sDBG}:{sDBG+3}], 0 offen sc1")
            e("s_waitcnt vmcnt(0)")
            e(f"v_readfirstlane_b32 s{sT0}, v{vTmp+2}")
            e(f"s_add_u32 s{sCnt}, s{sCnt}, 1")
            e(f"s_cmp_gt_u32 s{sCnt}, 20000")
            e("s_cbranch_scc1 L_CALOK")
            e(f"s_cmp_lt_u32 s{sT0}, 1024")
            e("s_cbranch_scc1 L_CAL")
            E.lab("L_CALOK")
            stamp("cal")
            e("s_mov_b64 exec, -1")
        n = tsn[0]
        assert sTS + 2 * n <= 98, n
        e(f"s_lshl_b32 s{sT0}, s2, 2")
        e(f"s_add_u32 s{sT0}, s{sT0}, s{sW}")
        e(f"s_lshl_b32 s{sT0}, s{sT0}, 6")
        e(f"s_add_u32 s{sT0}, s{sT0}, {16<<20}")
        e(f"v_mov_b32 v{vTmp}, 0")
        e("s_mov_b64 exec, 1")
        for k in range(n):
            if rt: e(f"s_mov_b32 s{sT1}, s{sTS+2*k}")
            else: e(f"s_sub_u32 s{sT1}, s{sTS+2*k}, s{sTS}")
            e(f"v_mov_b32 v{vTmp+1}, s{sT1}")
            e(f"buffer_store_dword v{vTmp+1}, v{vTmp}, s[{sWS}:{sWS+3}], s{sT0} offen offset:{4*k}")
    e("s_branch L_END")
    E.lab("L_NONCE_SLOW")
    e(f"buffer_load_dword v{vFL}, v{vZ}, s[{sDBG}:{sDBG+3}], 0 offen sc1")
    e("s_waitcnt vmcnt(0)")
    e(f"v_readfirstlane_b32 s{sT3}, v{vFL}")
    e(f"s_add_u32 s{sCnt}, s{sCnt}, 1")
    e("s_nop 3")
    e(f"s_cmp_gt_u32 s{sCnt}, 200000")
    e("s_cbranch_scc1 L_NONCEOK")
    e(f"s_cmp_lt_i32 s{sT3}, 0")
    e("s_cbranch_scc0 L_NONCE_SLOW")
    e("s_branch L_NONCEOK")
    E.lab("L_END")
    e("s_endpgm")
    E.lab("L_CODE_END")

    out = [HDR + f"; @launch grid=(256,1,1) block=(256,1,1) lds={LDS_TOTAL}",
           '.amdgcn_target "amdgcn-amd-amdhsa--gfx950"', ".text", f".globl {NAME}", ".p2align 8",
           f".type {NAME},@function"]
    out += E.L
    out += ['.section .rodata,"a"', ".p2align 6", f".amdhsa_kernel {NAME}",
            "  .amdhsa_next_free_vgpr 384", "  .amdhsa_next_free_sgpr 102", "  .amdhsa_accum_offset 256",
            "  .amdhsa_group_segment_fixed_size 0", "  .amdhsa_kernarg_size 96", "  .amdhsa_user_sgpr_count 2",
            "  .amdhsa_user_sgpr_kernarg_segment_ptr 1", "  .amdhsa_system_sgpr_workgroup_id_x 1",
            ".end_amdhsa_kernel"]
    return "\n".join(out) + "\n", names

if __name__ == "__main__":
    ap = argparse.ArgumentParser()
    ap.add_argument("-o", default="k.s")
    ap.add_argument("--ts", default=None)
    ap.add_argument("--steps", default="")
    ap.add_argument("--clk", action="store_true")
    ap.add_argument("--sleep", type=int, default=1)
    ap.add_argument("--tlag", type=int, default=6)
    ap.add_argument("--nopipe", action="store_true")
    ap.add_argument("--b1late", action="store_true")
    ap.add_argument("--ta2", action="store_true")
    ap.add_argument("--prew", type=int, default=None)
    ap.add_argument("--tbpos", default="after")
    a = ap.parse_args()
    st = tuple(a.ts.split(",")) if a.ts else ()
    steps = tuple(int(x) for x in a.steps.split(",") if x)
    st = st + tuple(f"s{x}" for x in steps)
    txt, names = gen(TS=a.ts is not None, stamps=st, stepstamps=steps, rt=not a.clk, sleep=a.sleep, tlag=a.tlag,
                     pipe_poll=not a.nopipe, b1early=not a.b1late, ta2=a.ta2, tbpos=a.tbpos, prew=a.prew)
    open(a.o, "w").write(txt)
    if a.ts: open(a.o.replace(".s", ".names"), "w").write(" ".join(names))
```

```python
import sys, argparse
from gen import Em, vr, ar, HDR, NAME

def gen(TS=False, stamps=(), stepstamps=(), rt=True, sleep=1, tlag=6, pipe_poll=True, b1early=True, order="A", ta2=False, tbpos="after", prew=None, shiftB=False, idxlate=False, stf="sc1", ldf="sc1", wsoff=0):
    NSTEP = 25
    R = 4
    E = Em()
    e = E.e
    OOB = 0x7ffffff0
    IDXL = 81920
    def IDXC(c): return 83968 + (5 - c) * 8192
    T1B = 51200
    FIN = T1B + 98304
    LDS_TOTAL = FIN + 64
    FLAGS = 8 << 20
    sW1, sTB, sIX, sWS = 4, 8, 12, 16
    sDBG = 20
    P_IDX, P_TBL, P_XW, P_WW, P_BW, P_W1, P_B1, P_W2, P_B2, P_OUT, P_DBG, P_WS = [24 + 2 * i for i in range(12)]
    sW = 3
    sNI, sS, sMIi, sP = 48, 49, 50, 51
    sT0, sT1, sT2, sT3 = 52, 53, 54, 55
    sBbase, sB24, sBoff = 56, 57, 58
    s80 = 59
    sX = 60
    sIn0 = 61
    sIn1 = 62
    sCnt = 63
    sOUT = 64
    sIXF = 68
    sSt = 72
    sEX = 76
    sPC = 78
    sFP, sFS = 98, 99
    sTS = 80
    vLane, vC, vQ4 = 1, 2, 3
    vB0, vB1, vQ = 4, 5, 6
    vL16 = 7
    vTmp = 8
    vB1a, vB1b, vW2a, vW2b = 14, 15, 16, 17
    vXW, vWW, vBW, vB2 = 18, 19, 20, 21
    vFL = 22
    vSel = 23
    vGA = 24
    vIA = 32
    vIA2 = 40
    vDT = 48
    vST = 52
    vW = 53
    vRD = 56
    vOUTO = 57
    vIND = 58
    vFS = 59
    vCO, vXO, vZ, vWO = 60, 61, 62, 63
    vACC0 = 64
    vBF = 96
    vI = 128
    vRAW = 160
    vT1 = 96
    vTo48, vTo16, vTo4, vIXl, vIXo, vTBo, vTBw = 239, 240, 241, 242, 243, 244, 245
    vTouch = 250
    aACC, aAF, aTB = 0, 96, 0

    def acc(tp, n):
        if tp < 2: return vr(vACC0 + (tp * 4 + n) * 4, 4)
        return ar(aACC + ((tp - 2) * 4 + n) * 4, 4)
    def afrag(tp): return ar(aAF + tp * 4, 4)
    def bfrag(i, n): return vr(vBF + (i % 2) * 16 + n * 4, 4)
    def raw(i, jj, cp=None):
        b = vRAW + 16 * (i % R) + 4 * jj
        return vr(b, 4) if cp is None else vr(b + cp)

    tsn = [0]; names = []
    def stamp(name):
        if not TS: return
        if stamps and name not in stamps and name != "cal": return
        k = tsn[0]; tsn[0] += 1
        names.append(name)
        e(f"{'s_memrealtime' if rt else 's_memtime'} s[{sTS+2*k}:{sTS+2*k+1}]")
        E.wait_all(vm=False, lg=True)
    def wait_both(vtag, ltag):
        parts = []
        if vtag is not None and vtag in E.vmq:
            idx = len(E.vmq) - 1 - E.vmq[::-1].index(vtag)
            n = len(E.vmq) - 1 - idx
            E.vmq = E.vmq[idx + 1:]
            parts.append(f"vmcnt({min(n, 63)})")
        if ltag is not None and ltag in E.lgq:
            idx = len(E.lgq) - 1 - E.lgq[::-1].index(ltag)
            n = len(E.lgq) - 1 - idx
            assert n <= 15, n
            E.lgq = E.lgq[idx + 1:]
            parts.append(f"lgkmcnt({n})")
        if parts: e("s_waitcnt " + " ".join(parts))
    def emit_item(it):
        if it is None: return
        if it[0] in ("s", "v"): e(it[1])
        elif it[0] == "vm": E.vm(it[1], it[2])
        elif it[0] == "lg": E.lg(it[1], it[2])
        elif it[0] == "wvm": E.wait_vm(it[1])
        elif it[0] == "wlg": E.wait_lg(it[1])
        elif it[0] == "wboth": wait_both(it[1], it[2])
        else: raise ValueError(it)
    def emit_items(its):
        for it in its: emit_item(it)
    def srd(d, p, nbytes, addoff=None):
        if addoff is None:
            e(f"s_mov_b32 s{d}, s{p}")
            e(f"s_and_b32 s{d+1}, s{p+1}, 0xffff")
        else:
            e(f"s_add_u32 s{d}, s{p}, s{addoff}")
            e(f"s_addc_u32 s{d+1}, s{p+1}, 0")
            e(f"s_and_b32 s{d+1}, s{d+1}, 0xffff")
        e(f"s_mov_b32 s{d+2}, {nbytes}")
        e(f"s_mov_b32 s{d+3}, 0x00020000")
    def fieldoff(i): return (16 * (i // 4) + i % 4) * 131072
    def bload(i):
        out = []
        if i < 24: out.append(("s", f"s_add_u32 s{sBoff}, s{sBbase}, {fieldoff(i)}"))
        else: out.append(("s", f"s_mov_b32 s{sBoff}, s{sB24}"))
        for jj in range(4):
            vo = vB0 if jj < 2 else vB1
            out.append(("vm", f"buffer_load_dwordx4 {raw(i,jj)}, v{vo}, s[{sW1}:{sW1+3}], s{sBoff} offen offset:{(jj%2)*2048}", f"raw{i}"))
        return out
    def idx_dma(c):
        out = []
        if c < 6:
            out.append(("s", f"s_lshl_b32 s{sT0}, s{sW}, 11"))
            out.append(("s", f"s_mul_i32 s{sT1}, s{sW}, 12800"))
            for h in range(2):
                out.append(("s", f"s_add_u32 m0, s{sT0}, {IDXC(c) + h*1024}"))
                out.append(("s", f"s_add_u32 s{sT2}, s{sT1}, {h*6400 + c*64}"))
                out.append(("vm", f"buffer_load_dwordx4 v{vIXo}, s[{sIX}:{sIX+3}], s{sT2} offen lds", f"idxd{c}"))
        else:
            out.append(("s", f"s_and_b32 s{sT0}, s{sW}, 1"))
            out.append(("s", f"s_mul_i32 s{sT1}, s{sT0}, 25600"))
            out.append(("s", f"s_lshl_b32 s{sT0}, s{sT0}, 10"))
            out.append(("s", f"s_add_u32 m0, s{sT0}, {IDXL}"))
            out.append(("s", "s_nop 0"))
            out.append(("vm", f"buffer_load_dwordx4 v{vIXl}, s[{sIX}:{sIX+3}], s{sT1} offen lds", f"idxd{c}"))
        return out
    def touch_grp(m, dst):
        out = [("s", f"s_lshl_b32 s{sT0}, s{sMIi}, 12")]
        if m < 6:
            out.append(("s", f"s_add_u32 s{sT0}, s{sT0}, s{sBbase}"))
            out.append(("s", f"s_add_u32 s{sT0}, s{sT0}, {m<<21}"))
            out.append(("vm", f"buffer_load_dword v{dst}, v{vTo16}, s[{sW1}:{sW1+3}], s{sT0} offen", "touch"))
        else:
            out.append(("s", f"s_add_u32 s{sT0}, s{sT0}, s{sB24}"))
            out.append(("vm", f"buffer_load_dword v{dst}, v{vTo4}, s[{sW1}:{sW1+3}], s{sT0} offen", "touch"))
        return out
    def xp(i, k):
        cp, jj = k // 4, k % 4
        t = vDT + (k % 4)
        return (("v", f"v_mov_b32_dpp v{t}, {raw(i, jj, cp)} row_ror:8 row_mask:0xf bank_mask:0xf"),
                ("v", f"v_perm_b32 v{vBF + (i%2)*16 + cp*4 + jj}, v{t}, {raw(i, jj, cp)}, v{vSel}"))

    E.lab(NAME)
    e("s_cmp_ge_u32 s2, 256")
    e("s_cbranch_scc1 L_END")
    e("s_load_dwordx16 s[24:39], s[0:1], 0")
    e("s_load_dwordx8 s[40:47], s[0:1], 64")
    if TS:
        e(f"{'s_memrealtime' if rt else 's_memtime'} s[{sTS}:{sTS+1}]"); tsn[0] = 1
    e(f"s_getpc_b64 s[{sPC}:{sPC+1}]")
    E.lab("L_PCREF")
    e(f"v_and_b32 v{vLane}, 63, v0")
    e(f"v_lshrrev_b32 v{vTmp}, 6, v0")
    e(f"v_and_b32 v{vC}, 15, v0")
    e(f"v_readfirstlane_b32 s{sW}, v{vTmp}")
    e(f"s_lshr_b32 s{sT0}, s2, 3")
    e(f"s_lshl_b32 s{sX}, s{sT0}, 2")
    e(f"v_mov_b32 v{vTmp+5}, 0x{OOB:x}")
    e(f"s_add_u32 s{sX}, s{sX}, s{sW}")
    e(f"v_lshlrev_b32 v{vTmp}, 14, v{vLane}")
    e(f"s_lshl_b32 s{sT1}, s{sX}, 7")
    e(f"v_add_u32 v{vTmp}, s{sT1}, v{vTmp}")
    e(f"s_mov_b32 s{sT1}, L_CODE_END-L_PCREF")
    e(f"v_cmp_gt_u32 vcc, s{sT1}, v{vTmp}")
    e(f"s_and_saveexec_b64 s[{sEX}:{sEX+1}], vcc")
    e("s_cbranch_execz L_NOCT")
    E.vm(f"global_load_dword v{vTouch}, v{vTmp}, s[{sPC}:{sPC+1}]", "touchC")
    E.lab("L_NOCT")
    e(f"s_mov_b64 exec, s[{sEX}:{sEX+1}]")
    e(f"v_lshrrev_b32 v{vQ4}, 4, v{vLane}")
    e(f"s_and_b32 s{sNI}, s2, 7")
    e(f"s_and_b32 s{sS}, s{sT0}, 3")
    e(f"s_lshr_b32 s{sMIi}, s{sT0}, 2")
    e(f"s_lshl_b32 s{sP}, s{sNI}, 2")
    e(f"s_add_u32 s{sP}, s{sP}, s{sS}")
    e(f"s_movk_i32 s{s80}, 80")
    e(f"s_lshl_b32 s{sT0}, s{sS}, 15")
    e(f"s_lshl_b32 s{sT1}, s{sNI}, 7")
    e(f"s_add_u32 s{sT0}, s{sT0}, s{sT1}")
    e(f"s_lshl_b32 s{sT1}, s{sW}, 19")
    e(f"s_add_u32 s{sBbase}, s{sT0}, s{sT1}")
    e(f"s_add_u32 s{sT1}, s{sW}, 96")
    e(f"s_lshl_b32 s{sT1}, s{sT1}, 17")
    e(f"s_add_u32 s{sB24}, s{sT0}, s{sT1}")
    e(f"v_lshlrev_b32 v{vTmp}, 7, v{vLane}")
    e(f"v_cmp_gt_u32 vcc, 16, v{vLane}")
    e(f"v_lshrrev_b32 v{vTmp+3}, 1, v{vLane}")
    e(f"v_mul_u32_u24 v{vTmp+3}, 400, v{vTmp+3}")
    e(f"v_cndmask_b32 v{vTouch+3}, v{vTmp+5}, v{vTmp}, vcc")
    e(f"v_and_b32 v{vTmp+4}, 1, v{vLane}")
    e(f"v_mul_u32_u24 v{vTmp+4}, 60, v{vTmp+4}")
    e(f"v_add_u32 v{vTmp+3}, v{vTmp+3}, v{vTmp+4}")
    e(f"v_cndmask_b32 v{vTouch+4}, v{vTmp+5}, v{vTmp+3}, vcc")
    e(f"v_lshlrev_b32 v{vTmp}, 21, v{vQ4}")
    e(f"v_bfe_u32 v{vTmp+3}, v{vLane}, 2, 2")
    e(f"v_lshl_add_u32 v{vTmp}, v{vTmp+3}, 17, v{vTmp}")
    e(f"v_and_b32 v{vTmp+3}, 3, v{vLane}")
    e(f"v_lshl_add_u32 v{vTmp}, v{vTmp+3}, 10, v{vTmp}")
    e(f"v_bfe_u32 v{vTmp+2}, v0, 3, 1")
    e(f"v_cndmask_b32 v{vTo16}, v{vTmp+5}, v{vTmp}, vcc")
    e(f"v_cmp_gt_u32 vcc, 48, v{vLane}")
    e(f"v_lshlrev_b32 v{vB0}, 13, v{vQ4}")
    e(f"v_lshl_add_u32 v{vB0}, v{vTmp+2}, 10, v{vB0}")
    e(f"v_cndmask_b32 v{vTo48}, v{vTmp+5}, v{vTmp}, vcc")
    e(f"v_cmp_gt_u32 vcc, 4, v{vLane}")
    e(f"v_and_b32 v{vTmp+1}, 7, v0")
    e(f"v_lshl_add_u32 v{vB0}, v{vTmp+1}, 4, v{vB0}")
    e(f"v_cndmask_b32 v{vTo4}, v{vTmp+5}, v{vTmp}, vcc")
    e(f"v_add_u32 v{vB1}, 0x1000, v{vB0}")
    e(f"v_lshrrev_b32 v{vTmp}, 2, v{vLane}")
    e(f"v_and_b32 v{vTmp+1}, 3, v{vLane}")
    e(f"v_lshlrev_b32 v{vTmp+1}, 4, v{vTmp+1}")
    e(f"v_lshl_add_u32 v{vTBo}, v{vTmp}, 8, v{vTmp+1}")
    e(f"v_mad_u32_u24 v{vTBw}, v{vTmp}, s{s80}, v{vTmp+1}")
    e(f"s_mul_i32 s{sT0}, s{sW}, 20480")
    e(f"v_add_u32 v{vTBw}, s{sT0}, v{vTBw}")
    e(f"s_movk_i32 s{sT1}, 400")
    e(f"v_mul_u32_u24 v{vIXo}, s{sT1}, v{vTmp}")
    e(f"v_and_b32 v{vTmp+1}, 3, v{vLane}")
    e(f"v_xor_b32 v{vTmp}, v{vQ4}, v{vTmp+1}")
    e(f"v_lshl_add_u32 v{vIXo}, v{vTmp}, 4, v{vIXo}")
    e(f"v_mul_u32_u24 v{vIXl}, s{sT1}, v{vLane}")
    e(f"v_add_u32 v{vIXl}, 384, v{vIXl}")
    e("s_waitcnt lgkmcnt(0)")
    stamp("kernarg")
    srd(sTB, P_TBL, 256000)
    srd(sIXF, P_IDX, 409600)
    e(f"s_lshl_b32 s{sT0}, s{sX}, 11")
    E.vm(f"buffer_load_dword v{vTouch}, v{vTouch+3}, s[{sTB}:{sTB+3}], s{sT0} offen", "touchA")
    e(f"s_mul_i32 s{sT0}, s{sX}, 3200")
    E.vm(f"buffer_load_dword v{vTouch+1}, v{vTouch+4}, s[{sIXF}:{sIXF+3}], s{sT0} offen", "touchA")
    srd(sW1, P_W1, 13107200)
    if ta2:
        e(f"s_lshl_b32 s{sT0}, s{sMIi}, 12")
        e(f"s_add_u32 s{sT0}, s{sT0}, s{sBbase}")
        E.vm(f"buffer_load_dword v{vTouch+2}, v{vTo16}, s[{sW1}:{sW1+3}], s{sT0} offen", "touchA")
    emit_items(bload(0))
    e(f"s_mul_i32 s{sT3}, s{sMIi}, 51200")
    srd(sIX, P_IDX, 51200, addoff=sT3)
    emit_items(idx_dma(0))
    consts = []
    C = consts.append
    C(f"v_mov_b32 v{vSel}, 0x05040100")
    C(f"v_mov_b32 v{vTmp+3}, 0x03020706")
    C(f"v_cmp_eq_u32 vcc, 1, v{vTmp+2}")
    C(f"v_lshlrev_b32 v{vQ}, 4, v{vQ4}")
    C(f"v_lshlrev_b32 v{vL16}, 4, v{vLane}")
    C(f"v_cndmask_b32 v{vSel}, v{vSel}, v{vTmp+3}, vcc")
    C(f"v_bfe_u32 v{vTmp}, v{vC}, 2, 2")
    C(f"v_xor_b32 v{vTmp}, s{sW}, v{vTmp}")
    C(f"v_lshlrev_b32 v{vTmp}, 4, v{vTmp}")
    C(f"v_lshl_add_u32 v{vTmp}, v{vC}, 6, v{vTmp}")
    C(f"v_lshlrev_b32 v{vTmp+1}, 4, v{vC}")
    C(f"s_lshl_b32 s{sT0}, s{sW}, 1")
    C(f"s_lshl_b32 s{sT2}, s{sW}, 2")
    for tp in range(8):
        C(f"s_add_u32 s{sSt}, s{sT0}, {tp}")
        C(f"s_and_b32 s{sSt}, s{sSt}, 7")
        C(f"s_lshl_b32 s{sT3}, s{sSt}, 10")
        C(f"s_add_u32 s{sT3}, s{sT3}, {IDXC(5)}")
        C(f"v_add_u32 v{vIA+tp}, s{sT3}, v{vTmp}")
        C(f"s_lshl_b32 s{sT3}, s{sSt}, 8")
        C(f"s_add_u32 s{sT3}, s{sT3}, s{sT2}")
        C(f"s_add_u32 s{sT3}, s{sT3}, {IDXL}")
        C(f"v_add_u32 v{vIA2+tp}, s{sT3}, v{vTmp+1}")
    for dd in range(1, 4):
        C(f"s_add_u32 s{sT0}, s{sW}, {dd}")
        C(f"s_and_b32 s{sT0}, s{sT0}, 3")
        C(f"s_mul_i32 s{sT0}, s{sT0}, 12288")
        C(f"s_add_u32 s{sT0}, s{sT0}, {T1B + (dd-1)*4096}")
        C(f"v_add_u32 v{vW+dd-1}, s{sT0}, v{vL16}")
    C(f"s_mul_i32 s{sT0}, s{sW}, 12288")
    C(f"s_add_u32 s{sT0}, s{sT0}, {T1B}")
    C(f"v_add_u32 v{vRD}, s{sT0}, v{vL16}")
    C(f"s_lshl_b32 s{sT0}, s{sMIi}, 5")
    C(f"v_lshlrev_b32 v{vST}, 15, v{vQ4}")
    C(f"v_lshl_add_u32 v{vST}, v{vC}, 4, v{vST}")
    C(f"s_lshl_b32 s{sT2}, s{sW}, 3")
    C(f"s_add_u32 s{sT2}, s{sT0}, s{sT2}")
    C(f"s_lshl_b32 s{sT3}, s{sT2}, 15")
    C(f"s_lshl_b32 s{sSt}, s{sP}, 10")
    C(f"s_add_u32 s{sSt}, s{sSt}, s{sT3}")
    C(f"s_add_u32 s{sSt+1}, s{sSt}, {4*32768}")
    C(f"s_lshl_b32 s{sT2}, s{sT2}, 9")
    C(f"s_lshr_b32 s{sT3}, s{sP}, 3")
    C(f"s_lshl_b32 s{sT3}, s{sT3}, 7")
    C(f"s_add_u32 s{sT2}, s{sT2}, s{sT3}")
    C(f"s_and_b32 s{sT3}, s{sP}, 7")
    C(f"s_lshl_b32 s{sT3}, s{sT3}, 2")
    C(f"s_add_u32 s{sT2}, s{sT2}, s{sT3}")
    C(f"s_add_u32 s{sFS}, s{sT2}, {FLAGS}")
    C(f"s_add_u32 s{sT2}, s{sT0}, s{sP}")
    C(f"s_lshl_b32 s{sT3}, s{sT2}, 15")
    C(f"s_lshl_b32 s{sIn0}, s{sW}, 13")
    C(f"s_add_u32 s{sIn0}, s{sIn0}, s{sT3}")
    C(f"s_add_u32 s{sIn1}, s{sIn0}, 4096")
    C(f"s_lshl_b32 s{sT3}, s{sT2}, 2")
    C(f"s_add_u32 s{sT3}, s{sT3}, s{sW}")
    C(f"s_lshl_b32 s{sT3}, s{sT3}, 7")
    C(f"s_add_u32 s{sFP}, s{sT3}, {FLAGS}")
    C(f"v_cmp_gt_u32 vcc, 8, v{vLane}")
    C(f"v_lshlrev_b32 v{vIND}, 2, v{vLane}")
    C(f"v_lshlrev_b32 v{vFS}, 9, v{vLane}")
    C(f"v_cndmask_b32 v{vIND}, v{vTmp+5}, v{vIND}, vcc")
    C(f"v_cmp_gt_u32 vcc, 4, v{vLane}")
    C(f"v_and_b32 v{vCO}, 7, v{vLane}")
    C(f"v_lshlrev_b32 v{vCO}, 3, v{vCO}")
    C(f"v_cndmask_b32 v{vFS}, v{vTmp+5}, v{vFS}, vcc")
    C(f"v_lshl_add_u32 v{vCO}, v{vQ4}, 1, v{vCO}")
    C(f"v_add_u32 v{vCO}, v{vCO}, v{vTmp+2}")
    C(f"s_lshl_b32 s{sT3}, s{sW}, 7")
    C(f"v_add_u32 v{vCO}, s{sT3}, v{vCO}")
    C(f"v_lshlrev_b32 v{vCO}, 1, v{vCO}")
    C(f"s_lshl_b32 s{sT0}, s{sMIi}, 7")
    C(f"s_lshl_b32 s{sT3}, s{sP}, 2")
    C(f"s_add_u32 s{sT0}, s{sT0}, s{sT3}")
    C(f"v_add_u32 v{vXO}, s{sT0}, v{vQ4}")
    C(f"v_lshlrev_b32 v{vOUTO}, 1, v{vXO}")
    C(f"v_mul_u32_u24 v{vXO}, 13, v{vXO}")
    C(f"v_min_u32 v{vWO}, 12, v{vC}")
    C(f"v_add_u32 v{vXO}, v{vXO}, v{vWO}")
    C(f"v_lshlrev_b32 v{vXO}, 1, v{vXO}")
    C(f"v_lshlrev_b32 v{vWO}, 1, v{vWO}")
    C(f"v_mov_b32 v{vZ}, 0")
    e(f"s_lshl_b32 s{sT1}, s{sW}, 16")
    e(f"s_lshl_b32 s{sSt+1}, s{sS}, 6")
    e(f"s_add_u32 s{sT1}, s{sT1}, s{sSt+1}")
    LAG = tlag
    per = -(-len(consts) // 14)
    for n in range(16):
        if n > 0: e(f"s_add_u32 s{sT1}, s{sT1}, 4096")
        E.vm(f"buffer_load_dwordx4 {ar(aTB+4*n,4)}, v{vTBo}, s[{sTB}:{sTB+3}], s{sT1} offen", f"tbl{n}")
        for _ in range(per):
            if consts: e(consts.pop(0))
        if tbpos == "mid" and n == 7:
            e(f"s_lshl_b32 s{sCnt}, s{sMIi}, 12")
            e(f"s_add_u32 s{sCnt}, s{sCnt}, s{sBbase}")
            if shiftB: e(f"s_add_u32 s{sCnt}, s{sCnt}, {1<<21}")
            E.vm(f"buffer_load_dword v{vTouch+2}, v{vTo48}, s[{sW1}:{sW1+3}], s{sCnt} offen", "touchB")
        if n >= LAG:
            E.wait_vm(f"tbl{n-LAG}")
            E.lg(f"ds_write_b128 v{vTBw}, {ar(aTB+4*(n-LAG),4)} offset:{(n-LAG)*1280}", "tblw")
    while consts: e(consts.pop(0))
    stamp("tbliss")
    if b1early:
        emit_items(bload(1))
    if tbpos == "after":
        e(f"s_lshl_b32 s{sT0}, s{sMIi}, 12")
        e(f"s_add_u32 s{sT0}, s{sT0}, s{sBbase}")
        E.vm(f"buffer_load_dword v{vTouch+2}, v{vTo48}, s[{sW1}:{sW1+3}], s{sT0} offen", "touchB")
    E.wait_vm("raw0")
    for k in range(16):
        d, p = xp(0, k)
        emit_item(d); emit_item(p)
        if k % 3 == 2 and (16 - LAG + k // 3) < 16:
            n = 16 - LAG + k // 3
            E.wait_vm(f"tbl{n}")
            E.lg(f"ds_write_b128 v{vTBw}, {ar(aTB+4*n,4)} offset:{n*1280}", "tblw")
    for n in range(16 - LAG, 16):
        if f"tbl{n}" in E.vmq:
            E.wait_vm(f"tbl{n}")
            E.lg(f"ds_write_b128 v{vTBw}, {ar(aTB+4*n,4)} offset:{n*1280}", "tblw")
    if wsoff:
        e(f"s_mov_b32 s{sT0}, {wsoff}")
        srd(sWS, P_WS, (9 << 20), addoff=sT0)
    else:
        srd(sWS, P_WS, (9 << 20))
    srd(sDBG, P_DBG, 256)
    srd(sOUT, P_OUT, 2048)
    E.wait_vm("idxd0")
    E.wait_all(vm=False, lg=True)
    e("s_barrier")
    stamp("barrier1")

    def idx_read_items(group):
        out = []
        for tp in range(8):
            if group < 6:
                out.append(("lg", f"ds_read_b128 {vr(vI+4*tp,4)}, v{vIA+tp} offset:{(5-group)*8192}", f"idx{group}_{tp}"))
            else:
                out.append(("lg", f"ds_read_b32 v{vI+4*tp}, v{vIA2+tp}", f"idx{group}_{tp}"))
        return out
    def addr_item(i, tp):
        comp = i % 4 if i < 24 else 0
        return ("v", f"v_mad_u32_u24 v{vGA+tp}, v{vI+4*tp+comp}, s{s80}, v{vQ}")
    def gather_item(i, tp):
        return ("lg", f"ds_read_b128 {afrag(tp)}, v{vGA+tp}", f"g{i}_{tp}")

    emit_items(idx_read_items(0))
    if not b1early: emit_items(bload(1))
    emit_items(idx_dma(1))
    for tp in range(8):
        E.wait_lg(f"idx0_{tp}")
        emit_item(addr_item(0, tp))
        if tp < 7: emit_item(gather_item(0, tp))
    emit_items(bload(2))
    e(f"s_or_b32 s{sT0}, s2, s{sW}")
    e(f"s_cmp_lg_u32 s{sT0}, 0")
    e("s_cbranch_scc1 L_NONONCE")
    e(f"s_memrealtime s[{sT2}:{sT3}]")
    e("s_waitcnt lgkmcnt(0)")
    e(f"s_or_b32 s{sT2}, s{sT2}, 0x80000000")
    e(f"v_mov_b32 v{vTmp}, s{sT2}")
    e(f"s_mov_b64 s[{sEX}:{sEX+1}], exec")
    e("s_mov_b64 exec, 1")
    e(f"buffer_store_dword v{vTmp}, v{vZ}, s[{sDBG}:{sDBG+3}], 0 offen sc1")
    e(f"s_mov_b64 exec, s[{sEX}:{sEX+1}]")
    E.lab("L_NONONCE")
    wait_both("raw1", "g0_1")

    OFF = {0: 49152, 1: 0}
    def t1_write(tp, n4):
        dd, sub = tp // 2, tp % 2
        a = aACC + ((tp - 2) * 4 + n4) * 4
        return f"ds_write_b128 v{vW+dd-1}, {ar(a,4)} offset:{OFF[sub] + n4*1024}"
    smalls = [
        ("vm", f"global_load_ushort v{vB1a}, v{vCO}, s[{P_B1}:{P_B1+1}]", "small"),
        ("vm", f"global_load_ushort v{vB1b}, v{vCO}, s[{P_B1}:{P_B1+1}] offset:128", "small"),
        ("vm", f"global_load_ushort v{vW2a}, v{vCO}, s[{P_W2}:{P_W2+1}]", "small"),
        ("vm", f"global_load_ushort v{vW2b}, v{vCO}, s[{P_W2}:{P_W2+1}] offset:128", "small"),
        ("vm", f"global_load_ushort v{vXW}, v{vXO}, s[{P_XW}:{P_XW+1}]", "small"),
        ("vm", f"global_load_ushort v{vWW}, v{vWO}, s[{P_WW}:{P_WW+1}]", "small"),
        ("vm", f"global_load_ushort v{vBW}, v{vZ}, s[{P_BW}:{P_BW+1}]", "small"),
        ("vm", f"global_load_ushort v{vB2}, v{vZ}, s[{P_B2}:{P_B2+1}]", "small"),
        ("vm", f"buffer_load_dword v{vFL}, v{vZ}, s[{sDBG}:{sDBG+3}], 0 offen sc1", "nonce"),
    ]
    small_at = {13: smalls[0:3], 15: smalls[3:6], 16: smalls[6:9]}

    idx_dma_at = {1: 2, 3: 3, 7: 4, 9: 5, 11: 6}
    idx_bar_at = {1: "idxd1", 2: "idxd3", 4: "idxd6"}
    touch_at = {0: 3, 4: 4, 8: 5, 12: 6}
    if shiftB: touch_at = {0: 4, 4: 5, 8: 6}
    if idxlate:
        idx_dma_at = {3: 2, 5: 3, 7: 4, 9: 5, 11: 6}
        idx_bar_at = {1: "idxd1", 2: "idxd2", 3: "idxd3", 4: "idxd6"}
    prew_steps = [4, 5, 8, 12, 13, 15, 16, 17] if prew is None else [prew + k for k in range(8)]
    def used19(i): return [19] if False else []
    for i in range(NSTEP):
        nxt = i + 1 < NSTEP
        last = not nxt
        E.c(f"---- step {i}")
        if i in stepstamps: stamp(f"s{i}")
        first = [[] for _ in range(32)]
        rest = [[] for _ in range(32)]
        order_ = list(range(8))
        if last: order_ = [2, 4, 6, 0, 1, 3, 5, 7]
        first[0].append(gather_item(i, 7))
        idxstep = nxt and (i + 1) % 4 == 3 and i + 2 < NSTEP
        if nxt:
            for k in range(1, 8): first[4 * k].append(gather_item(i + 1, k - 1))
            for k in range(8): rest[4 * k].append(addr_item(i + 1, k))
            seq = [xp(i + 1, k) for k in range(16)]
            slots = [g for g in range(32) if g % 4 in (1, 2)]
            for x, g in enumerate(slots):
                rest[g].append(seq[x][0])
                if x > 0: rest[g].append(seq[x - 1][1])
            rest[31].append(seq[15][1])
            if idxstep:
                grp2 = (i + 2) // 4 if i + 2 < 24 else 6
                its = idx_read_items(grp2)
                if grp2 in idx_bar_at:
                    rest[2].append(("wvm", idx_bar_at[grp2]))
                    rest[2].append(("s", "s_barrier"))
                for tp, it in enumerate(its): first[4 * tp + 3].append(it)
        lds_ = [3, 4] if i == 0 else ([i + R] if i + R < NSTEP else [])
        for x, j in enumerate(lds_):
            ld = bload(j)
            if idxstep: gs = (1, 9, 17, 25)
            else: gs = (3, 7, 11, 15) if x == 0 else (19, 23, 27, 30)
            if idxstep: rest[0].append(ld[0])
            elif x == 0: rest[1].append(ld[0])
            else: rest[15].append(ld[0])
            for q_, g in enumerate(gs): first[g].append(ld[1 + q_])
        if i in idx_dma_at:
            its = idx_dma(idx_dma_at[i])
            if len(its) == 8:
                rest[19] += its[0:2]; rest[23] += its[2:4]
                first[27].append(its[4]); rest[27] += its[5:7]
                first[31].append(its[7])
            else:
                rest[19] += its[0:2]; rest[23] += its[2:5]
                first[27].append(its[5])
        if i in touch_at:
            its = touch_grp(touch_at[i], vTouch + 4)
            rest[19] += its[:2]; rest[23] += its[2:-1]
            first[27 if i else 31].append(its[-1])
        if prew is not None and i in prew_steps:
            k = prew_steps.index(i)
            sub, n4 = k // 4, k % 4
            first[7 if idxstep and False else 19 if 19 not in used19(i) else 23].append(("vm", f"buffer_store_dwordx4 {vr(vGA,4)}, v{vST}, s[{sWS}:{sWS+3}], s{sSt+sub} offen offset:{n4*256} sc1", "prew"))
        if i in small_at:
            for it, g in zip(small_at[i], (19, 23, 27)): first[g].append(it)
        if not last:
            rest[15].append(("wboth", None, f"g{i}_7"))
            rest[31].append(("wboth", f"raw{i+2}" if i + 2 < NSTEP else None, f"g{i+1}_3"))
        else:
            for pos, tp in enumerate([2, 4, 6]):
                base = 4 * pos + 4 + 6
                for n4 in range(4): first[base + n4].append(("lg", t1_write(tp, n4), "t1w"))
        for m in range(32):
            tp, n4 = order_[m // 4], m % 4
            if last and m == 0: E.wait_lg(f"g{i}_6")
            if last and m == 28: E.wait_lg(f"g{i}_7")
            if i == 0 and m in (8, 12): E.wait_lg(f"g0_{m//4+1}")
            cin = "0" if i == 0 else acc(tp, n4)
            e(f"v_mfma_f32_16x16x32_bf16 {acc(tp,n4)}, {afrag(tp)}, {bfrag(i,n4)}, {cin}")
            for it in first[m]: emit_item(it)
            for it in rest[m]: emit_item(it)
    stamp("loop")
    E.c("---- T1: intra-CU reduce + publish")
    def t1_reads(sub):
        for n4 in range(4):
            for k in range(3):
                E.lg(f"ds_read_b128 {vr(vT1+32*k+16*sub+4*n4,4)}, v{vRD} offset:{OFF[sub] + k*4096+n4*1024}", f"t1r{sub}{n4}_{k}")
    def t1_sum_store(sub, n4):
        b = sub * 16 + 4 * n4
        for k in range(3):
            for h in range(2):
                e(f"v_pk_add_f32 {vr(vACC0+b+2*h,2)}, {vr(vACC0+b+2*h,2)}, {vr(vT1+32*k+b+2*h,2)}")
        E.vm(f"buffer_store_dwordx4 {vr(vACC0+b,4)}, v{vST}, s[{sWS}:{sWS+3}], s{sSt+sub} offen offset:{n4*256} {stf}", f"pub{sub}")
    E.wait_all(vm=False, lg=True)
    e("s_barrier")
    t1_reads(0)
    w1 = [t1_write(tp, n4) for tp in (3, 5, 7) for n4 in range(4)]
    for n4 in range(4):
        E.wait_lg(f"t1r0{n4}_2")
        for x in range(3): E.lg(w1.pop(0), "t1w")
        t1_sum_store(0, n4)
    E.wait_all(vm=False, lg=True)
    e("s_barrier")
    t1_reads(1)
    assert "nonce" not in E.vmq and "small" not in E.vmq
    e(f"v_readfirstlane_b32 s{sT3}, v{vFL}")
    e(f"s_mov_b32 s{sCnt}, 0")
    e(f"s_mov_b32 s{sT2}, 0xffff0000")
    e("s_nop 1")
    e(f"s_cmp_lt_i32 s{sT3}, 0")
    e("s_cbranch_scc0 L_NONCE_SLOW")
    E.lab("L_NONCEOK")
    for n4 in range(4):
        E.wait_lg(f"t1r1{n4}_2")
        t1_sum_store(1, n4)
    E.wait_vm("pub0")
    E.vm(f"buffer_store_dword v{vFL}, v{vFS}, s[{sWS}:{sWS+3}], s{sFS} offen sc1", "flag0")
    stamp("T1pub")
    E.c("---- T3: poll + finish")
    vIN = vT1
    vH = vT1 + 40
    vD = vT1 + 48
    vX = vT1 + 52
    vM = vT1 + 56
    vY = vT1 + 60
    e(f"v_lshlrev_b32 v{vB1a}, 16, v{vB1a}")
    e(f"v_lshlrev_b32 v{vB1b}, 16, v{vB1b}")
    e(f"v_lshlrev_b32 v{vW2a}, 16, v{vW2a}")
    e(f"v_lshlrev_b32 v{vW2b}, 16, v{vW2b}")
    e(f"v_lshlrev_b32 v{vXW}, 16, v{vXW}")
    e(f"v_lshlrev_b32 v{vWW}, 16, v{vWW}")
    e(f"v_cmp_gt_u32 vcc, 13, v{vC}")
    e(f"v_mul_f32 v{vXW}, v{vXW}, v{vWW}")
    e(f"v_lshlrev_b32 v{vBW}, 16, v{vBW}")
    e(f"v_lshlrev_b32 v{vB2}, 16, v{vB2}")
    e(f"v_cndmask_b32 v{vXW}, 0, v{vXW}, vcc")
    e("s_nop 1")
    for sh in (1, 2, 4, 8):
        e(f"v_add_f32_dpp v{vXW}, v{vXW}, v{vXW} row_shr:{sh} row_mask:0xf bank_mask:0xf")
        e("s_nop 1")
    def rnd(r):
        e(f"v_cvt_pk_bf16_f32 v{r}, v{r}, v{r}")
        e(f"v_and_b32 v{r}, s{sT2}, v{r}")
    rnd(vXW)
    e(f"v_add_f32 v{vXW}, v{vXW}, v{vBW}")
    rnd(vXW)
    E.wait_vm("pub1")
    E.vm(f"buffer_store_dword v{vFL}, v{vFS}, s[{sWS}:{sWS+3}], s{sFS} offen offset:2048 sc1", "flag1")
    stamp("drain")
    def poll_issue(r):
        e(f"v_mov_b32 v{r}, 0")
        e(f"buffer_atomic_or v{r}, v{vIND}, s[{sWS}:{sWS+3}], s{sFP} offen sc0 sc1")
    if pipe_poll:
        poll_issue(vM + 3)
        e(f"s_sleep 4")
        E.lab("L_IND")
        poll_issue(vM + 4)
        e("s_waitcnt vmcnt(1)")
        e(f"v_cmp_ne_u32 vcc, v{vM+3}, v{vFL}")
        e("s_and_b64 vcc, vcc, 0xff")
        e("s_cbranch_vccz L_INDOK")
        poll_issue(vM + 3)
        e("s_waitcnt vmcnt(1)")
        e(f"v_cmp_ne_u32 vcc, v{vM+4}, v{vFL}")
        e("s_and_b64 vcc, vcc, 0xff")
        e("s_cbranch_vccz L_INDOK")
        e(f"s_add_u32 s{sCnt}, s{sCnt}, 1")
        e(f"s_cmp_gt_u32 s{sCnt}, 100000")
        e("s_cbranch_scc0 L_IND")
    else:
        e("s_branch L_IND1")
        E.lab("L_IND")
        e(f"s_sleep {sleep}")
        E.lab("L_IND1")
        poll_issue(vM + 3)
        e("s_waitcnt vmcnt(0)")
        e(f"v_cmp_ne_u32 vcc, v{vM+3}, v{vFL}")
        e("s_and_b64 vcc, vcc, 0xff")
        e("s_cbranch_vccz L_INDOK")
        e(f"s_add_u32 s{sCnt}, s{sCnt}, 1")
        e(f"s_cmp_gt_u32 s{sCnt}, 100000")
        e("s_cbranch_scc0 L_IND")
    E.lab("L_INDOK")
    stamp("ind")
    for k in range(8):
        so = sIn0 if k < 4 else sIn1
        e(f"buffer_load_dwordx4 {vr(vIN+4*k,4)}, v{vL16}, s[{sWS}:{sWS+3}], s{so} offen offset:{(k%4)*1024} {ldf}")
    E.vmq = []
    e("s_waitcnt vmcnt(4)")
    for off in (4, 8, 12):
        for h in range(2):
            a0 = vr(vIN + 2 * h, 2) if off == 4 else vr(vH + 2 * h, 2)
            e(f"v_pk_add_f32 {vr(vH+2*h,2)}, {a0}, {vr(vIN+off+2*h,2)}")
    def finish_half(nl):
        hs = [vH + 4 * nl + k for k in range(4)]
        b1 = vB1a if nl == 0 else vB1b
        for h in hs: e(f"v_cvt_pk_bf16_f32 v{h}, v{h}, v{h}")
        for h in hs: e(f"v_and_b32 v{h}, s{sT2}, v{h}")
        for h in hs: e(f"v_add_f32 v{h}, v{h}, v{b1}")
        for h in hs: e(f"v_cvt_pk_bf16_f32 v{h}, v{h}, v{h}")
        for h in hs: e(f"v_and_b32 v{h}, s{sT2}, v{h}")
        for r in range(4):
            e(f"v_cmp_lt_f32 s[{sSt+2*(r%2)}:{sSt+2*(r%2)+1}], 0, v{hs[r]}")
            if r % 2 == 1:
                e("s_nop 0")
                e(f"v_cndmask_b32 v{vY+r-1}, 0, 1.0, s[{sSt}:{sSt+1}]")
                e(f"v_cndmask_b32 v{vY+r}, 0, 1.0, s[{sSt+2}:{sSt+3}]")
        for r, h in enumerate(hs): e(f"v_mul_f32 v{h}, v{h}, v{vY+r}")
        for r, h in enumerate(hs):
            if nl == 0: e(f"v_mul_f32 v{vD+r}, v{h}, v{vW2a}")
            else: e(f"v_fmac_f32 v{vD+r}, v{h}, v{vW2b}")
    finish_half(0)
    e("s_waitcnt vmcnt(0)")
    stamp("poll")
    for off in (4, 8, 12):
        for h in range(2):
            a0 = vr(vIN + 16 + 2 * h, 2) if off == 4 else vr(vH + 4 + 2 * h, 2)
            e(f"v_pk_add_f32 {vr(vH+4+2*h,2)}, {a0}, {vr(vIN+16+off+2*h,2)}")
    finish_half(1)
    regs = [vD, vD + 1, vD + 2, vD + 3]
    for sh in (1, 2, 4, 8):
        for rg in regs: e(f"v_add_f32_dpp v{rg}, v{rg}, v{rg} row_shr:{sh} row_mask:0xf bank_mask:0xf")
    for rg in regs: e(f"v_add_f32_dpp v{rg}, v{rg}, v{rg} row_bcast:15 row_mask:0xa bank_mask:0xf")
    for rg in regs: e(f"v_add_f32_dpp v{rg}, v{rg}, v{rg} row_bcast:31 row_mask:0xc bank_mask:0xf")
    e(f"s_lshl_b32 s{sT0}, s{sW}, 4")
    e(f"s_add_u32 s{sT0}, s{sT0}, {FIN}")
    e(f"v_mov_b32 v{vX}, s{sT0}")
    e(f"s_mov_b64 s[{sEX}:{sEX+1}], exec")
    e("s_mov_b32 exec_lo, 0")
    e("s_mov_b32 exec_hi, 0x80000000")
    e(f"ds_write_b128 v{vX}, {vr(vD,4)}")
    e(f"s_mov_b64 exec, s[{sEX}:{sEX+1}]")
    e(f"v_lshlrev_b32 v{vX+1}, 2, v{vQ4}")
    e(f"v_add_u32 v{vX+1}, {FIN}, v{vX+1}")
    e("s_waitcnt lgkmcnt(0)")
    e("s_barrier")
    e(f"s_cmp_lg_u32 s{sW}, 0")
    e("s_cbranch_scc1 L_TS")
    for k in range(4): e(f"ds_read_b32 v{vD+k}, v{vX+1} offset:{16*k}")
    e("s_waitcnt lgkmcnt(0)")
    e(f"v_add_f32 v{vD}, v{vD}, v{vD+1}")
    e(f"v_add_f32 v{vD+2}, v{vD+2}, v{vD+3}")
    e(f"v_add_f32 v{vD}, v{vD}, v{vD+2}")
    rnd(vD)
    e(f"v_add_f32 v{vD}, v{vD}, v{vB2}")
    rnd(vD)
    e(f"v_add_f32 v{vD}, v{vD}, v{vXW}")
    rnd(vD)
    e(f"v_mul_f32 v{vD}, 0xbfb8aa3b, v{vD}")
    e(f"v_exp_f32 v{vD}, v{vD}")
    e("s_nop 0")
    e(f"v_add_f32 v{vD}, 1.0, v{vD}")
    e(f"v_rcp_f32 v{vD}, v{vD}")
    e("s_nop 0")
    e(f"v_cvt_pk_bf16_f32 v{vD}, v{vD}, v{vD}")
    e("s_mov_b32 exec_lo, 0x80008000")
    e("s_mov_b32 exec_hi, 0x80008000")
    e(f"buffer_store_short v{vD}, v{vOUTO}, s[{sOUT}:{sOUT+3}], 0 offen")
    e("s_mov_b64 exec, -1")
    E.lab("L_TS")
    if TS:
        stamp("end")
        srd(sWS, P_WS, 32 << 20)
        if rt:
            e(f"v_mov_b32 v{vTmp}, 16")
            e(f"v_mov_b32 v{vTmp+1}, 1")
            e("s_mov_b64 exec, 1")
            e(f"buffer_atomic_add v{vTmp+1}, v{vTmp}, s[{sDBG}:{sDBG+3}], 0 offen sc1")
            e("s_waitcnt vmcnt(0)")
            e(f"s_mov_b32 s{sCnt}, 0")
            E.lab("L_CAL")
            e(f"buffer_load_dword v{vTmp+2}, v{vTmp}, s[{sDBG}:{sDBG+3}], 0 offen sc1")
            e("s_waitcnt vmcnt(0)")
            e(f"v_readfirstlane_b32 s{sT0}, v{vTmp+2}")
            e(f"s_add_u32 s{sCnt}, s{sCnt}, 1")
            e(f"s_cmp_gt_u32 s{sCnt}, 20000")
            e("s_cbranch_scc1 L_CALOK")
            e(f"s_cmp_lt_u32 s{sT0}, 1024")
            e("s_cbranch_scc1 L_CAL")
            E.lab("L_CALOK")
            stamp("cal")
            e("s_mov_b64 exec, -1")
        n = tsn[0]
        assert sTS + 2 * n <= 98, n
        e(f"s_lshl_b32 s{sT0}, s2, 2")
        e(f"s_add_u32 s{sT0}, s{sT0}, s{sW}")
        e(f"s_lshl_b32 s{sT0}, s{sT0}, 6")
        e(f"s_add_u32 s{sT0}, s{sT0}, {16<<20}")
        e(f"v_mov_b32 v{vTmp}, 0")
        e("s_mov_b64 exec, 1")
        for k in range(n):
            if rt: e(f"s_mov_b32 s{sT1}, s{sTS+2*k}")
            else: e(f"s_sub_u32 s{sT1}, s{sTS+2*k}, s{sTS}")
            e(f"v_mov_b32 v{vTmp+1}, s{sT1}")
            e(f"buffer_store_dword v{vTmp+1}, v{vTmp}, s[{sWS}:{sWS+3}], s{sT0} offen offset:{4*k}")
    e("s_branch L_END")
    E.lab("L_NONCE_SLOW")
    e(f"buffer_load_dword v{vFL}, v{vZ}, s[{sDBG}:{sDBG+3}], 0 offen sc1")
    e("s_waitcnt vmcnt(0)")
    e(f"v_readfirstlane_b32 s{sT3}, v{vFL}")
    e(f"s_add_u32 s{sCnt}, s{sCnt}, 1")
    e("s_nop 3")
    e(f"s_cmp_gt_u32 s{sCnt}, 200000")
    e("s_cbranch_scc1 L_NONCEOK")
    e(f"s_cmp_lt_i32 s{sT3}, 0")
    e("s_cbranch_scc0 L_NONCE_SLOW")
    e("s_branch L_NONCEOK")
    E.lab("L_END")
    e("s_endpgm")
    E.lab("L_CODE_END")

    out = [HDR + f"; @launch grid=(256,1,1) block=(256,1,1) lds={LDS_TOTAL}",
           '.amdgcn_target "amdgcn-amd-amdhsa--gfx950"', ".text", f".globl {NAME}", ".p2align 8",
           f".type {NAME},@function"]
    out += E.L
    out += ['.section .rodata,"a"', ".p2align 6", f".amdhsa_kernel {NAME}",
            "  .amdhsa_next_free_vgpr 384", "  .amdhsa_next_free_sgpr 102", "  .amdhsa_accum_offset 256",
            "  .amdhsa_group_segment_fixed_size 0", "  .amdhsa_kernarg_size 96", "  .amdhsa_user_sgpr_count 2",
            "  .amdhsa_user_sgpr_kernarg_segment_ptr 1", "  .amdhsa_system_sgpr_workgroup_id_x 1",
            ".end_amdhsa_kernel"]
    return "\n".join(out) + "\n", names

if __name__ == "__main__":
    ap = argparse.ArgumentParser()
    ap.add_argument("-o", default="k.s")
    ap.add_argument("--ts", default=None)
    ap.add_argument("--steps", default="")
    ap.add_argument("--clk", action="store_true")
    ap.add_argument("--sleep", type=int, default=1)
    ap.add_argument("--tlag", type=int, default=6)
    ap.add_argument("--nopipe", action="store_true")
    ap.add_argument("--b1late", action="store_true")
    ap.add_argument("--ta2", action="store_true")
    ap.add_argument("--prew", type=int, default=None)
    ap.add_argument("--shiftB", action="store_true")
    ap.add_argument("--stf", default="sc1")
    ap.add_argument("--wsoff", type=int, default=0)
    ap.add_argument("--ldf", default="sc1")
    ap.add_argument("--idxlate", action="store_true")
    ap.add_argument("--tbpos", default="after")
    a = ap.parse_args()
    st = tuple(a.ts.split(",")) if a.ts else ()
    steps = tuple(int(x) for x in a.steps.split(",") if x)
    st = st + tuple(f"s{x}" for x in steps)
    txt, names = gen(TS=a.ts is not None, stamps=st, stepstamps=steps, rt=not a.clk, sleep=a.sleep, tlag=a.tlag,
                     pipe_poll=not a.nopipe, b1early=not a.b1late, ta2=a.ta2, tbpos=a.tbpos, prew=a.prew, shiftB=a.shiftB, idxlate=a.idxlate, stf=a.stf.replace('_',' '), ldf=a.ldf.replace('_',' '), wsoff=a.wsoff << 20)
    open(a.o, "w").write(txt)
    if a.ts: open(a.o.replace(".s", ".names"), "w").write(" ".join(names))
```

```python
import sys, argparse
from gen import Em, vr, ar, HDR, NAME

def gen(TS=False, stamps=(), stepstamps=(), rt=True, sleep=1, tlag=6, pipe_poll=True, b1early=True, order="A", ta2=False, tbpos="after", prew=None, shiftB=False, idxlate=False, stf="sc1", ldf="sc1", wsoff=0, pre2=False, halves=False, rdelay=0):
    NSTEP = 25
    R = 4
    E = Em()
    e = E.e
    OOB = 0x7ffffff0
    IDXL = 81920
    def IDXC(c): return 83968 + (5 - c) * 8192
    T1B = 51200
    FIN = T1B + 98304
    LDS_TOTAL = FIN + 64
    FLAGS = 8 << 20
    sW1, sTB, sIX, sWS = 4, 8, 12, 16
    sDBG = 20
    P_IDX, P_TBL, P_XW, P_WW, P_BW, P_W1, P_B1, P_W2, P_B2, P_OUT, P_DBG, P_WS = [24 + 2 * i for i in range(12)]
    sW = 3
    sNI, sS, sMIi, sP = 48, 49, 50, 51
    sT0, sT1, sT2, sT3 = 52, 53, 54, 55
    sBbase, sB24, sBoff = 56, 57, 58
    s80 = 59
    sX = 60
    sIn0 = 61
    sIn1 = 62
    sCnt = 63
    sOUT = 64
    sIXF = 68
    sSt = 72
    sEX = 76
    sPC = 78
    sFP, sFS = 98, 99
    sTS = 80
    vLane, vC, vQ4 = 1, 2, 3
    vB0, vB1, vQ = 4, 5, 6
    vL16 = 7
    vTmp = 8
    vB1a, vB1b, vW2a, vW2b = 14, 15, 16, 17
    vXW, vWW, vBW, vB2 = 18, 19, 20, 21
    vFL = 22
    vSel = 23
    vGA = 24
    vIA = 32
    vIA2 = 40
    vDT = 48
    vST = 52
    vW = 53
    vRD = 56
    vOUTO = 57
    vIND = 58
    vFS = 59
    vCO, vXO, vZ, vWO = 60, 61, 62, 63
    vACC0 = 64
    vBF = 96
    vI = 128
    vRAW = 160
    vT1 = 96
    vTo48, vTo16, vTo4, vIXl, vIXo, vTBo, vTBw = 239, 240, 241, 242, 243, 244, 245
    vTouch = 250
    aACC, aAF, aTB = 0, 96, 0

    def acc(tp, n):
        if tp < 2: return vr(vACC0 + (tp * 4 + n) * 4, 4)
        return ar(aACC + ((tp - 2) * 4 + n) * 4, 4)
    def afrag(tp): return ar(aAF + tp * 4, 4)
    def bfrag(i, n): return vr(vBF + (i % 2) * 16 + n * 4, 4)
    def raw(i, jj, cp=None):
        b = vRAW + 16 * (i % R) + 4 * jj
        return vr(b, 4) if cp is None else vr(b + cp)

    tsn = [0]; names = []
    def stamp(name):
        if not TS: return
        if stamps and name not in stamps and name != "cal": return
        k = tsn[0]; tsn[0] += 1
        names.append(name)
        e(f"{'s_memrealtime' if rt else 's_memtime'} s[{sTS+2*k}:{sTS+2*k+1}]")
        E.wait_all(vm=False, lg=True)
    def wait_both(vtag, ltag):
        parts = []
        if vtag is not None and vtag in E.vmq:
            idx = len(E.vmq) - 1 - E.vmq[::-1].index(vtag)
            n = len(E.vmq) - 1 - idx
            E.vmq = E.vmq[idx + 1:]
            parts.append(f"vmcnt({min(n, 63)})")
        if ltag is not None and ltag in E.lgq:
            idx = len(E.lgq) - 1 - E.lgq[::-1].index(ltag)
            n = len(E.lgq) - 1 - idx
            assert n <= 15, n
            E.lgq = E.lgq[idx + 1:]
            parts.append(f"lgkmcnt({n})")
        if parts: e("s_waitcnt " + " ".join(parts))
    def emit_item(it):
        if it is None: return
        if it[0] in ("s", "v"): e(it[1])
        elif it[0] == "vm": E.vm(it[1], it[2])
        elif it[0] == "lg": E.lg(it[1], it[2])
        elif it[0] == "wvm": E.wait_vm(it[1])
        elif it[0] == "wlg": E.wait_lg(it[1])
        elif it[0] == "wboth": wait_both(it[1], it[2])
        else: raise ValueError(it)
    def emit_items(its):
        for it in its: emit_item(it)
    def srd(d, p, nbytes, addoff=None):
        if addoff is None:
            e(f"s_mov_b32 s{d}, s{p}")
            e(f"s_and_b32 s{d+1}, s{p+1}, 0xffff")
        else:
            e(f"s_add_u32 s{d}, s{p}, s{addoff}")
            e(f"s_addc_u32 s{d+1}, s{p+1}, 0")
            e(f"s_and_b32 s{d+1}, s{d+1}, 0xffff")
        e(f"s_mov_b32 s{d+2}, {nbytes}")
        e(f"s_mov_b32 s{d+3}, 0x00020000")
    def fieldoff(i): return (16 * (i // 4) + i % 4) * 131072
    def bload(i):
        out = []
        if i < 24: out.append(("s", f"s_add_u32 s{sBoff}, s{sBbase}, {fieldoff(i)}"))
        else: out.append(("s", f"s_mov_b32 s{sBoff}, s{sB24}"))
        for jj in range(4):
            vo = vB0 if jj < 2 else vB1
            out.append(("vm", f"buffer_load_dwordx4 {raw(i,jj)}, v{vo}, s[{sW1}:{sW1+3}], s{sBoff} offen offset:{(jj%2)*2048}", f"raw{i}"))
        return out
    def idx_dma(c):
        out = []
        if c < 6:
            out.append(("s", f"s_lshl_b32 s{sT0}, s{sW}, 11"))
            out.append(("s", f"s_mul_i32 s{sT1}, s{sW}, 12800"))
            for h in range(2):
                out.append(("s", f"s_add_u32 m0, s{sT0}, {IDXC(c) + h*1024}"))
                out.append(("s", f"s_add_u32 s{sT2}, s{sT1}, {h*6400 + c*64}"))
                out.append(("vm", f"buffer_load_dwordx4 v{vIXo}, s[{sIX}:{sIX+3}], s{sT2} offen lds", f"idxd{c}"))
        else:
            out.append(("s", f"s_and_b32 s{sT0}, s{sW}, 1"))
            out.append(("s", f"s_mul_i32 s{sT1}, s{sT0}, 25600"))
            out.append(("s", f"s_lshl_b32 s{sT0}, s{sT0}, 10"))
            out.append(("s", f"s_add_u32 m0, s{sT0}, {IDXL}"))
            out.append(("s", "s_nop 0"))
            out.append(("vm", f"buffer_load_dwordx4 v{vIXl}, s[{sIX}:{sIX+3}], s{sT1} offen lds", f"idxd{c}"))
        return out
    def touch_grp(m, dst):
        out = [("s", f"s_lshl_b32 s{sT0}, s{sMIi}, 12")]
        if m < 6:
            out.append(("s", f"s_add_u32 s{sT0}, s{sT0}, s{sBbase}"))
            out.append(("s", f"s_add_u32 s{sT0}, s{sT0}, {m<<21}"))
            out.append(("vm", f"buffer_load_dword v{dst}, v{vTo16}, s[{sW1}:{sW1+3}], s{sT0} offen", "touch"))
        else:
            out.append(("s", f"s_add_u32 s{sT0}, s{sT0}, s{sB24}"))
            out.append(("vm", f"buffer_load_dword v{dst}, v{vTo4}, s[{sW1}:{sW1+3}], s{sT0} offen", "touch"))
        return out
    def xp(i, k):
        cp, jj = k // 4, k % 4
        t = vDT + (k % 4)
        return (("v", f"v_mov_b32_dpp v{t}, {raw(i, jj, cp)} row_ror:8 row_mask:0xf bank_mask:0xf"),
                ("v", f"v_perm_b32 v{vBF + (i%2)*16 + cp*4 + jj}, v{t}, {raw(i, jj, cp)}, v{vSel}"))

    E.lab(NAME)
    e("s_cmp_ge_u32 s2, 256")
    e("s_cbranch_scc1 L_END")
    e("s_load_dwordx16 s[24:39], s[0:1], 0")
    e("s_load_dwordx8 s[40:47], s[0:1], 64")
    if TS:
        e(f"{'s_memrealtime' if rt else 's_memtime'} s[{sTS}:{sTS+1}]"); tsn[0] = 1
    e(f"s_getpc_b64 s[{sPC}:{sPC+1}]")
    E.lab("L_PCREF")
    e(f"v_and_b32 v{vLane}, 63, v0")
    e(f"v_lshrrev_b32 v{vTmp}, 6, v0")
    e(f"v_and_b32 v{vC}, 15, v0")
    e(f"v_readfirstlane_b32 s{sW}, v{vTmp}")
    e(f"s_lshr_b32 s{sT0}, s2, 3")
    e(f"s_lshl_b32 s{sX}, s{sT0}, 2")
    e(f"v_mov_b32 v{vTmp+5}, 0x{OOB:x}")
    e(f"s_add_u32 s{sX}, s{sX}, s{sW}")
    e(f"v_lshlrev_b32 v{vTmp}, 14, v{vLane}")
    e(f"s_lshl_b32 s{sT1}, s{sX}, 7")
    e(f"v_add_u32 v{vTmp}, s{sT1}, v{vTmp}")
    e(f"s_mov_b32 s{sT1}, L_CODE_END-L_PCREF")
    e(f"v_cmp_gt_u32 vcc, s{sT1}, v{vTmp}")
    e(f"s_and_saveexec_b64 s[{sEX}:{sEX+1}], vcc")
    e("s_cbranch_execz L_NOCT")
    E.vm(f"global_load_dword v{vTouch}, v{vTmp}, s[{sPC}:{sPC+1}]", "touchC")
    E.lab("L_NOCT")
    e(f"s_mov_b64 exec, s[{sEX}:{sEX+1}]")
    e(f"v_lshrrev_b32 v{vQ4}, 4, v{vLane}")
    e(f"s_and_b32 s{sNI}, s2, 7")
    e(f"s_and_b32 s{sS}, s{sT0}, 3")
    e(f"s_lshr_b32 s{sMIi}, s{sT0}, 2")
    e(f"s_lshl_b32 s{sP}, s{sNI}, 2")
    e(f"s_add_u32 s{sP}, s{sP}, s{sS}")
    e(f"s_movk_i32 s{s80}, 80")
    e(f"s_lshl_b32 s{sT0}, s{sS}, 15")
    e(f"s_lshl_b32 s{sT1}, s{sNI}, 7")
    e(f"s_add_u32 s{sT0}, s{sT0}, s{sT1}")
    e(f"s_lshl_b32 s{sT1}, s{sW}, 19")
    e(f"s_add_u32 s{sBbase}, s{sT0}, s{sT1}")
    e(f"s_add_u32 s{sT1}, s{sW}, 96")
    e(f"s_lshl_b32 s{sT1}, s{sT1}, 17")
    e(f"s_add_u32 s{sB24}, s{sT0}, s{sT1}")
    e(f"v_lshlrev_b32 v{vTmp}, 7, v{vLane}")
    e(f"v_cmp_gt_u32 vcc, 16, v{vLane}")
    e(f"v_lshrrev_b32 v{vTmp+3}, 1, v{vLane}")
    e(f"v_mul_u32_u24 v{vTmp+3}, 400, v{vTmp+3}")
    e(f"v_cndmask_b32 v{vTouch+3}, v{vTmp+5}, v{vTmp}, vcc")
    e(f"v_and_b32 v{vTmp+4}, 1, v{vLane}")
    e(f"v_mul_u32_u24 v{vTmp+4}, 60, v{vTmp+4}")
    e(f"v_add_u32 v{vTmp+3}, v{vTmp+3}, v{vTmp+4}")
    e(f"v_cndmask_b32 v{vTouch+4}, v{vTmp+5}, v{vTmp+3}, vcc")
    e(f"v_lshlrev_b32 v{vTmp}, 21, v{vQ4}")
    e(f"v_bfe_u32 v{vTmp+3}, v{vLane}, 2, 2")
    e(f"v_lshl_add_u32 v{vTmp}, v{vTmp+3}, 17, v{vTmp}")
    e(f"v_and_b32 v{vTmp+3}, 3, v{vLane}")
    e(f"v_lshl_add_u32 v{vTmp}, v{vTmp+3}, 10, v{vTmp}")
    e(f"v_bfe_u32 v{vTmp+2}, v0, 3, 1")
    e(f"v_cndmask_b32 v{vTo16}, v{vTmp+5}, v{vTmp}, vcc")
    e(f"v_cmp_gt_u32 vcc, 48, v{vLane}")
    e(f"v_lshlrev_b32 v{vB0}, 13, v{vQ4}")
    e(f"v_lshl_add_u32 v{vB0}, v{vTmp+2}, 10, v{vB0}")
    e(f"v_cndmask_b32 v{vTo48}, v{vTmp+5}, v{vTmp}, vcc")
    e(f"v_cmp_gt_u32 vcc, 4, v{vLane}")
    e(f"v_and_b32 v{vTmp+1}, 7, v0")
    e(f"v_lshl_add_u32 v{vB0}, v{vTmp+1}, 4, v{vB0}")
    e(f"v_cndmask_b32 v{vTo4}, v{vTmp+5}, v{vTmp}, vcc")
    e(f"v_add_u32 v{vB1}, 0x1000, v{vB0}")
    e(f"v_lshrrev_b32 v{vTmp}, 2, v{vLane}")
    e(f"v_and_b32 v{vTmp+1}, 3, v{vLane}")
    e(f"v_lshlrev_b32 v{vTmp+1}, 4, v{vTmp+1}")
    e(f"v_lshl_add_u32 v{vTBo}, v{vTmp}, 8, v{vTmp+1}")
    e(f"v_mad_u32_u24 v{vTBw}, v{vTmp}, s{s80}, v{vTmp+1}")
    e(f"s_mul_i32 s{sT0}, s{sW}, 20480")
    e(f"v_add_u32 v{vTBw}, s{sT0}, v{vTBw}")
    e(f"s_movk_i32 s{sT1}, 400")
    e(f"v_mul_u32_u24 v{vIXo}, s{sT1}, v{vTmp}")
    e(f"v_and_b32 v{vTmp+1}, 3, v{vLane}")
    e(f"v_xor_b32 v{vTmp}, v{vQ4}, v{vTmp+1}")
    e(f"v_lshl_add_u32 v{vIXo}, v{vTmp}, 4, v{vIXo}")
    e(f"v_mul_u32_u24 v{vIXl}, s{sT1}, v{vLane}")
    e(f"v_add_u32 v{vIXl}, 384, v{vIXl}")
    e("s_waitcnt lgkmcnt(0)")
    stamp("kernarg")
    srd(sTB, P_TBL, 256000)
    srd(sIXF, P_IDX, 409600)
    e(f"s_lshl_b32 s{sT0}, s{sX}, 11")
    E.vm(f"buffer_load_dword v{vTouch}, v{vTouch+3}, s[{sTB}:{sTB+3}], s{sT0} offen", "touchA")
    e(f"s_mul_i32 s{sT0}, s{sX}, 3200")
    E.vm(f"buffer_load_dword v{vTouch+1}, v{vTouch+4}, s[{sIXF}:{sIXF+3}], s{sT0} offen", "touchA")
    srd(sW1, P_W1, 13107200)
    if ta2:
        e(f"s_lshl_b32 s{sT0}, s{sMIi}, 12")
        e(f"s_add_u32 s{sT0}, s{sT0}, s{sBbase}")
        E.vm(f"buffer_load_dword v{vTouch+2}, v{vTo16}, s[{sW1}:{sW1+3}], s{sT0} offen", "touchA")
    emit_items(bload(0))
    e(f"s_mul_i32 s{sT3}, s{sMIi}, 51200")
    srd(sIX, P_IDX, 51200, addoff=sT3)
    emit_items(idx_dma(0))
    consts = []
    C = consts.append
    C(f"v_mov_b32 v{vSel}, 0x05040100")
    C(f"v_mov_b32 v{vTmp+3}, 0x03020706")
    C(f"v_cmp_eq_u32 vcc, 1, v{vTmp+2}")
    C(f"v_lshlrev_b32 v{vQ}, 4, v{vQ4}")
    C(f"v_lshlrev_b32 v{vL16}, 4, v{vLane}")
    C(f"v_cndmask_b32 v{vSel}, v{vSel}, v{vTmp+3}, vcc")
    C(f"v_bfe_u32 v{vTmp}, v{vC}, 2, 2")
    C(f"v_xor_b32 v{vTmp}, s{sW}, v{vTmp}")
    C(f"v_lshlrev_b32 v{vTmp}, 4, v{vTmp}")
    C(f"v_lshl_add_u32 v{vTmp}, v{vC}, 6, v{vTmp}")
    C(f"v_lshlrev_b32 v{vTmp+1}, 4, v{vC}")
    C(f"s_lshl_b32 s{sT0}, s{sW}, 1")
    C(f"s_lshl_b32 s{sT2}, s{sW}, 2")
    for tp in range(8):
        C(f"s_add_u32 s{sSt}, s{sT0}, {tp}")
        C(f"s_and_b32 s{sSt}, s{sSt}, 7")
        C(f"s_lshl_b32 s{sT3}, s{sSt}, 10")
        C(f"s_add_u32 s{sT3}, s{sT3}, {IDXC(5)}")
        C(f"v_add_u32 v{vIA+tp}, s{sT3}, v{vTmp}")
        C(f"s_lshl_b32 s{sT3}, s{sSt}, 8")
        C(f"s_add_u32 s{sT3}, s{sT3}, s{sT2}")
        C(f"s_add_u32 s{sT3}, s{sT3}, {IDXL}")
        C(f"v_add_u32 v{vIA2+tp}, s{sT3}, v{vTmp+1}")
    for dd in range(1, 4):
        C(f"s_add_u32 s{sT0}, s{sW}, {dd}")
        C(f"s_and_b32 s{sT0}, s{sT0}, 3")
        C(f"s_mul_i32 s{sT0}, s{sT0}, 12288")
        C(f"s_add_u32 s{sT0}, s{sT0}, {T1B + (dd-1)*4096}")
        C(f"v_add_u32 v{vW+dd-1}, s{sT0}, v{vL16}")
    C(f"s_mul_i32 s{sT0}, s{sW}, 12288")
    C(f"s_add_u32 s{sT0}, s{sT0}, {T1B}")
    C(f"v_add_u32 v{vRD}, s{sT0}, v{vL16}")
    C(f"s_lshl_b32 s{sT0}, s{sMIi}, 5")
    C(f"v_lshlrev_b32 v{vST}, 15, v{vQ4}")
    C(f"v_lshl_add_u32 v{vST}, v{vC}, 4, v{vST}")
    C(f"s_lshl_b32 s{sT2}, s{sW}, 3")
    C(f"s_add_u32 s{sT2}, s{sT0}, s{sT2}")
    C(f"s_lshl_b32 s{sT3}, s{sT2}, 15")
    C(f"s_lshl_b32 s{sSt}, s{sP}, 10")
    C(f"s_add_u32 s{sSt}, s{sSt}, s{sT3}")
    C(f"s_add_u32 s{sSt+1}, s{sSt}, {4*32768}")
    C(f"s_lshl_b32 s{sT2}, s{sT2}, 9")
    C(f"s_lshr_b32 s{sT3}, s{sP}, 3")
    C(f"s_lshl_b32 s{sT3}, s{sT3}, 7")
    C(f"s_add_u32 s{sT2}, s{sT2}, s{sT3}")
    C(f"s_and_b32 s{sT3}, s{sP}, 7")
    C(f"s_lshl_b32 s{sT3}, s{sT3}, 2")
    C(f"s_add_u32 s{sT2}, s{sT2}, s{sT3}")
    C(f"s_add_u32 s{sFS}, s{sT2}, {FLAGS}")
    C(f"s_add_u32 s{sT2}, s{sT0}, s{sP}")
    C(f"s_lshl_b32 s{sT3}, s{sT2}, 15")
    C(f"s_lshl_b32 s{sIn0}, s{sW}, 13")
    C(f"s_add_u32 s{sIn0}, s{sIn0}, s{sT3}")
    C(f"s_add_u32 s{sIn1}, s{sIn0}, 4096")
    C(f"s_lshl_b32 s{sT3}, s{sT2}, 2")
    C(f"s_add_u32 s{sT3}, s{sT3}, s{sW}")
    C(f"s_lshl_b32 s{sT3}, s{sT3}, 7")
    C(f"s_add_u32 s{sFP}, s{sT3}, {FLAGS}")
    C(f"v_cmp_gt_u32 vcc, 8, v{vLane}")
    C(f"v_lshlrev_b32 v{vIND}, 2, v{vLane}")
    C(f"v_lshlrev_b32 v{vFS}, 9, v{vLane}")
    C(f"v_cndmask_b32 v{vIND}, v{vTmp+5}, v{vIND}, vcc")
    C(f"v_cmp_gt_u32 vcc, 4, v{vLane}")
    C(f"v_and_b32 v{vCO}, 7, v{vLane}")
    C(f"v_lshlrev_b32 v{vCO}, 3, v{vCO}")
    C(f"v_cndmask_b32 v{vFS}, v{vTmp+5}, v{vFS}, vcc")
    C(f"v_lshl_add_u32 v{vCO}, v{vQ4}, 1, v{vCO}")
    C(f"v_add_u32 v{vCO}, v{vCO}, v{vTmp+2}")
    C(f"s_lshl_b32 s{sT3}, s{sW}, 7")
    C(f"v_add_u32 v{vCO}, s{sT3}, v{vCO}")
    C(f"v_lshlrev_b32 v{vCO}, 1, v{vCO}")
    C(f"s_lshl_b32 s{sT0}, s{sMIi}, 7")
    C(f"s_lshl_b32 s{sT3}, s{sP}, 2")
    C(f"s_add_u32 s{sT0}, s{sT0}, s{sT3}")
    C(f"v_add_u32 v{vXO}, s{sT0}, v{vQ4}")
    C(f"v_lshlrev_b32 v{vOUTO}, 1, v{vXO}")
    C(f"v_mul_u32_u24 v{vXO}, 13, v{vXO}")
    C(f"v_min_u32 v{vWO}, 12, v{vC}")
    C(f"v_add_u32 v{vXO}, v{vXO}, v{vWO}")
    C(f"v_lshlrev_b32 v{vXO}, 1, v{vXO}")
    C(f"v_lshlrev_b32 v{vWO}, 1, v{vWO}")
    C(f"v_mov_b32 v{vZ}, 0")
    e(f"s_lshl_b32 s{sT1}, s{sW}, 16")
    e(f"s_lshl_b32 s{sSt+1}, s{sS}, 6")
    e(f"s_add_u32 s{sT1}, s{sT1}, s{sSt+1}")
    LAG = tlag
    per = -(-len(consts) // 14)
    for n in range(16):
        if n > 0: e(f"s_add_u32 s{sT1}, s{sT1}, 4096")
        E.vm(f"buffer_load_dwordx4 {ar(aTB+4*n,4)}, v{vTBo}, s[{sTB}:{sTB+3}], s{sT1} offen", f"tbl{n}")
        for _ in range(per):
            if consts: e(consts.pop(0))
        if tbpos == "mid" and n == 7:
            e(f"s_lshl_b32 s{sCnt}, s{sMIi}, 12")
            e(f"s_add_u32 s{sCnt}, s{sCnt}, s{sBbase}")
            if shiftB: e(f"s_add_u32 s{sCnt}, s{sCnt}, {1<<21}")
            E.vm(f"buffer_load_dword v{vTouch+2}, v{vTo48}, s[{sW1}:{sW1+3}], s{sCnt} offen", "touchB")
        if n >= LAG:
            E.wait_vm(f"tbl{n-LAG}")
            E.lg(f"ds_write_b128 v{vTBw}, {ar(aTB+4*(n-LAG),4)} offset:{(n-LAG)*1280}", "tblw")
    while consts: e(consts.pop(0))
    stamp("tbliss")
    if b1early:
        emit_items(bload(1))
    if tbpos == "after":
        e(f"s_lshl_b32 s{sT0}, s{sMIi}, 12")
        e(f"s_add_u32 s{sT0}, s{sT0}, s{sBbase}")
        E.vm(f"buffer_load_dword v{vTouch+2}, v{vTo48}, s[{sW1}:{sW1+3}], s{sT0} offen", "touchB")
    E.wait_vm("raw0")
    extra = (bload(2) + idx_dma(1)) if pre2 else []
    for k in range(16):
        d, p = xp(0, k)
        emit_item(d); emit_item(p)
        if k % 3 == 2 and (16 - LAG + k // 3) < 16:
            n = 16 - LAG + k // 3
            E.wait_vm(f"tbl{n}")
            E.lg(f"ds_write_b128 v{vTBw}, {ar(aTB+4*n,4)} offset:{n*1280}", "tblw")
            while extra:
                it = extra.pop(0); emit_item(it)
                if it[0] == "vm": break
    emit_items(extra); extra = []
    for n in range(16 - LAG, 16):
        if f"tbl{n}" in E.vmq:
            E.wait_vm(f"tbl{n}")
            E.lg(f"ds_write_b128 v{vTBw}, {ar(aTB+4*n,4)} offset:{n*1280}", "tblw")
    if wsoff:
        e(f"s_mov_b32 s{sT0}, {wsoff}")
        srd(sWS, P_WS, (9 << 20), addoff=sT0)
    else:
        srd(sWS, P_WS, (9 << 20))
    srd(sDBG, P_DBG, 256)
    srd(sOUT, P_OUT, 2048)
    E.wait_vm("idxd0")
    E.wait_all(vm=False, lg=True)
    e("s_barrier")
    stamp("barrier1")

    def idx_read_items(group):
        out = []
        for tp in range(8):
            if group < 6:
                out.append(("lg", f"ds_read_b128 {vr(vI+4*tp,4)}, v{vIA+tp} offset:{(5-group)*8192}", f"idx{group}_{tp}"))
            else:
                out.append(("lg", f"ds_read_b32 v{vI+4*tp}, v{vIA2+tp}", f"idx{group}_{tp}"))
        return out
    def addr_item(i, tp):
        comp = i % 4 if i < 24 else 0
        return ("v", f"v_mad_u32_u24 v{vGA+tp}, v{vI+4*tp+comp}, s{s80}, v{vQ}")
    def gather_item(i, tp):
        return ("lg", f"ds_read_b128 {afrag(tp)}, v{vGA+tp}", f"g{i}_{tp}")

    emit_items(idx_read_items(0))
    if not b1early: emit_items(bload(1))
    if not pre2: emit_items(idx_dma(1))
    for tp in range(8):
        E.wait_lg(f"idx0_{tp}")
        emit_item(addr_item(0, tp))
        if tp < 7: emit_item(gather_item(0, tp))
    if not pre2: emit_items(bload(2))
    e(f"s_or_b32 s{sT0}, s2, s{sW}")
    e(f"s_cmp_lg_u32 s{sT0}, 0")
    e("s_cbranch_scc1 L_NONONCE")
    e(f"s_memrealtime s[{sT2}:{sT3}]")
    e("s_waitcnt lgkmcnt(0)")
    e(f"s_or_b32 s{sT2}, s{sT2}, 0x80000000")
    e(f"v_mov_b32 v{vTmp}, s{sT2}")
    e(f"s_mov_b64 s[{sEX}:{sEX+1}], exec")
    e("s_mov_b64 exec, 1")
    e(f"buffer_store_dword v{vTmp}, v{vZ}, s[{sDBG}:{sDBG+3}], 0 offen sc1")
    e(f"s_mov_b64 exec, s[{sEX}:{sEX+1}]")
    E.lab("L_NONONCE")
    wait_both("raw1", "g0_1")

    OFF = {0: 49152, 1: 0}
    def t1_write(tp, n4):
        dd, sub = tp // 2, tp % 2
        a = aACC + ((tp - 2) * 4 + n4) * 4
        return f"ds_write_b128 v{vW+dd-1}, {ar(a,4)} offset:{OFF[sub] + n4*1024}"
    smalls = [
        ("vm", f"global_load_ushort v{vB1a}, v{vCO}, s[{P_B1}:{P_B1+1}]", "small"),
        ("vm", f"global_load_ushort v{vB1b}, v{vCO}, s[{P_B1}:{P_B1+1}] offset:128", "small"),
        ("vm", f"global_load_ushort v{vW2a}, v{vCO}, s[{P_W2}:{P_W2+1}]", "small"),
        ("vm", f"global_load_ushort v{vW2b}, v{vCO}, s[{P_W2}:{P_W2+1}] offset:128", "small"),
        ("vm", f"global_load_ushort v{vXW}, v{vXO}, s[{P_XW}:{P_XW+1}]", "small"),
        ("vm", f"global_load_ushort v{vWW}, v{vWO}, s[{P_WW}:{P_WW+1}]", "small"),
        ("vm", f"global_load_ushort v{vBW}, v{vZ}, s[{P_BW}:{P_BW+1}]", "small"),
        ("vm", f"global_load_ushort v{vB2}, v{vZ}, s[{P_B2}:{P_B2+1}]", "small"),
        ("vm", f"buffer_load_dword v{vFL}, v{vZ}, s[{sDBG}:{sDBG+3}], 0 offen sc1", "nonce"),
    ]
    small_at = {13: smalls[0:3], 15: smalls[3:6], 16: smalls[6:9]}

    idx_dma_at = {1: 2, 3: 3, 7: 4, 9: 5, 11: 6}
    idx_bar_at = {1: "idxd1", 2: "idxd3", 4: "idxd6"}
    touch_at = {0: 3, 4: 4, 8: 5, 12: 6}
    if shiftB: touch_at = {0: 4, 4: 5, 8: 6}
    if idxlate:
        idx_dma_at = {3: 2, 5: 3, 7: 4, 9: 5, 11: 6}
        idx_bar_at = {1: "idxd1", 2: "idxd2", 3: "idxd3", 4: "idxd6"}
    prew_steps = [4, 5, 8, 12, 13, 15, 16, 17] if prew is None else [prew + k for k in range(8)]
    def used19(i): return [19] if False else []
    for i in range(NSTEP):
        nxt = i + 1 < NSTEP
        last = not nxt
        E.c(f"---- step {i}")
        if i in stepstamps: stamp(f"s{i}")
        first = [[] for _ in range(32)]
        rest = [[] for _ in range(32)]
        order_ = list(range(8))
        if last: order_ = [2, 4, 6, 0, 1, 3, 5, 7]
        first[0].append(gather_item(i, 7))
        idxstep = nxt and (i + 1) % 4 == 3 and i + 2 < NSTEP
        if nxt:
            for k in range(1, 8): first[4 * k].append(gather_item(i + 1, k - 1))
            for k in range(8): rest[4 * k].append(addr_item(i + 1, k))
            seq = [xp(i + 1, k) for k in range(16)]
            slots = [g for g in range(32) if g % 4 in (1, 2)]
            for x, g in enumerate(slots):
                rest[g].append(seq[x][0])
                if x > 0: rest[g].append(seq[x - 1][1])
            rest[31].append(seq[15][1])
            if idxstep:
                grp2 = (i + 2) // 4 if i + 2 < 24 else 6
                its = idx_read_items(grp2)
                if grp2 in idx_bar_at:
                    rest[2].append(("wvm", idx_bar_at[grp2]))
                    rest[2].append(("s", "s_barrier"))
                for tp, it in enumerate(its): first[4 * tp + 3].append(it)
        lds_ = [3, 4] if i == 0 else ([i + R] if i + R < NSTEP else [])
        for x, j in enumerate(lds_):
            ld = bload(j)
            if idxstep: gs = (1, 9, 17, 25)
            else: gs = (3, 7, 11, 15) if x == 0 else (19, 23, 27, 30)
            if idxstep: rest[0].append(ld[0])
            elif x == 0: rest[1].append(ld[0])
            else: rest[15].append(ld[0])
            for q_, g in enumerate(gs): first[g].append(ld[1 + q_])
        if i in idx_dma_at:
            its = idx_dma(idx_dma_at[i])
            if len(its) == 8:
                rest[19] += its[0:2]; rest[23] += its[2:4]
                first[27].append(its[4]); rest[27] += its[5:7]
                first[31].append(its[7])
            else:
                rest[19] += its[0:2]; rest[23] += its[2:5]
                first[27].append(its[5])
        if i in touch_at:
            its = touch_grp(touch_at[i], vTouch + 4)
            rest[19] += its[:2]; rest[23] += its[2:-1]
            first[27 if i else 31].append(its[-1])
        if prew is not None and i in prew_steps:
            k = prew_steps.index(i)
            sub, n4 = k // 4, k % 4
            first[7 if idxstep and False else 19 if 19 not in used19(i) else 23].append(("vm", f"buffer_store_dwordx4 {vr(vGA,4)}, v{vST}, s[{sWS}:{sWS+3}], s{sSt+sub} offen offset:{n4*256} sc1", "prew"))
        if i in small_at:
            for it, g in zip(small_at[i], (19, 23, 27)): first[g].append(it)
        if not last:
            rest[15].append(("wboth", None, f"g{i}_7"))
            rest[31].append(("wboth", f"raw{i+2}" if i + 2 < NSTEP else None, f"g{i+1}_3"))
        else:
            for pos, tp in enumerate([2, 4, 6]):
                base = 4 * pos + 4 + 6
                for n4 in range(4): first[base + n4].append(("lg", t1_write(tp, n4), "t1w"))
        for m in range(32):
            tp, n4 = order_[m // 4], m % 4
            if last and m == 0: E.wait_lg(f"g{i}_6")
            if last and m == 28: E.wait_lg(f"g{i}_7")
            if i == 0 and m in (8, 12): E.wait_lg(f"g0_{m//4+1}")
            cin = "0" if i == 0 else acc(tp, n4)
            e(f"v_mfma_f32_16x16x32_bf16 {acc(tp,n4)}, {afrag(tp)}, {bfrag(i,n4)}, {cin}")
            for it in first[m]: emit_item(it)
            for it in rest[m]: emit_item(it)
    stamp("loop")
    E.c("---- T1: intra-CU reduce + publish")
    def t1_reads(sub):
        for n4 in range(4):
            for k in range(3):
                E.lg(f"ds_read_b128 {vr(vT1+32*k+16*sub+4*n4,4)}, v{vRD} offset:{OFF[sub] + k*4096+n4*1024}", f"t1r{sub}{n4}_{k}")
    def t1_sum_store(sub, n4):
        b = sub * 16 + 4 * n4
        for k in range(3):
            for h in range(2):
                e(f"v_pk_add_f32 {vr(vACC0+b+2*h,2)}, {vr(vACC0+b+2*h,2)}, {vr(vT1+32*k+b+2*h,2)}")
        E.vm(f"buffer_store_dwordx4 {vr(vACC0+b,4)}, v{vST}, s[{sWS}:{sWS+3}], s{sSt+sub} offen offset:{n4*256} {stf}", f"pub{sub}")
    E.wait_all(vm=False, lg=True)
    e("s_barrier")
    t1_reads(0)
    w1 = [t1_write(tp, n4) for tp in (3, 5, 7) for n4 in range(4)]
    for n4 in range(4):
        E.wait_lg(f"t1r0{n4}_2")
        for x in range(3): E.lg(w1.pop(0), "t1w")
        t1_sum_store(0, n4)
    E.wait_all(vm=False, lg=True)
    e("s_barrier")
    t1_reads(1)
    assert "nonce" not in E.vmq and "small" not in E.vmq
    e(f"v_readfirstlane_b32 s{sT3}, v{vFL}")
    e(f"s_mov_b32 s{sCnt}, 0")
    e(f"s_mov_b32 s{sT2}, 0xffff0000")
    e("s_nop 1")
    e(f"s_cmp_lt_i32 s{sT3}, 0")
    e("s_cbranch_scc0 L_NONCE_SLOW")
    E.lab("L_NONCEOK")
    for n4 in range(4):
        E.wait_lg(f"t1r1{n4}_2")
        t1_sum_store(1, n4)
    E.wait_vm("pub0")
    E.vm(f"buffer_store_dword v{vFL}, v{vFS}, s[{sWS}:{sWS+3}], s{sFS} offen sc1", "flag0")
    stamp("T1pub")
    E.c("---- T3: poll + finish")
    vIN = vT1
    vH = vT1 + 40
    vD = vT1 + 48
    vX = vT1 + 52
    vM = vT1 + 56
    vY = vT1 + 60
    e(f"v_lshlrev_b32 v{vB1a}, 16, v{vB1a}")
    e(f"v_lshlrev_b32 v{vB1b}, 16, v{vB1b}")
    e(f"v_lshlrev_b32 v{vW2a}, 16, v{vW2a}")
    e(f"v_lshlrev_b32 v{vW2b}, 16, v{vW2b}")
    e(f"v_lshlrev_b32 v{vXW}, 16, v{vXW}")
    e(f"v_lshlrev_b32 v{vWW}, 16, v{vWW}")
    e(f"v_cmp_gt_u32 vcc, 13, v{vC}")
    e(f"v_mul_f32 v{vXW}, v{vXW}, v{vWW}")
    e(f"v_lshlrev_b32 v{vBW}, 16, v{vBW}")
    e(f"v_lshlrev_b32 v{vB2}, 16, v{vB2}")
    e(f"v_cndmask_b32 v{vXW}, 0, v{vXW}, vcc")
    e("s_nop 1")
    for sh in (1, 2, 4, 8):
        e(f"v_add_f32_dpp v{vXW}, v{vXW}, v{vXW} row_shr:{sh} row_mask:0xf bank_mask:0xf")
        e("s_nop 1")
    def rnd(r):
        e(f"v_cvt_pk_bf16_f32 v{r}, v{r}, v{r}")
        e(f"v_and_b32 v{r}, s{sT2}, v{r}")
    rnd(vXW)
    e(f"v_add_f32 v{vXW}, v{vXW}, v{vBW}")
    rnd(vXW)
    E.wait_vm("pub1")
    E.vm(f"buffer_store_dword v{vFL}, v{vFS}, s[{sWS}:{sWS+3}], s{sFS} offen offset:2048 sc1", "flag1")
    stamp("drain")
    def poll_issue(r):
        e(f"v_mov_b32 v{r}, 0")
        e(f"buffer_atomic_or v{r}, v{vIND}, s[{sWS}:{sWS+3}], s{sFP} offen sc0 sc1")
    def data_loads(h):
        if rdelay: e(f"s_sleep {rdelay}")
        for k in range(4 * h, 4 * h + 4):
            so = sIn0 if k < 4 else sIn1
            e(f"buffer_load_dwordx4 {vr(vIN+4*k,4)}, v{vL16}, s[{sWS}:{sWS+3}], s{so} offen offset:{(k%4)*1024} {ldf}")
    if halves:
        e(f"s_mov_b32 s{sT0}, 0")
        E.lab("L_IND")
        poll_issue(vM + 3)
        e("s_waitcnt vmcnt(0)")
        e(f"v_cmp_ne_u32 vcc, v{vM+3}, v{vFL}")
        e(f"s_bitcmp1_b32 s{sT0}, 0")
        e("s_cbranch_scc1 L_H0D")
        e(f"s_and_b32 s{sT1}, vcc_lo, 0x0f")
        e("s_cbranch_scc1 L_H0D")
        data_loads(0)
        e(f"s_or_b32 s{sT0}, s{sT0}, 1")
        E.lab("L_H0D")
        e(f"s_bitcmp1_b32 s{sT0}, 1")
        e("s_cbranch_scc1 L_H1D")
        e(f"s_and_b32 s{sT1}, vcc_lo, 0xf0")
        e("s_cbranch_scc1 L_H1D")
        data_loads(1)
        e(f"s_or_b32 s{sT0}, s{sT0}, 2")
        E.lab("L_H1D")
        e(f"s_cmp_eq_u32 s{sT0}, 3")
        e("s_cbranch_scc1 L_INDOK")
        e(f"s_add_u32 s{sCnt}, s{sCnt}, 1")
        e(f"s_cmp_gt_u32 s{sCnt}, 100000")
        e("s_cbranch_scc0 L_IND")
        data_loads(0); data_loads(1)
        E.lab("L_INDOK")
        stamp("ind")
        E.vmq = []
        e("s_waitcnt vmcnt(0)")
    else:
        if pipe_poll:
            poll_issue(vM + 3)
            e(f"s_sleep 4")
            E.lab("L_IND")
            poll_issue(vM + 4)
            e("s_waitcnt vmcnt(1)")
            e(f"v_cmp_ne_u32 vcc, v{vM+3}, v{vFL}")
            e("s_and_b64 vcc, vcc, 0xff")
            e("s_cbranch_vccz L_INDOK")
            poll_issue(vM + 3)
            e("s_waitcnt vmcnt(1)")
            e(f"v_cmp_ne_u32 vcc, v{vM+4}, v{vFL}")
            e("s_and_b64 vcc, vcc, 0xff")
            e("s_cbranch_vccz L_INDOK")
            e(f"s_add_u32 s{sCnt}, s{sCnt}, 1")
            e(f"s_cmp_gt_u32 s{sCnt}, 100000")
            e("s_cbranch_scc0 L_IND")
        else:
            e("s_branch L_IND1")
            E.lab("L_IND")
            e(f"s_sleep {sleep}")
            E.lab("L_IND1")
            poll_issue(vM + 3)
            e("s_waitcnt vmcnt(0)")
            e(f"v_cmp_ne_u32 vcc, v{vM+3}, v{vFL}")
            e("s_and_b64 vcc, vcc, 0xff")
            e("s_cbranch_vccz L_INDOK")
            e(f"s_add_u32 s{sCnt}, s{sCnt}, 1")
            e(f"s_cmp_gt_u32 s{sCnt}, 100000")
            e("s_cbranch_scc0 L_IND")
        E.lab("L_INDOK")
        stamp("ind")
        data_loads(0); data_loads(1)
        E.vmq = []
        e("s_waitcnt vmcnt(4)")
    for off in (4, 8, 12):
        for h in range(2):
            a0 = vr(vIN + 2 * h, 2) if off == 4 else vr(vH + 2 * h, 2)
            e(f"v_pk_add_f32 {vr(vH+2*h,2)}, {a0}, {vr(vIN+off+2*h,2)}")
    def finish_half(nl):
        hs = [vH + 4 * nl + k for k in range(4)]
        b1 = vB1a if nl == 0 else vB1b
        for h in hs: e(f"v_cvt_pk_bf16_f32 v{h}, v{h}, v{h}")
        for h in hs: e(f"v_and_b32 v{h}, s{sT2}, v{h}")
        for h in hs: e(f"v_add_f32 v{h}, v{h}, v{b1}")
        for h in hs: e(f"v_cvt_pk_bf16_f32 v{h}, v{h}, v{h}")
        for h in hs: e(f"v_and_b32 v{h}, s{sT2}, v{h}")
        for r in range(4):
            e(f"v_cmp_lt_f32 s[{sSt+2*(r%2)}:{sSt+2*(r%2)+1}], 0, v{hs[r]}")
            if r % 2 == 1:
                e("s_nop 0")
                e(f"v_cndmask_b32 v{vY+r-1}, 0, 1.0, s[{sSt}:{sSt+1}]")
                e(f"v_cndmask_b32 v{vY+r}, 0, 1.0, s[{sSt+2}:{sSt+3}]")
        for r, h in enumerate(hs): e(f"v_mul_f32 v{h}, v{h}, v{vY+r}")
        for r, h in enumerate(hs):
            if nl == 0: e(f"v_mul_f32 v{vD+r}, v{h}, v{vW2a}")
            else: e(f"v_fmac_f32 v{vD+r}, v{h}, v{vW2b}")
    finish_half(0)
    e("s_waitcnt vmcnt(0)")
    stamp("poll")
    for off in (4, 8, 12):
        for h in range(2):
            a0 = vr(vIN + 16 + 2 * h, 2) if off == 4 else vr(vH + 4 + 2 * h, 2)
            e(f"v_pk_add_f32 {vr(vH+4+2*h,2)}, {a0}, {vr(vIN+16+off+2*h,2)}")
    finish_half(1)
    regs = [vD, vD + 1, vD + 2, vD + 3]
    for sh in (1, 2, 4, 8):
        for rg in regs: e(f"v_add_f32_dpp v{rg}, v{rg}, v{rg} row_shr:{sh} row_mask:0xf bank_mask:0xf")
    for rg in regs: e(f"v_add_f32_dpp v{rg}, v{rg}, v{rg} row_bcast:15 row_mask:0xa bank_mask:0xf")
    for rg in regs: e(f"v_add_f32_dpp v{rg}, v{rg}, v{rg} row_bcast:31 row_mask:0xc bank_mask:0xf")
    e(f"s_lshl_b32 s{sT0}, s{sW}, 4")
    e(f"s_add_u32 s{sT0}, s{sT0}, {FIN}")
    e(f"v_mov_b32 v{vX}, s{sT0}")
    e(f"s_mov_b64 s[{sEX}:{sEX+1}], exec")
    e("s_mov_b32 exec_lo, 0")
    e("s_mov_b32 exec_hi, 0x80000000")
    e(f"ds_write_b128 v{vX}, {vr(vD,4)}")
    e(f"s_mov_b64 exec, s[{sEX}:{sEX+1}]")
    e(f"v_lshlrev_b32 v{vX+1}, 2, v{vQ4}")
    e(f"v_add_u32 v{vX+1}, {FIN}, v{vX+1}")
    e("s_waitcnt lgkmcnt(0)")
    e("s_barrier")
    e(f"s_cmp_lg_u32 s{sW}, 0")
    e("s_cbranch_scc1 L_TS")
    for k in range(4): e(f"ds_read_b32 v{vD+k}, v{vX+1} offset:{16*k}")
    e("s_waitcnt lgkmcnt(0)")
    e(f"v_add_f32 v{vD}, v{vD}, v{vD+1}")
    e(f"v_add_f32 v{vD+2}, v{vD+2}, v{vD+3}")
    e(f"v_add_f32 v{vD}, v{vD}, v{vD+2}")
    rnd(vD)
    e(f"v_add_f32 v{vD}, v{vD}, v{vB2}")
    rnd(vD)
    e(f"v_add_f32 v{vD}, v{vD}, v{vXW}")
    rnd(vD)
    e(f"v_mul_f32 v{vD}, 0xbfb8aa3b, v{vD}")
    e(f"v_exp_f32 v{vD}, v{vD}")
    e("s_nop 0")
    e(f"v_add_f32 v{vD}, 1.0, v{vD}")
    e(f"v_rcp_f32 v{vD}, v{vD}")
    e("s_nop 0")
    e(f"v_cvt_pk_bf16_f32 v{vD}, v{vD}, v{vD}")
    e("s_mov_b32 exec_lo, 0x80008000")
    e("s_mov_b32 exec_hi, 0x80008000")
    e(f"buffer_store_short v{vD}, v{vOUTO}, s[{sOUT}:{sOUT+3}], 0 offen")
    e("s_mov_b64 exec, -1")
    E.lab("L_TS")
    if TS:
        stamp("end")
        srd(sWS, P_WS, 32 << 20)
        if rt:
            e(f"v_mov_b32 v{vTmp}, 16")
            e(f"v_mov_b32 v{vTmp+1}, 1")
            e("s_mov_b64 exec, 1")
            e(f"buffer_atomic_add v{vTmp+1}, v{vTmp}, s[{sDBG}:{sDBG+3}], 0 offen sc1")
            e("s_waitcnt vmcnt(0)")
            e(f"s_mov_b32 s{sCnt}, 0")
            E.lab("L_CAL")
            e(f"buffer_load_dword v{vTmp+2}, v{vTmp}, s[{sDBG}:{sDBG+3}], 0 offen sc1")
            e("s_waitcnt vmcnt(0)")
            e(f"v_readfirstlane_b32 s{sT0}, v{vTmp+2}")
            e(f"s_add_u32 s{sCnt}, s{sCnt}, 1")
            e(f"s_cmp_gt_u32 s{sCnt}, 20000")
            e("s_cbranch_scc1 L_CALOK")
            e(f"s_cmp_lt_u32 s{sT0}, 1024")
            e("s_cbranch_scc1 L_CAL")
            E.lab("L_CALOK")
            stamp("cal")
            e("s_mov_b64 exec, -1")
        n = tsn[0]
        assert sTS + 2 * n <= 98, n
        e(f"s_lshl_b32 s{sT0}, s2, 2")
        e(f"s_add_u32 s{sT0}, s{sT0}, s{sW}")
        e(f"s_lshl_b32 s{sT0}, s{sT0}, 6")
        e(f"s_add_u32 s{sT0}, s{sT0}, {16<<20}")
        e(f"v_mov_b32 v{vTmp}, 0")
        e("s_mov_b64 exec, 1")
        for k in range(n):
            if rt: e(f"s_mov_b32 s{sT1}, s{sTS+2*k}")
            else: e(f"s_sub_u32 s{sT1}, s{sTS+2*k}, s{sTS}")
            e(f"v_mov_b32 v{vTmp+1}, s{sT1}")
            e(f"buffer_store_dword v{vTmp+1}, v{vTmp}, s[{sWS}:{sWS+3}], s{sT0} offen offset:{4*k}")
    e("s_branch L_END")
    E.lab("L_NONCE_SLOW")
    e(f"buffer_load_dword v{vFL}, v{vZ}, s[{sDBG}:{sDBG+3}], 0 offen sc1")
    e("s_waitcnt vmcnt(0)")
    e(f"v_readfirstlane_b32 s{sT3}, v{vFL}")
    e(f"s_add_u32 s{sCnt}, s{sCnt}, 1")
    e("s_nop 3")
    e(f"s_cmp_gt_u32 s{sCnt}, 200000")
    e("s_cbranch_scc1 L_NONCEOK")
    e(f"s_cmp_lt_i32 s{sT3}, 0")
    e("s_cbranch_scc0 L_NONCE_SLOW")
    e("s_branch L_NONCEOK")
    E.lab("L_END")
    e("s_endpgm")
    E.lab("L_CODE_END")

    out = [HDR + f"; @launch grid=(256,1,1) block=(256,1,1) lds={LDS_TOTAL}",
           '.amdgcn_target "amdgcn-amd-amdhsa--gfx950"', ".text", f".globl {NAME}", ".p2align 8",
           f".type {NAME},@function"]
    out += E.L
    out += ['.section .rodata,"a"', ".p2align 6", f".amdhsa_kernel {NAME}",
            "  .amdhsa_next_free_vgpr 384", "  .amdhsa_next_free_sgpr 102", "  .amdhsa_accum_offset 256",
            "  .amdhsa_group_segment_fixed_size 0", "  .amdhsa_kernarg_size 96", "  .amdhsa_user_sgpr_count 2",
            "  .amdhsa_user_sgpr_kernarg_segment_ptr 1", "  .amdhsa_system_sgpr_workgroup_id_x 1",
            ".end_amdhsa_kernel"]
    return "\n".join(out) + "\n", names

if __name__ == "__main__":
    ap = argparse.ArgumentParser()
    ap.add_argument("-o", default="k.s")
    ap.add_argument("--ts", default=None)
    ap.add_argument("--steps", default="")
    ap.add_argument("--clk", action="store_true")
    ap.add_argument("--sleep", type=int, default=1)
    ap.add_argument("--tlag", type=int, default=6)
    ap.add_argument("--nopipe", action="store_true")
    ap.add_argument("--b1late", action="store_true")
    ap.add_argument("--ta2", action="store_true")
    ap.add_argument("--prew", type=int, default=None)
    ap.add_argument("--shiftB", action="store_true")
    ap.add_argument("--stf", default="sc1")
    ap.add_argument("--rdelay", type=int, default=0)
    ap.add_argument("--halves", action="store_true")
    ap.add_argument("--pre2", action="store_true")
    ap.add_argument("--wsoff", type=int, default=0)
    ap.add_argument("--ldf", default="sc1")
    ap.add_argument("--idxlate", action="store_true")
    ap.add_argument("--tbpos", default="after")
    a = ap.parse_args()
    st = tuple(a.ts.split(",")) if a.ts else ()
    steps = tuple(int(x) for x in a.steps.split(",") if x)
    st = st + tuple(f"s{x}" for x in steps)
    txt, names = gen(TS=a.ts is not None, stamps=st, stepstamps=steps, rt=not a.clk, sleep=a.sleep, tlag=a.tlag,
                     pipe_poll=not a.nopipe, b1early=not a.b1late, ta2=a.ta2, tbpos=a.tbpos, prew=a.prew, shiftB=a.shiftB, idxlate=a.idxlate, stf=a.stf.replace('_',' '), ldf=a.ldf.replace('_',' '), wsoff=a.wsoff << 20, pre2=a.pre2, halves=a.halves, rdelay=a.rdelay)
    open(a.o, "w").write(txt)
    if a.ts: open(a.o.replace(".s", ".names"), "w").write(" ".join(names))
```
